```python
import torch

def _softmax(x, axis=-1):
    return torch.softmax(x, dim=axis)
def _gelu(x):
    return torch.nn.functional.gelu(x, approximate="tanh")
def _silu(x):
    return torch.nn.functional.silu(x)
def _sigmoid(x):
    return torch.sigmoid(x)
def _layernorm(x, axis=-1, eps=1e-5):
    m = x.mean(dim=axis, keepdim=True)
    v = x.var(dim=axis, keepdim=True, unbiased=False)
    return (x - m) / torch.sqrt(v + eps)
def _scatter_add(tgt, idx, src, axis=0):
    return tgt.clone().index_add_(axis, idx, src)
def _segment_sum(src, seg, n):
    out = torch.zeros((n,) + src.shape[1:], dtype=src.dtype)
    return out.index_add_(0, seg, src)
def _pad(x, pw):
    flat = tuple(v for pair in reversed(pw) for v in pair)
    return torch.nn.functional.pad(x, flat)

kernel_name = 'sequential_preLN__ssm_conv_h3__dense_activation_silu__prompt'

def setup_inputs():

    _w = (lambda a: (lambda t: t.to(torch.bfloat16) if t.is_floating_point() else t)(torch.as_tensor(a)))
    def _A_setup():
        B, S, D = 1, 2048, 512
        ks = 4
        return {
            "q": _w((lambda *s: torch.randn(*s, dtype=torch.bfloat16) * 0.05)(B, S, D)),
            "k": _w((lambda *s: torch.randn(*s, dtype=torch.bfloat16) * 0.2)(B, S, D)),
            "v": _w((lambda *s: torch.randn(*s, dtype=torch.bfloat16) * 0.2)(B, S, D)),
            "shift_k": _w((lambda *s: torch.randn(*s, dtype=torch.bfloat16) * 0.2)(D, ks) * 0.5),
            "ssm_k": _w((lambda *s: torch.randn(*s, dtype=torch.bfloat16) * 0.4)(D, S) * (1.0 / S ** 0.5)),
            "ssm_D": _w((lambda *s: torch.randn(*s, dtype=torch.bfloat16) * 0.2)(D)),
        }
    _A_in = _A_setup()

    def _B_setup():
        B, S, D, F = 1, 2048, 512, 1792
        return {
            "x": _w((lambda *s: torch.randn(*s, dtype=torch.bfloat16) * 0.05)(B, S, D)),
            "w1": _w((lambda *s: torch.randn(*s, dtype=torch.bfloat16) * 0.8)(D, F) * (D ** -0.5)),
            "w2": _w((lambda *s: torch.randn(*s, dtype=torch.bfloat16) * 0.1)(F, D) * (F ** -0.5)),
        }
    _B_in = _B_setup()

    return {
        "A_q": _A_in["q"],
        "A_k": _A_in["k"],
        "A_v": _A_in["v"],
        "A_shift_k": _A_in["shift_k"],
        "A_ssm_k": _A_in["ssm_k"],
        "A_ssm_D": _A_in["ssm_D"],
        "B_x": _B_in["x"],
        "B_w1": _B_in["w1"],
        "B_w2": _B_in["w2"],
    }

def reference(A_q, A_k, A_v, A_shift_k, A_ssm_k, A_ssm_D, B_x, B_w1, B_w2):
    def _A_ref(q, k, v, shift_k, ssm_k, ssm_D):
        B, S, D = q.shape
        ks = shift_k.shape[-1]
        k_pad = _pad(k, ((0, 0), (ks - 1, 0), (0, 0)))
        k_shift = torch.zeros_like(k)
        for t in range(ks):
            k_shift = k_shift + k_pad[:, t:t + S, :] * shift_k[:, ks - 1 - t][None, None, :]
        kv = k_shift * v
        L = 2 * S
        kv_pad = _pad(kv, ((0, 0), (0, S), (0, 0)))
        kf_pad = _pad(ssm_k, ((0, 0), (0, S)))
        kv_f = (lambda x, axes=(-2,-1): torch.fft.rfft2(x.float(), dim=axes))(kv_pad[:, None, :, :], axes=(1, 2))
        kf_f = (lambda x, axes=(-2,-1): torch.fft.rfft2(x.float(), dim=axes))(kf_pad[:, None, :], axes=(1, 2))
        kf_f = (lambda x, *d: x.permute(*d))(kf_f, 1, 2, 0)
        y_f = kv_f * kf_f[None, :, :, :]
        y = (lambda x, s, axes=(-2,-1): torch.fft.irfft2(x, s=s, dim=axes).to(torch.bfloat16))(y_f, (1, L), axes=(1, 2))[:, 0, :S, :]
        y = y + kv * ssm_D[None, None, :]
        return q * y

    def _B_ref(x, w1, w2):
        h = torch.einsum("bsd,df->bsf", x, w1)
        h = _silu(h)
        out = torch.einsum("bsf,fd->bsd", h, w2)
        return out

    x = A_q
    h = x + _A_ref(_layernorm(x, axis=-1), A_k, A_v, A_shift_k, A_ssm_k, A_ssm_D)
    h2 = h + _B_ref(_layernorm(h, axis=-1), B_w1, B_w2)
    return h2
```

```python
import re

TRANS = ("v_exp_f32", "v_log_f32", "v_rcp_f32", "v_rsq_f32", "v_sqrt_f32", "v_sin_f32", "v_cos_f32", "v_rcp_iflag_f32")

def parse_regs(tok):
    tok = tok.strip()
    tok = tok.lstrip("-")
    if tok.startswith("abs(") or tok.startswith("|"):
        tok = tok.replace("abs(", "").replace(")", "").replace("|", "")
    m = re.fullmatch(r"([vas])\[(\d+):(\d+)\]", tok)
    if m:
        return {(m.group(1), i) for i in range(int(m.group(2)), int(m.group(3)) + 1)}
    m = re.fullmatch(r"([vas])(\d+)", tok)
    if m:
        return {(m.group(1), int(m.group(2)))}
    if tok in ("vcc", "vcc_lo", "vcc_hi"):
        return {("vcc", 0)}
    if tok in ("exec", "exec_lo", "exec_hi"):
        return {("exec", 0)}
    if tok == "m0":
        return {("m0", 0)}
    return set()

class Ins:
    __slots__ = ("text", "op", "reads", "writes", "kind", "passes", "srcc", "srcab", "dpp", "sdata", "states")

def analyze(text):
    t = text.split(";")[0].strip()
    I = Ins(); I.text = text; I.reads = set(); I.writes = set(); I.kind = "other"; I.passes = 0
    I.srcc = set(); I.srcab = set(); I.dpp = False; I.sdata = set(); I.states = 1
    if not t or t.endswith(":") or t.startswith("."):
        I.op = ""; I.kind = "label"; I.states = 0
        return I
    parts = t.split(None, 1)
    op = parts[0]; I.op = op
    rest = parts[1] if len(parts) > 1 else ""
    ops = [o.strip() for o in rest.split(",")] if rest else []
    rest_nomod = re.split(r"\s+(?:offen|idxen|offset|op_sel|neg_lo|neg_hi|quad_perm|row_|bank_mask|sc0|sc1|nt|lds|dst_sel|src0_sel|src1_sel|clamp|mul:|div:|bound_ctrl|cbsz|abid|blgp|glc)", " " + rest)[0]
    ops = [o.strip() for o in rest_nomod.split(",") if o.strip()]
    R = [parse_regs(o) for o in ops]
    if op == "s_nop":
        I.kind = "nop"; I.states = int(ops[0], 0) + 1
        return I
    if op.startswith("v_mfma"):
        I.kind = "mfma"
        I.passes = 8 if "32x32x16" in op else 4 if "16x16x32" in op else None
        assert I.passes, op
        I.writes = set(R[0]); I.srcab = R[1] | R[2]; I.srcc = R[3]
        I.reads = I.srcab | I.srcc
        return I
    if op.startswith("v_"):
        I.kind = "valu"
        base = op.replace("_e32", "").replace("_e64", "").replace("_dpp", "").replace("_sdwa", "")
        if base in TRANS: I.kind = "trans"
        if base.startswith("v_dot"): I.kind = "dot"
        if "_dpp" in op or "quad_perm" in rest or "row_" in rest: I.dpp = True
        if base.startswith("v_cmp"):
            I.writes = set(R[0]); I.reads = set().union(*R[1:])
        elif base in ("v_add_co_u32", "v_sub_co_u32", "v_subrev_co_u32", "v_addc_co_u32", "v_subb_co_u32"):
            I.writes = R[0] | R[1]; I.reads = set().union(*R[2:])
        elif base.startswith("v_permlane") and "swap" in base:
            I.kind = "permlane"; I.writes = R[0] | R[1]; I.reads = R[0] | R[1]
        elif base in ("v_readfirstlane_b32", "v_readlane_b32"):
            I.kind = "readlane"; I.writes = set(R[0]); I.reads = set().union(*R[1:])
        elif base in ("v_fmac_f32", "v_dot2c_f32_bf16", "v_pk_fmac_f16"):
            I.writes = set(R[0]); I.reads = set().union(*R)
        else:
            I.writes = set(R[0]); I.reads = set().union(*R[1:]) if len(R) > 1 else set()
            if base == "v_cndmask_b32" and len(R) == 3: I.reads |= {("vcc", 0)}
        if I.dpp: I.reads |= set(R[0])
        return I
    if op.startswith("ds_"):
        I.kind = "ds"
        if op.startswith("ds_read") or op.startswith("ds_bpermute") or op.startswith("ds_permute") or op.startswith("ds_swizzle"):
            I.writes = set(R[0]); I.reads = set().union(*R[1:]) if len(R) > 1 else set()
        else:
            I.reads = set().union(*R)
        return I
    if op.startswith("buffer_") or op.startswith("global_"):
        I.kind = "vmem"
        islds = bool(re.search(r"\blds\b", rest)) or "load_lds" in op
        if op in ("buffer_inv", "buffer_wbl2"): return I
        if "load" in op and not islds:
            I.writes = set(R[0]); I.reads = set().union(*R[1:])
        else:
            I.reads = set().union(*R) if R else set()
            if islds: I.reads |= {("m0", 0)}; I.kind = "vmem_lds"
            if "store" in op and ("x4" in op or "x3" in op):
                I.sdata = set(R[0]) if op.startswith("buffer_") else set(R[1])
        return I
    if op.startswith("s_"):
        I.kind = "salu"
        if op.startswith("s_cmp") or op.startswith("s_cbranch") or op in ("s_branch", "s_barrier", "s_waitcnt", "s_endpgm", "s_sleep", "s_setprio"):
            I.reads = set().union(*R) if R else set()
        else:
            I.writes = set(R[0]) if R else set(); I.reads = set().union(*R[1:]) if len(R) > 1 else set()
            if "saveexec" in op: I.writes |= {("exec", 0)}
        return I
    raise ValueError("unknown op " + text)

def need(prev, cur):
    n = 0
    isvalu_prev = prev.kind in ("valu", "trans", "dot", "permlane", "readlane")
    isvalu_cur = cur.kind in ("valu", "trans", "dot", "permlane", "readlane")
    pw_v = {r for r in prev.writes if r[0] in "va"}
    pw_s = {r for r in prev.writes if r[0] in ("s", "vcc")}
    if isvalu_prev:
        if cur.kind == "mfma" and pw_v & cur.reads: n = max(n, 2)
        if cur.dpp and pw_v & cur.reads: n = max(n, 2)
        if cur.kind == "permlane" and pw_v & cur.reads: n = max(n, 2)
        if cur.kind == "readlane" and pw_v & cur.reads: n = max(n, 1)
        if prev.kind == "trans" and isvalu_cur and cur.kind != "trans" and pw_v & cur.reads: n = max(n, 1)
        if prev.kind == "trans" and cur.kind in ("mfma",) and pw_v & cur.reads: n = max(n, 2)
        if prev.kind == "dot" and pw_v & (cur.reads | cur.writes):
            if not (cur.op == prev.op and cur.kind == "dot" and not (pw_v & (cur.reads - set(cur.writes)))):
                n = max(n, 3)
        if pw_s:
            if (isvalu_cur or cur.kind == "mfma") and pw_s & cur.reads: n = max(n, 4 if cur.kind == "readlane" else 2)
            if cur.kind in ("vmem", "vmem_lds") and pw_s & cur.reads: n = max(n, 5)
            if cur.kind == "salu" and pw_s & cur.reads: n = max(n, 1)
    if prev.kind == "mfma":
        D = prev.writes
        big = 12 if prev.passes == 8 else 8
        if cur.kind == "mfma":
            if D & cur.srcab: n = max(n, big)
            if D & cur.srcc:
                if not (cur.srcc == D and cur.passes == prev.passes): n = max(n, big - 2)
            if D & cur.writes and not (D & cur.srcc):
                n = max(n, big - 2)
        elif D & (cur.reads | cur.writes): n = max(n, big)
        if isvalu_cur and prev.srcc & cur.writes: n = max(n, 7 if prev.passes == 8 else 3)
    if prev.kind == "salu" and ("m0", 0) in prev.writes and cur.kind == "vmem_lds": n = max(n, 1)
    if prev.sdata and prev.sdata & cur.writes: n = max(n, 2 if isvalu_cur else 1)
    return n

class Asm:
    def __init__(self):
        self.ins = []
    def __call__(self, text):
        for line in text.strip("\n").split("\n"):
            line = line.strip()
            if line: self.ins.append(line)
    def raw(self, text):
        self.ins.append(text)
    def finalize(self):
        out = []; hist = []
        for line in self.ins:
            I = analyze(line)
            if I.kind == "label":
                out.append(line)
                continue
            pad = 0; dist = 0
            for p in reversed(hist):
                req = need(p, I)
                if req > dist: pad = max(pad, req - dist)
                dist += p.states
                if dist >= 24: break
            while pad > 0:
                k = min(pad, 16)
                nop = analyze(f"s_nop {k-1}")
                out.append(f"    s_nop {k-1}"); hist.append(nop); pad -= k
            out.append("    " + line); hist.append(I)
            if len(hist) > 64: hist = hist[-40:]
        return "\n".join(out) + "\n"
```

```python
import sys, os
sys.path.insert(0, os.path.dirname(os.path.abspath(__file__)))
from asmlib import Asm

NAME = "sequential_preLN__ssm_conv_h3__dense_activation_silu__prompt"
KVR = 0x000000
XT  = 0x200000
ST  = 0x400000
HT  = 0x500000
W1F = 0x800000
W2F = 0xA00000
H1F = 0xC00000
WS_SIZE = 0x1400000
LOG2E = 1.4426950408889634

def srd(A, d, lo, nbytes):
    A(f"s_mov_b32 s{d}, s{lo}\ns_mov_b32 s{d+1}, s{lo+1}\ns_mov_b32 s{d+2}, {hex(nbytes)}\ns_mov_b32 s{d+3}, 0x00020000")

def header(name):
    return f".globl {name}\n.p2align 8\n.type {name},@function\n{name}:\n"

def descriptor(name, vgpr, accum, sgpr=96):
    return (f".amdhsa_kernel {name}\n  .amdhsa_next_free_vgpr {vgpr}\n  .amdhsa_next_free_sgpr {sgpr}\n"
            f"  .amdhsa_accum_offset {accum}\n  .amdhsa_group_segment_fixed_size 0\n  .amdhsa_kernarg_size 96\n"
            f"  .amdhsa_user_sgpr_count 2\n  .amdhsa_user_sgpr_kernarg_segment_ptr 1\n"
            f"  .amdhsa_system_sgpr_workgroup_id_x 1\n.end_amdhsa_kernel\n")

def rowstats_finish(A, vsum, vsq, t0, t1, inv_n):
    A(f"""
    v_mul_f32 v{vsum}, {inv_n}, v{vsum}
    v_mul_f32 v{vsq}, {inv_n}, v{vsq}
    v_fma_f32 v{vsq}, -v{vsum}, v{vsum}, v{vsq}
    v_max_f32 v{vsq}, 0, v{vsq}
    v_cvt_pk_bf16_f32 v{t0}, v{vsum}, v{vsq}
    v_lshlrev_b32 v{vsum}, 16, v{t0}
    v_and_b32 v{vsq}, 0xffff0000, v{t0}
    v_add_f32 v{vsq}, 0x3727c5ac, v{vsq}
    v_cvt_pk_bf16_f32 v{t0}, v{vsq}, v{vsq}
    v_lshlrev_b32 v{vsq}, 16, v{t0}
    v_sqrt_f32 v{vsq}, v{vsq}
    v_cvt_pk_bf16_f32 v{t0}, v{vsq}, v{vsq}
    v_lshlrev_b32 v{vsq}, 16, v{t0}
    """)

def gen_k0():
    A = Asm()
    A("""
    s_cmp_ge_u32 s2, 256
    s_cbranch_scc1 K0_END
    s_load_dwordx4 s[4:7], s[0:1], 0
    s_load_dwordx4 s[8:11], s[0:1], 16
    s_load_dwordx2 s[12:13], s[0:1], 88
    s_lshr_b32 s14, s2, 3            ; rt
    s_and_b32 s15, s2, 7             ; ct
    v_and_b32 v1, 15, v0             ; cp
    v_bfe_u32 v2, v0, 4, 2           ; rb
    v_bfe_u32 v3, v0, 6, 1           ; wc
    v_lshrrev_b32 v4, 7, v0          ; wr
    s_lshl_b32 s36, s14, 6           ; 64*rt
    s_lshl_b32 s37, s15, 7
    v_lshlrev_b32 v5, 3, v2
    v_lshl_add_u32 v5, v4, 5, v5
    v_add_u32 v5, s36, v5            ; row0
    v_lshlrev_b32 v6, 2, v1
    v_lshl_add_u32 v6, v3, 6, v6
    v_add_u32 v6, s37, v6
    v_lshl_add_u32 v7, v5, 10, v6
    v_add_u32 v8, 4096, v7           ; vB
    v_subrev_u32 v9, 3072, v7        ; vH
    v_lshlrev_b32 v37, 2, v6
    v_lshrrev_b32 v38, 5, v0         ; tid>>5 = 2w + (l>>5)
    s_lshl_b32 s38, s2, 3
    v_add_u32 v38, s38, v38          ; srow
    v_and_b32 v39, 31, v0
    v_lshlrev_b32 v52, 4, v39
    v_lshl_add_u32 v52, v38, 10, v52
    s_waitcnt lgkmcnt(0)
    """)
    srd(A, 16, 4, 0x200000); srd(A, 20, 6, 0x200000); srd(A, 24, 8, 0x200000); srd(A, 28, 10, 4096); srd(A, 32, 12, WS_SIZE)
    A("buffer_load_dwordx4 v[40:43], v37, s[28:31], 0 offen")
    for j in range(3): A(f"buffer_load_dword v{10+j}, v9, s[20:23], 0 offen offset:{1024*j}")
    for j in range(4): A(f"buffer_load_dword v{13+j}, v7, s[20:23], 0 offen offset:{1024*j}")
    for j in range(4): A(f"buffer_load_dword v{17+j}, v8, s[20:23], 0 offen offset:{1024*j}")
    for j in range(4): A(f"buffer_load_dword v{21+j}, v7, s[24:27], 0 offen offset:{1024*j}")
    for j in range(4): A(f"buffer_load_dword v{25+j}, v8, s[24:27], 0 offen offset:{1024*j}")
    for j in range(4): A(f"buffer_load_dword v{29+j}, v7, s[16:19], 0 offen offset:{1024*j}")
    for j in range(4): A(f"buffer_load_dword v{33+j}, v8, s[16:19], 0 offen offset:{1024*j}")
    A("buffer_load_dwordx4 v[44:47], v52, s[16:19], 0 offen")
    A("buffer_load_dwordx4 v[48:51], v52, s[16:19], 0 offen offset:512")
    A(f"""
    v_lshlrev_b32 v53, 11, v6        ; ch*4096
    v_lshlrev_b32 v54, 1, v5         ; row0*2
    v_sub_u32 v55, v53, v54
    v_add_u32 v55, {KVR + 4080}, v55
    v_add_u32 v56, v53, v54
    v_add_u32 v56, {XT}, v56
    s_mov_b32 s39, 4096
    s_mov_b32 s40, 0x05040100
    s_mov_b32 s41, 0x07060302
    s_mov_b32 s42, 0x3f803f80
    s_waitcnt vmcnt(18)
    """)
    A("""
    v_lshlrev_b32 v98, 16, v40
    v_lshlrev_b32 v99, 16, v42
    v_and_b32 v100, 0xffff0000, v40
    v_and_b32 v101, 0xffff0000, v42
    v_lshlrev_b32 v102, 16, v41
    v_lshlrev_b32 v103, 16, v43
    v_and_b32 v104, 0xffff0000, v41
    v_and_b32 v105, 0xffff0000, v43
    """)
    for r in range(11):
        A(f"v_lshlrev_b32 v{60+2*r}, 16, v{10+r}\nv_and_b32 v{61+2*r}, 0xffff0000, v{10+r}")
    for r in range(8):
        R = 110 + 2 * r
        A(f"v_pk_mul_f32 v[{R}:{R+1}], v[{60+2*(r+3)}:{61+2*(r+3)}], v[98:99]")
    for j in range(1, 4):
        for r in range(8):
            R = 110 + 2 * r; K = 60 + 2 * (r + 3 - j)
            A(f"v_pk_fma_f32 v[{R}:{R+1}], v[{K}:{K+1}], v[{98+2*j}:{99+2*j}], v[{R}:{R+1}]")
    A("s_waitcnt vmcnt(10)")
    for r in range(8):
        A(f"v_lshlrev_b32 v{82+2*r}, 16, v{21+r}\nv_and_b32 v{83+2*r}, 0xffff0000, v{21+r}")
    for r in range(8):
        R = 110 + 2 * r
        A(f"v_pk_mul_f32 v[{R}:{R+1}], v[{R}:{R+1}], v[{82+2*r}:{83+2*r}]")
    for i in range(4):
        A(f"v_cvt_pk_bf16_f32 v{128+i}, v{110+2*(7-2*i)}, v{110+2*(6-2*i)}")
        A(f"v_cvt_pk_bf16_f32 v{132+i}, v{111+2*(7-2*i)}, v{111+2*(6-2*i)}")
    A("buffer_store_dwordx4 v[128:131], v55, s[32:35], 0 offen")
    A("buffer_store_dwordx4 v[132:135], v55, s[32:35], s39 offen")
    A("s_waitcnt vmcnt(4)")
    for i in range(4):
        A(f"v_perm_b32 v{136+i}, v{30+2*i}, v{29+2*i}, s40")
        A(f"v_perm_b32 v{140+i}, v{30+2*i}, v{29+2*i}, s41")
    A("buffer_store_dwordx4 v[136:139], v56, s[32:35], 0 offen")
    A("buffer_store_dwordx4 v[140:143], v56, s[32:35], s39 offen")
    A("s_waitcnt vmcnt(4)")
    A("v_mov_b32 v57, 0\nv_mov_b32 v58, 0\nv_mov_b32 v59, s42")
    for i in range(8):
        A(f"v_dot2c_f32_bf16 v57, v{44+i}, v59")
        A(f"v_dot2c_f32_bf16 v58, v{44+i}, v{44+i}")
    for pat in ["quad_perm:[1,0,3,2]", "quad_perm:[2,3,0,1]", "row_half_mirror", "row_mirror"]:
        A(f"v_add_f32_dpp v57, v57, v57 {pat} row_mask:0xf bank_mask:0xf")
        A(f"v_add_f32_dpp v58, v58, v58 {pat} row_mask:0xf bank_mask:0xf")
    A("""
    v_mov_b32 v60, v57
    v_mov_b32 v61, v58
    v_permlane16_swap_b32 v57, v60
    v_permlane16_swap_b32 v58, v61
    v_add_f32 v57, v57, v60
    v_add_f32 v58, v58, v61
    """)
    rowstats_finish(A, 57, 58, 60, 61, "0x3b000000")
    A(f"""
    v_rcp_f32 v58, v58
    v_lshlrev_b32 v60, 2, v38
    v_add_u32 v60, {ST}, v60
    v_cmp_eq_u32 vcc, 0, v39
    s_and_saveexec_b64 s[44:45], vcc
    s_mov_b32 s43, 0x2000
    buffer_store_dword v57, v60, s[32:35], 0 offen
    buffer_store_dword v58, v60, s[32:35], s43 offen
    K0_END:
    s_endpgm
    """)
    return A.finalize(), 144, 144

K1_KC = 0; K1_CHS = 16640; K1_CPS = 4160
K1_KV = 33280; K1_KVS = 4608
K1_RED = 42496
K1_LDS = 58880
def gen_k1():
    A = Asm()
    A("""
    s_cmp_ge_u32 s2, 256
    s_cbranch_scc1 K1_END
    s_load_dwordx4 s[4:7], s[0:1], 32
    s_load_dwordx4 s[8:11], s[0:1], 56     ; w1 s[8:9], w2 s[10:11]
    s_load_dwordx2 s[12:13], s[0:1], 88    ; ws
    v_lshrrev_b32 v1, 6, v0
    v_and_b32 v2, 63, v0                   ; lane
    v_readfirstlane_b32 s14, v1            ; wave
    s_lshl_b32 s15, s2, 13                 ; c0*4096 bytes
    v_lshlrev_b32 v3, 4, v0                ; t*16
    v_add_u32 v3, s15, v3
    v_add_u32 v4, 4096, v3
    s_lshr_b32 s36, s14, 1                 ; chl
    s_and_b32 s37, s14, 1                  ; par
    s_lshl_b32 s38, s2, 1
    s_add_u32 s38, s38, s36
    s_waitcnt lgkmcnt(0)
    """)
    srd(A, 16, 4, 0x200000)
    srd(A, 20, 12, WS_SIZE)
    srd(A, 28, 6, 1024)
    A("""
    buffer_load_dwordx4 v[16:19], v3, s[16:19], 0 offen
    buffer_load_dwordx2 v[20:21], v3, s[16:19], 0 offen offset:16
    buffer_load_dwordx4 v[24:27], v3, s[16:19], 0 offen offset:4
    buffer_load_dwordx4 v[28:31], v4, s[16:19], 0 offen
    buffer_load_dwordx2 v[32:33], v4, s[16:19], 0 offen offset:16
    buffer_load_dwordx4 v[36:39], v4, s[16:19], 0 offen offset:4
    """)
    A(f"""
    s_lshl_b32 s39, s38, 12                ; ch*4096
    s_lshl_b32 s40, s37, 11                ; par*2048
    s_add_u32 s39, s39, s40
    s_add_u32 s39, s39, {KVR}
    s_mul_i32 s41, s36, {K1_KVS}
    s_add_u32 s41, s41, s40
    s_add_u32 s41, s41, {K1_KV}
    s_mov_b32 m0, s41
    v_lshlrev_b32 v5, 4, v2                ; lane*16
    buffer_load_dwordx4 v5, s[20:23], s39 offen lds
    buffer_load_dwordx4 v5, s[20:23], s39 offen offset:1024 lds
    """)
    A("""
    v_bfe_u32 v6, v2, 2, 1
    v_lshlrev_b32 v6, 12, v6
    v_add_u32 v6, s15, v6
    buffer_load_dwordx2 v[48:49], v6, s[16:19], 0 offen
    s_lshl_b32 s42, s38, 1
    v_mov_b32 v7, s42
    buffer_load_ushort v50, v7, s[28:31], 0 offen
    """)
    A(f"""
    s_cmp_ge_u32 s2, 128
    s_cbranch_scc1 K1_W2
    s_mov_b32 s24, s8
    s_mov_b32 s25, s9
    s_lshr_b32 s43, s2, 1                  ; kb
    s_and_b32 s44, s2, 1
    s_mul_i32 s44, s44, 224
    v_add_u32 v8, s44, v0                  ; nb
    s_mul_i32 s45, s43, {8*3584}
    v_lshlrev_b32 v9, 3, v8
    v_add_u32 v9, s45, v9
    s_mov_b32 s48, 0
    s_mov_b32 s49, 3584
    s_mov_b32 s50, {2*3584}
    s_mov_b32 s51, {3*3584}
    s_mov_b32 s52, {4*3584}
    s_mov_b32 s53, {5*3584}
    s_mov_b32 s54, {6*3584}
    s_mov_b32 s55, {7*3584}
    v_lshrrev_b32 v10, 3, v8
    v_lshlrev_b32 v10, 15, v10
    v_and_b32 v11, 7, v8
    v_lshl_add_u32 v10, v11, 6, v10
    s_lshl_b32 s45, s43, 9
    s_add_u32 s45, s45, {W1F}
    v_add_u32 v10, s45, v10
    s_branch K1_WL
    K1_W2:
    s_mov_b32 s24, s10
    s_mov_b32 s25, s11
    s_sub_u32 s43, s2, 128
    s_mul_i32 s43, s43, 224
    v_add_u32 v8, s43, v0                  ; T
    v_and_b32 v11, 127, v8                 ; nb
    v_lshrrev_b32 v12, 7, v8               ; kb
    v_lshrrev_b32 v13, 1, v12              ; ks2
    v_and_b32 v14, 1, v12                  ; kk
    v_lshlrev_b32 v9, 14, v13              ; 16*ks2*1024
    v_lshl_add_u32 v9, v14, 12, v9         ; + 4kk*1024
    v_lshl_add_u32 v9, v11, 3, v9          ; + nb*8
    s_mov_b32 s48, 0
    s_mov_b32 s49, 1024
    s_mov_b32 s50, 2048
    s_mov_b32 s51, 3072
    s_mov_b32 s52, 8192
    s_mov_b32 s53, 9216
    s_mov_b32 s54, 10240
    s_mov_b32 s55, 11264
    v_lshrrev_b32 v10, 3, v11
    s_mov_b32 s45, 114688
    v_mul_lo_u32 v10, v10, s45
    v_lshl_add_u32 v10, v12, 9, v10
    v_and_b32 v11, 7, v11
    v_lshl_add_u32 v10, v11, 6, v10
    v_add_u32 v10, {W2F}, v10
    K1_WL:
    s_mov_b32 s26, {512*1792*2}
    s_mov_b32 s27, 0x00020000
    v_cmp_gt_u32 vcc, 224, v0
    s_and_saveexec_b64 s[46:47], vcc
    """)
    for j in range(8):
        A(f"buffer_load_dwordx2 v[{64+2*j}:{65+2*j}], v9, s[24:27], s{48+j} offen")
    A("s_mov_b64 exec, s[46:47]")
    A(f"""
    v_and_b32 v11, 15, v2                  ; n
    v_lshrrev_b32 v12, 4, v2               ; q
    v_lshlrev_b32 v13, 4, v11
    v_lshl_add_u32 v13, v12, 2, v13        ; 16n+4q
    s_lshl_b32 s56, s37, 10
    v_add_u32 v13, s56, v13                ; s0 for j=0
    v_lshlrev_b32 v14, 1, v13              ; s0*2
    s_lshl_b32 s57, s38, 12
    s_add_u32 s57, s57, {XT}
    v_lshlrev_b32 v15, 2, v13              ; s0*4
    s_mov_b32 s58, {ST}
    s_mov_b32 s59, {ST + 0x2000}
    """)
    for j in range(4): A(f"buffer_load_dwordx2 v[{96+2*j}:{97+2*j}], v14, s[20:23], s57 offen offset:{512*j}")
    for j in range(4): A(f"buffer_load_dwordx4 v[{104+4*j}:{107+4*j}], v15, s[20:23], s58 offen offset:{1024*j}")
    for j in range(4): A(f"buffer_load_dwordx4 v[{120+4*j}:{123+4*j}], v15, s[20:23], s59 offen offset:{1024*j}")
    A(f"""
    v_lshlrev_b32 v51, 4, v0
    v_add_u32 v51, {K1_KC + 32}, v51
    v_mov_b32 v52, 0
    v_mov_b32 v53, 0
    v_mov_b32 v54, 0
    v_mov_b32 v55, 0
    v_lshrrev_b32 v56, 5, v2
    v_mul_u32_u24 v56, {K1_KVS}, v56
    v_and_b32 v57, 31, v2
    v_lshl_add_u32 v56, v57, 4, v56
    v_add_u32 v56, {K1_KV + 4096}, v56
    ds_write_b128 v56, v[52:55]
    s_waitcnt vmcnt(27)
    """)
    for c, (D, E, O) in enumerate([(16, 24, 40), (28, 36, 56)]):
        if c == 1: A("s_waitcnt vmcnt(24)")
        for w in range(4): A(f"v_alignbit_b32 v{O+w}, v{D+w+1}, v{D+w}, 16")
        for w in range(4): A(f"v_alignbit_b32 v{O+4+w}, v{D+w+2}, v{D+w+1}, 16")
        base = c * K1_CHS
        A(f"ds_write_b128 v51, v[{O}:{O+3}] offset:{base}")
        A(f"ds_write_b128 v51, v[{E}:{E+3}] offset:{base + K1_CPS}")
        A(f"ds_write_b128 v51, v[{O+4}:{O+7}] offset:{base + 2*K1_CPS}")
        A(f"ds_write_b128 v51, v[{D+2}:{D+5}] offset:{base + 3*K1_CPS}")
        if c == 0:
            pass
    A(f"""
    s_waitcnt vmcnt(21)
    v_and_b32 v6, 3, v2                    ; r
    v_sub_u32 v7, 3, v6
    v_lshlrev_b32 v7, 4, v7                ; 16*(3-r)
    v_lshlrev_b64 v[54:55], v7, v[48:49]
    v_bfe_u32 v7, v2, 2, 1
    v_mul_u32_u24 v7, {K1_CHS}, v7
    v_mul_u32_u24 v6, {K1_CPS}, v6
    v_add3_u32 v6, v6, v7, {K1_KC}
    v_mov_b32 v44, 0
    v_mov_b32 v45, 0
    v_mov_b32 v46, 0
    v_mov_b32 v47, 0
    s_mov_b64 exec, 0xff
    ds_write_b128 v6, v[44:47]
    ds_write_b128 v6, v[52:55] offset:16
    s_mov_b64 exec, -1
    """)
    A(f"""
    v_and_b32 v6, 3, v11                   ; i&3   (i = n = lane&15)
    v_mul_u32_u24 v6, {K1_CPS}, v6
    v_lshrrev_b32 v7, 2, v11
    v_lshl_add_u32 v6, v7, 3, v6
    v_lshl_add_u32 v6, v12, 4, v6          ; + 16kk
    s_mul_i32 s60, s36, {K1_CHS}
    s_lshl_b32 s61, s37, 6                 ; 64*par
    s_add_u32 s60, s60, s61
    s_add_u32 s60, s60, {K1_KC}
    v_add_u32 v6, s60, v6                  ; vAfrag
    v_lshlrev_b32 v7, 4, v12
    v_lshlrev_b32 v8, 5, v11
    v_sub_u32 v7, v7, v8                   ; 16kk - 32n
    s_mul_i32 s60, s36, {K1_KVS}
    s_add_u32 s60, s60, s61
    s_add_u32 s60, s60, {K1_KV + 480}
    v_add_u32 v7, s60, v7                  ; vBfrag
    """)
    for j in range(32): A(f"v_mov_b32 v{136+j}, 0")
    A("s_waitcnt vmcnt(20) lgkmcnt(0)\ns_barrier")
    def reads(j, buf):
        L = []
        for U in range(8):
            a = buf * 32 + 4 * U
            L.append(f"ds_read_b64 a[{a}:{a+1}], v6 offset:{512*U + 128*j}")
            L.append(f"ds_read_b64 a[{a+2}:{a+3}], v6 offset:{512*U + 128*j + 8}")
            b = 64 + buf * 32 + 4 * U
            L.append(f"ds_read_b128 a[{b}:{b+3}], v7 offset:{3584 - 512*U + 128*j}")
        return L
    for r in reads(0, 0): A(r)
    A("s_mov_b32 s62, 0x05040100\ns_mov_b32 s63, 0x07060302\ns_waitcnt vmcnt(12)")
    for e in range(4):
        d = e >> 1; sel = "s62" if (e & 1) == 0 else "s63"
        for p in range(4):
            A(f"v_perm_b32 v{80+4*e+p}, v{64+2*(2*p+1)+d}, v{64+2*(2*p)+d}, {sel}")
    A("v_cmp_gt_u32 vcc, 224, v0\ns_and_saveexec_b64 s[46:47], vcc")
    for e in range(4):
        A(f"buffer_store_dwordx4 v[{80+4*e}:{83+4*e}], v10, s[20:23], 0 offen offset:{16*e}")
    A("s_mov_b64 exec, s[46:47]")
    pairs = [(U, W) for U in range(8) for W in range(8) if U + W <= 7]
    for j in range(4):
        buf = j & 1
        A("s_waitcnt lgkmcnt(0)")
        nxt = reads(j + 1, buf ^ 1) if j < 3 else []
        for idx, (U, W) in enumerate(pairs):
            acc = 136 + 4 * (U + W)
            a = buf * 32 + 4 * U; b = 64 + buf * 32 + 4 * W
            A(f"v_mfma_f32_16x16x32_bf16 v[{acc}:{acc+3}], a[{a}:{a+3}], a[{b}:{b+3}], v[{acc}:{acc+3}]")
            if nxt and idx >= 2: A(nxt.pop(0))
        assert not nxt
    A(f"""
    v_lshlrev_b32 v8, 4, v2
    s_lshl_b32 s60, s14, 12
    s_add_u32 s60, s60, {K1_RED}
    v_add_u32 v9, s60, v8
    s_xor_b32 s61, s14, 1
    s_lshl_b32 s61, s61, 12
    s_add_u32 s61, s61, {K1_RED}
    v_add_u32 v8, s61, v8
    s_mul_i32 s60, s36, {K1_KVS}
    s_add_u32 s60, s60, {K1_KV + 4088 - 1536}
    v_sub_u32 v10, s60, v14
    s_cmp_eq_u32 s37, 0
    s_cbranch_scc1 K1_P0
    """)
    for j in range(4): A(f"ds_write_b128 v9, v[{136+4*j}:{139+4*j}] offset:{1024*j}")
    A("s_nop 1")
    for j in range(16): A(f"v_mov_b32 v{136+j}, v{152+j}")
    A("s_branch K1_PJ\nK1_P0:\ns_nop 7")
    for j in range(4): A(f"ds_write_b128 v9, v[{152+4*j}:{155+4*j}] offset:{1024*j}")
    A("K1_PJ:")
    for j in range(4): A(f"ds_read_b64 v[{16+2*j}:{17+2*j}], v10 offset:{1536-512*j}")
    A("s_waitcnt lgkmcnt(0)\ns_barrier")
    for j in range(4): A(f"ds_read_b128 v[{24+4*j}:{27+4*j}], v8 offset:{1024*j}")
    A(f"""
    s_and_b32 s60, s38, 3
    s_lshl_b32 s60, s60, 1
    v_and_b32 v8, 7, v11
    v_xor_b32 v8, s60, v8
    v_lshlrev_b32 v8, 5, v8
    v_lshl_add_u32 v8, v12, 3, v8
    v_lshrrev_b32 v9, 3, v11
    v_lshl_add_u32 v8, v9, 17, v8
    s_lshl_b32 s60, s38, 8
    s_lshl_b32 s61, s37, 20                ; par*4*2*131072
    s_add_u32 s60, s60, s61
    s_add_u32 s60, s60, {HT}
    v_add_u32 v8, s60, v8
    s_mov_b32 s64, 0
    s_mov_b32 s65, {2*131072}
    s_mov_b32 s66, {4*131072}
    s_mov_b32 s67, {6*131072}
    v_lshlrev_b32 v50, 16, v50             ; D as f32
    s_waitcnt vmcnt(4) lgkmcnt(0)
    """)
    for j in range(4):
        acc = 136 + 4 * j; P = 24 + 4 * j; kv = 16 + 2 * j; x = 96 + 2 * j; m = 104 + 4 * j; rs = 120 + 4 * j
        T = 40
        A(f"""
        v_and_b32 v{T}, 0xffff0000, v{kv+1}
        v_lshlrev_b32 v{T+1}, 16, v{kv+1}
        v_and_b32 v{T+2}, 0xffff0000, v{kv}
        v_lshlrev_b32 v{T+3}, 16, v{kv}
        v_lshlrev_b32 v{T+4}, 16, v{x}
        v_and_b32 v{T+5}, 0xffff0000, v{x}
        v_lshlrev_b32 v{T+6}, 16, v{x+1}
        v_and_b32 v{T+7}, 0xffff0000, v{x+1}
        v_pk_add_f32 v[{acc}:{acc+1}], v[{acc}:{acc+1}], v[{P}:{P+1}]
        v_pk_add_f32 v[{acc+2}:{acc+3}], v[{acc+2}:{acc+3}], v[{P+2}:{P+3}]
        v_pk_fma_f32 v[{acc}:{acc+1}], v[{T}:{T+1}], v[50:51], v[{acc}:{acc+1}] op_sel_hi:[1,0,1]
        v_pk_fma_f32 v[{acc+2}:{acc+3}], v[{T+2}:{T+3}], v[50:51], v[{acc+2}:{acc+3}] op_sel_hi:[1,0,1]
        v_pk_add_f32 v[{T}:{T+1}], v[{T+4}:{T+5}], v[{m}:{m+1}] neg_lo:[0,1] neg_hi:[0,1]
        v_pk_add_f32 v[{T+2}:{T+3}], v[{T+6}:{T+7}], v[{m+2}:{m+3}] neg_lo:[0,1] neg_hi:[0,1]
        v_pk_mul_f32 v[{T}:{T+1}], v[{T}:{T+1}], v[{rs}:{rs+1}]
        v_pk_mul_f32 v[{T+2}:{T+3}], v[{T+2}:{T+3}], v[{rs+2}:{rs+3}]
        v_pk_fma_f32 v[{T}:{T+1}], v[{T}:{T+1}], v[{acc}:{acc+1}], v[{T+4}:{T+5}]
        v_pk_fma_f32 v[{T+2}:{T+3}], v[{T+2}:{T+3}], v[{acc+2}:{acc+3}], v[{T+6}:{T+7}]
        v_cvt_pk_bf16_f32 v{56+2*j}, v{T}, v{T+1}
        v_cvt_pk_bf16_f32 v{57+2*j}, v{T+2}, v{T+3}
        buffer_store_dwordx2 v[{56+2*j}:{57+2*j}], v8, s[20:23], s{64+j} offen
        """)
    A("K1_END:\ns_endpgm")
    return A.finalize(), 168 + 128, 168

K2_STA = 131072
K2_CS = K2_STA + 2048
K2_LDS = K2_CS + 512
def gen_k2():
    A = Asm()
    WF = 128
    ACC = 64
    BF = 32
    A(f"""
    s_cmp_ge_u32 s2, 224
    s_cbranch_scc1 K2_END
    s_load_dwordx2 s[12:13], s[0:1], 88
    v_lshrrev_b32 v1, 6, v0
    v_and_b32 v2, 63, v0
    v_readfirstlane_b32 s14, v1            ; wave
    s_and_b32 s36, s2, 7                   ; x
    s_lshr_b32 s37, s2, 3                  ; j 0..27
    s_lshr_b32 s38, s36, 1
    s_lshl_b32 s38, s38, 2
    s_and_b32 s39, s37, 3
    s_add_u32 s38, s38, s39                ; mt
    s_and_b32 s39, s36, 1
    s_mul_i32 s39, s39, 7
    s_lshr_b32 s40, s37, 2
    s_add_u32 s39, s39, s40                ; fg
    s_lshl_b32 s40, s39, 2
    s_add_u32 s40, s40, s14                ; ft
    v_lshlrev_b32 v3, 4, v2                ; lane*16
    s_lshl_b32 s41, s40, 15
    s_add_u32 s41, s41, {W1F}
    s_lshl_b32 s42, s38, 17
    s_add_u32 s42, s42, {HT}
    s_lshl_b32 s43, s14, 12
    s_add_u32 s42, s42, s43
    s_waitcnt lgkmcnt(0)
    """)
    srd(A, 20, 12, WS_SIZE)
    def issue(p):
        A("s_mov_b32 m0, s43")
        for c in range(4): A(f"buffer_load_dwordx4 v3, s[20:23], s42 offen offset:{1024*c} lds")
        for c in range(4):
            r = WF + 4 * (4 * p + c)
            A(f"buffer_load_dwordx4 v[{r}:{r+3}], v3, s[20:23], s41 offen offset:{1024*c}")
        A("s_add_u32 s42, s42, 16384\ns_add_u32 s43, s43, 16384\ns_add_u32 s41, s41, 4096")
    for p in range(7): issue(p)
    A("""
    v_bfe_u32 v4, v2, 2, 2                 ; r
    v_and_b32 v5, 3, v2                    ; c
    v_bfe_u32 v6, v2, 4, 1                 ; sh
    v_lshrrev_b32 v7, 5, v2                ; kk
    v_lshlrev_b32 v8, 3, v7
    v_add_u32 v8, v8, v4                   ; 8kk + r
    v_lshlrev_b32 v8, 8, v8
    v_lshl_add_u32 v8, v6, 5, v8
    v_lshl_add_u32 v8, v5, 3, v8
    """)
    for j in range(4):
        A(f"""
        s_add_u32 s{44+j}, s14, {j}
        s_and_b32 s{44+j}, s{44+j}, 3
        v_xor_b32 v9, s{44+j}, v4
        v_lshl_add_u32 v{12+j}, v9, 6, v8
        """)
    for j in range(64): A(f"v_mov_b32 v{ACC+j}, 0")
    A("v_mov_b32 v16, 0\nv_mov_b32 v17, 0\nv_mov_b32 v18, 0\nv_mov_b32 v19, 0x3f803f80")
    def trreads(ks, buf):
        L = []
        off = (ks % 16) * 4096
        for j in range(4):
            b = BF + 16 * buf + 4 * j
            L.append(f"ds_read_b64_tr_b16 v[{b}:{b+1}], v{12+j} offset:{off}")
            L.append(f"ds_read_b64_tr_b16 v[{b+2}:{b+3}], v{12+j} offset:{off+1024}")
        return L
    for p in range(8):
        if p == 0:
            A("s_waitcnt vmcnt(48)\ns_barrier")
            issue(7)
        else:
            A(f"s_waitcnt vmcnt({8*(7-p)})\ns_barrier")
        if p == 4:
            for j in range(4): A(f"v_add_u32 v{12+j}, 0x10000, v{12+j}")
        for r in trreads(4 * p, 0): A(r)
        for c in range(4):
            ks = 4 * p + c; buf = c & 1
            nxt = trreads(ks + 1, buf ^ 1) if c < 3 else []
            A("s_waitcnt lgkmcnt(0)")
            w = WF + 4 * ks
            extra = []
            b0 = BF + 16 * buf
            for i in range(4):
                extra.append(f"v_dot2c_f32_bf16 v16, v{b0+i}, v19")
                extra.append(f"v_dot2c_f32_bf16 v17, v{b0+i}, v{b0+i}")
                extra.append(f"v_dot2c_f32_bf16 v18, v{w+i}, v19")
            for j in range(4):
                b = BF + 16 * buf + 4 * j; acc = ACC + 16 * j
                A(f"v_mfma_f32_32x32x16_bf16 v[{acc}:{acc+15}], v[{w}:{w+3}], v[{b}:{b+3}], v[{acc}:{acc+15}]")
                for _ in range(2):
                    if nxt: A(nxt.pop(0))
                for _ in range(3): A(extra.pop(0))
    A("""
    v_mov_b32 v20, v16
    v_mov_b32 v21, v17
    v_mov_b32 v22, v18
    v_permlane32_swap_b32 v16, v20
    v_permlane32_swap_b32 v17, v21
    v_permlane32_swap_b32 v18, v22
    v_add_f32 v16, v16, v20
    v_add_f32 v17, v17, v21
    v_add_f32 v18, v18, v22
    """)
    rowstats_finish(A, 16, 17, 20, 21, "0x3b000000")
    A(f"""
    v_rcp_f32 v21, v17
    v_sub_f32 v20, 0, v16                  ; -m
    v_mov_b32 v22, v17
    v_mul_f32 v21, 0x{0xbfb8aa3b:08x}, v21
    v_mov_b32 v23, 0
    v_and_b32 v4, 31, v2
    v_lshlrev_b32 v5, 4, v4
    s_lshl_b32 s48, s14, 9
    s_add_u32 s48, s48, {K2_STA}
    v_add_u32 v6, s48, v5
    ds_write_b128 v6, v[20:23]
    s_lshl_b32 s48, s14, 7
    s_add_u32 s48, s48, {K2_CS}
    v_lshlrev_b32 v6, 2, v4
    v_add_u32 v6, s48, v6
    ds_write_b32 v6, v18
    v_lshlrev_b32 v6, 4, v7                ; 4h*4 bytes
    v_add_u32 v6, s48, v6
    s_waitcnt lgkmcnt(0)
    s_barrier
    """)
    for g in range(4): A(f"ds_read_b128 v[{32+4*g}:{35+4*g}], v6 offset:{32*g}")
    for j in range(4):
        A(f"""
        s_lshl_b32 s48, s{44+j}, 9
        s_add_u32 s48, s48, {K2_STA}
        v_add_u32 v6, s48, v5
        ds_read_b128 v[{48+4*j}:{51+4*j}], v6
        """)
    A(f"""
    s_lshl_b32 s49, s40, 11
    s_add_u32 s49, s49, {H1F}
    s_mul_i32 s50, s38, {4*114688}
    s_add_u32 s49, s49, s50
    """)
    for j in range(4):
        A(f"s_mul_i32 s{52+j}, s{44+j}, 114688\ns_add_u32 s{52+j}, s{52+j}, s49")
    A("s_waitcnt lgkmcnt(0)")
    for j in range(4):
        S = 48 + 4 * j
        O = 128 + 8 * j
        for h in range(2):
            T = 160 + 16 * h + 32 * (j & 1)
            a0 = ACC + 16 * j + 8 * h
            for p in range(4):
                A(f"v_pk_fma_f32 v[{a0+2*p}:{a0+2*p+1}], v[{32+8*h+2*p}:{33+8*h+2*p}], v[{S}:{S+1}], v[{a0+2*p}:{a0+2*p+1}] op_sel_hi:[1,0,1]")
            for p in range(4):
                A(f"v_pk_mul_f32 v[{T+2*p}:{T+2*p+1}], v[{a0+2*p}:{a0+2*p+1}], v[{S}:{S+1}] op_sel:[0,1] op_sel_hi:[1,1]")
            for p in range(8): A(f"v_exp_f32 v{T+p}, v{T+p}")
            for p in range(4):
                A(f"v_pk_fma_f32 v[{T+2*p}:{T+2*p+1}], v[{T+2*p}:{T+2*p+1}], v[{S+2}:{S+3}], v[{S+2}:{S+3}] op_sel_hi:[1,0,0]")
            for p in range(8): A(f"v_rcp_f32 v{T+p}, v{T+p}")
            for p in range(4):
                A(f"v_pk_mul_f32 v[{T+2*p}:{T+2*p+1}], v[{T+2*p}:{T+2*p+1}], v[{a0+2*p}:{a0+2*p+1}]")
            for p in range(4):
                A(f"v_cvt_pk_bf16_f32 v{O+4*h+p}, v{T+2*p}, v{T+2*p+1}")
            A(f"buffer_store_dwordx4 v[{O+4*h}:{O+4*h+3}], v3, s[20:23], s{52+j} offen offset:{1024*h}")
    A("K2_END:\ns_endpgm")
    return A.finalize(), 256, 256

K3_RES = 49152
K3_LDS = K3_RES + 8192
def gen_k3():
    A = Asm()
    ACC = 64
    NSL = 16; AHEAD = 15
    A(f"""
    s_cmp_ge_u32 s2, 256
    s_cbranch_scc1 K3_END
    s_load_dwordx2 s[8:9], s[0:1], 72
    s_load_dwordx2 s[12:13], s[0:1], 88
    v_lshrrev_b32 v1, 6, v0
    v_and_b32 v2, 63, v0
    v_readfirstlane_b32 s14, v1
    s_and_b32 s36, s2, 7
    s_lshr_b32 s37, s2, 3
    s_lshl_b32 s38, s36, 2
    s_and_b32 s39, s37, 3
    s_add_u32 s38, s38, s39                ; sm
    s_lshr_b32 s39, s37, 2                 ; dn
    s_lshr_b32 s40, s14, 1                 ; wa
    s_and_b32 s41, s14, 1                  ; wb
    s_lshl_b32 s42, s39, 1
    s_add_u32 s42, s42, s40
    s_xor_b32 s43, s42, 1
    s_lshl_b32 s44, s38, 1
    s_add_u32 s44, s44, s41
    s_xor_b32 s45, s44, 1
    s_mul_i32 s46, s14, {28*1024}
    s_mul_i32 s48, s42, 114688
    s_mul_i32 s49, s43, 114688
    s_mul_i32 s50, s44, 114688
    s_mul_i32 s51, s45, 114688
    s_add_u32 s47, s46, {W2F}
    s_add_u32 s48, s48, s47
    s_add_u32 s49, s49, s47
    s_add_u32 s47, s46, {H1F}
    s_add_u32 s50, s50, s47
    s_add_u32 s51, s51, s47
    v_lshlrev_b32 v3, 4, v2
    s_waitcnt lgkmcnt(0)
    """)
    srd(A, 20, 12, WS_SIZE); srd(A, 24, 8, 0x200000)
    def load(ks):
        sl = (ks % NSL) * 16
        for t in range(4):
            A(f"buffer_load_dwordx4 a[{sl+4*t}:{sl+4*t+3}], v3, s[20:23], s{48+t} offen offset:{1024*(ks%4)}")
        if ks % 4 == 3:
            for t in range(4): A(f"s_add_u32 s{48+t}, s{48+t}, 4096")
    A(f"""
    v_lshrrev_b32 v4, 2, v2                ; row 0..15
    v_and_b32 v5, 3, v2                    ; piece
    v_and_b32 v6, 3, v4                    ; d&3
    s_and_b32 s52, s44, 3                  ; stl
    v_xor_b32 v6, s52, v6
    v_lshlrev_b32 v6, 6, v6
    v_lshl_add_u32 v6, v5, 4, v6
    v_lshl_add_u32 v6, v4, 8, v6
    s_lshr_b32 s53, s44, 2                 ; mt
    s_lshl_b32 s53, s53, 17
    s_lshl_b32 s54, s42, 13                ; 32dt*256
    s_add_u32 s53, s53, s54
    s_add_u32 s53, s53, {HT}
    s_add_u32 s54, s53, 4096 - 1024
    s_lshl_b32 s55, s14, 11
    s_add_u32 s55, s55, {K3_RES}
    s_mov_b32 m0, s55
    s_nop 0
    buffer_load_dwordx4 v6, s[20:23], s53 offen lds
    buffer_load_dwordx4 v6, s[20:23], s54 offen offset:1024 lds
    """)
    for ks in range(AHEAD): load(ks)
    for j in range(64): A(f"v_mov_b32 v{ACC+j}, 0")
    for ks in range(28):
        issued = min(28, ks + AHEAD)
        A(f"s_waitcnt vmcnt({4*(issued - ks - 1)})")
        sl = (ks % NSL) * 16
        for a in range(2):
            for b in range(2):
                acc = ACC + 16 * (2 * a + b)
                A(f"v_mfma_f32_32x32x16_bf16 v[{acc}:{acc+15}], a[{sl+4*a}:{sl+4*a+3}], a[{sl+8+4*b}:{sl+8+4*b+3}], v[{acc}:{acc+15}]")
        if ks + AHEAD < 28: load(ks + AHEAD)
    A(f"""
    v_bfe_u32 v4, v2, 2, 2                 ; r
    v_and_b32 v5, 3, v2                    ; c
    v_bfe_u32 v6, v2, 4, 1                 ; sh
    v_lshrrev_b32 v7, 5, v2                ; h
    v_lshlrev_b32 v8, 2, v7
    v_add_u32 v8, v8, v4
    v_lshlrev_b32 v8, 6, v8                ; (4h+r)*64
    v_lshl_add_u32 v8, v6, 5, v8
    v_lshl_add_u32 v8, v5, 3, v8
    v_add_u32 v8, s55, v8
    """)
    for g in range(4): A(f"ds_read_b64_tr_b16 v[{16+2*g}:{17+2*g}], v8 offset:{512*g}")
    for j in range(1, 4):
        A(f"""
        s_xor_b32 s56, s14, {j}
        s_mul_i32 s56, s56, 12288
        s_add_u32 s56, s56, {(j-1)*4096}
        v_add_u32 v9, s56, v3
        """)
        for g in range(4):
            a = ACC + 16 * j + 4 * g
            A(f"ds_write_b128 v9, v[{a}:{a+3}] offset:{1024*g}")
    A(f"""
    s_mul_i32 s56, s14, 12288
    v_add_u32 v9, s56, v3
    s_waitcnt lgkmcnt(0)
    s_barrier
    """)
    for j in range(3):
        for g in range(4):
            r = 80 + 16 * j + 4 * g
            A(f"ds_read_b128 v[{r}:{r+3}], v9 offset:{4096*j + 1024*g}")
    for g in range(4):
        A(f"""
        v_lshlrev_b32 v{32+4*g}, 16, v{16+2*g}
        v_and_b32 v{33+4*g}, 0xffff0000, v{16+2*g}
        v_lshlrev_b32 v{34+4*g}, 16, v{17+2*g}
        v_and_b32 v{35+4*g}, 0xffff0000, v{17+2*g}
        """)
    for p in range(8):
        A(f"v_pk_add_f32 v[{ACC+2*p}:{ACC+2*p+1}], v[{ACC+2*p}:{ACC+2*p+1}], v[{32+2*p}:{33+2*p}]")
    A(f"""
    v_and_b32 v4, 31, v2
    v_lshlrev_b32 v4, 10, v4
    v_lshl_add_u32 v4, v7, 4, v4
    s_lshl_b32 s57, s44, 15
    s_lshl_b32 s58, s42, 6
    s_add_u32 s57, s57, s58
    """)
    for j in range(3):
        A(f"s_waitcnt lgkmcnt({8 - 4*j})")
        for p in range(8):
            r = 80 + 16 * j + 2 * p
            A(f"v_pk_add_f32 v[{ACC+2*p}:{ACC+2*p+1}], v[{ACC+2*p}:{ACC+2*p+1}], v[{r}:{r+1}]")
    for p in range(8): A(f"v_cvt_pk_bf16_f32 v{48+p}, v{ACC+2*p}, v{ACC+2*p+1}")
    A("""
    v_permlane32_swap_b32 v48, v50
    v_permlane32_swap_b32 v49, v51
    v_permlane32_swap_b32 v52, v54
    v_permlane32_swap_b32 v53, v55
    buffer_store_dwordx4 v[48:51], v4, s[24:27], s57 offen
    buffer_store_dwordx4 v[52:55], v4, s[24:27], s57 offen offset:32
    K3_END:
    s_endpgm
    """)
    return A.finalize(), 128 + 256, 128

def main():
    ks = [("k0_kernel", gen_k0, 256, 0), ("k1_kernel", gen_k1, 256, K1_LDS), ("k2_kernel", gen_k2, 224, K2_LDS), ("k3_kernel", gen_k3, 256, K3_LDS)]
    out = []
    for n, g, wg, lds in ks:
        out.append(f"; @launch kernel={n} grid=({wg},1,1) block=(256,1,1) lds={lds}")
    out.append('.amdgcn_target "amdgcn-amd-amdhsa--gfx950"\n.text')
    desc = []
    for n, g, wg, lds in ks:
        body, vg, acc = g()
        out.append(header(n) + body)
        desc.append(descriptor(n, vg, acc))
    out.append('.section .rodata,"a"')
    for d in desc: out.append(".p2align 6\n" + d)
    path = sys.argv[1] if len(sys.argv) > 1 else f"cdna_kernels/{NAME}.s"
    open(path, "w").write("\n".join(out))
    print("wrote", path)

main()
```

```python
import sys, os
sys.path.insert(0, os.path.dirname(os.path.abspath(__file__)))
from asmlib import Asm

NAME = "sequential_preLN__ssm_conv_h3__dense_activation_silu__prompt"
KVR = 0x000000
XT  = 0x200000
XS  = 0x400000
FL  = 0x480000
EPOCH = FL
FG = FL + 0x4000
GL = FL + 0x10000
oINFO, oFA, oFB, oFC, oHST = 0, 128, 256, 640, 2048
HT  = 0x500000
H1F = 0xC00000
WS_SIZE = 0x1400000
env = lambda k, d: int(os.environ.get(k, d))
DIAG = env("DIAG", "0"); NOFAST = env("NOFAST", "0"); CODEPF = env("CODEPF", "0")
TIMER = "s_memrealtime" if os.environ.get("RT") else "s_memtime"
DIAGBASE = 0x1300000
POLL_LIMIT = 50000

WS, SQ, SK_, SV, SSH, SKN, SSD, SW1, SW2, SOUT = 28, 32, 36, 40, 44, 48, 52, 56, 60, 64
def R4(b): return f"s[{b}:{b+3}]"
sGL = "s3"
sWAVE, sX, sJ, sTAG, sCHL, sPAR, sCH = "s4", "s5", "s6", "s7", "s8", "s9", "s10"
sMT, sFG, sFT, sSM, sDN, sDT, sST = "s11", "s12", "s13", "s14", "s15", "s16", "s17"
sW2C, sW2W, sROT, sRES, sFAST, sINFO = "s18", "s19", "s20", "s21", "s26", "s27"

KC = 0; CHS = 16640; CPS = 4160
KV = 33280; KVS = 4608
XSL = 42496
RED = 58880
WW = 75264; R1 = 10; WWS = R1 * 2048
W3W = 131072
CSL = 131072
RES3B = 147456
LDS_TOTAL = 163840

A = Asm()
nstamp = [0]
def stamp():
    if DIAG:
        i = nstamp[0]; nstamp[0] += 1
        assert i < 31
        A(f"{TIMER} s[100:101]\ns_waitcnt lgkmcnt(0)\nv_accvgpr_write_b32 a{224+i}, s100")
def srd(d, lo, nbytes):
    A(f"s_mov_b32 s{d}, s{lo}\ns_mov_b32 s{d+1}, s{lo+1}\ns_mov_b32 s{d+2}, {hex(nbytes)}\ns_mov_b32 s{d+3}, 0x00020000")
lab = [0]
def newlab(p="L"):
    lab[0] += 1
    return f"{p}{lab[0]}"
def rowstats_pack(vsum, vsq, t0, inv_n="0x3b000000"):
    A(f"""
    v_mul_f32 v{vsum}, {inv_n}, v{vsum}
    v_mul_f32 v{vsq}, {inv_n}, v{vsq}
    v_fma_f32 v{vsq}, -v{vsum}, v{vsum}, v{vsq}
    v_max_f32 v{vsq}, 0, v{vsq}
    v_cvt_pk_bf16_f32 v{t0}, v{vsq}, v{vsq}
    v_lshlrev_b32 v{vsq}, 16, v{t0}
    v_add_f32 v{vsq}, 0x3727c5ac, v{vsq}
    v_cvt_pk_bf16_f32 v{t0}, v{vsq}, v{vsq}
    v_lshlrev_b32 v{vsq}, 16, v{t0}
    v_sqrt_f32 v{vsq}, v{vsq}
    v_cvt_pk_bf16_f32 v{t0}, v{vsum}, v{vsq}
    """)
def poll(voff, vtmp):
    L = newlab("POLL"); D = newlab("PDONE")
    A(f"""
    s_mov_b32 s96, 0
    {L}:
    buffer_load_dword v{vtmp}, v{voff}, {R4(WS)}, 0 offen sc1
    s_waitcnt vmcnt(0)
    v_cmp_ne_u32 vcc, {sTAG}, v{vtmp}
    s_cbranch_vccz {D}
    s_add_u32 s96, s96, 1
    s_cmp_lt_u32 s96, {POLL_LIMIT}
    s_cbranch_scc1 {L}
    {D}:
    """)
def flag_store(soff, vtmp, local):
    A(f"v_mov_b32 v{vtmp}, {sTAG}\ns_mov_b64 exec, 1")
    if local:
        L1 = newlab("FS"); L2 = newlab("FS")
        A(f"""
        s_cmp_eq_u32 {sFAST}, 0
        s_cbranch_scc1 {L1}
        buffer_store_dword v{vtmp}, off, {R4(WS)}, {soff}
        s_branch {L2}
        {L1}:
        buffer_store_dword v{vtmp}, off, {R4(WS)}, {soff} sc1
        {L2}:
        """)
    else:
        A(f"buffer_store_dword v{vtmp}, off, {R4(WS)}, {soff} sc1")
    A("s_mov_b64 exec, -1")
def only_wave(w):
    L = newlab("NW"); A(f"s_cmp_lg_u32 {sWAVE}, {w}\ns_cbranch_scc1 {L}"); return L
def info_load(va, vd):
    A(f"v_and_b32 v{va}, 31, v1\nv_lshlrev_b32 v{va}, 2, v{va}\nbuffer_load_dword v{vd}, v{va}, {R4(WS)}, {sGL} offen sc1")
def info_eval(vd):
    if NOFAST:
        A(f"s_mov_b32 {sFAST}, 0"); return
    A(f"v_cmp_ne_u32 vcc, {sINFO}, v{vd}\ns_cmp_eq_u64 vcc, 0\ns_cselect_b32 {sFAST}, 1, 0")
def w2_dma(m0base=None):
    L = []
    if m0base is not None: L.append(f"s_mov_b32 m0, {m0base}")
    L.append(f"buffer_load_dwordx4 v2, {R4(SW2)}, {sW2C} offen lds")
    L.append(f"s_add_u32 {sW2C}, {sW2C}, 8192\ns_add_u32 m0, m0, 1024")
    return "\n".join(L)
def w2_tr(nk, k0, b0, b1, off0=0):
    for t in range(nk):
        for a, b in ((0, b0), (1, b1)):
            r = 8 * (k0 + t) + 4 * a
            A(f"ds_read_b64_tr_b16 a[{r}:{r+1}], v{b} offset:{off0+2048*t}")
            A(f"ds_read_b64_tr_b16 a[{r+2}:{r+3}], v{b} offset:{off0+2048*t+1024}")
def pf(srd_, soff, va, vd): return f"buffer_load_dword v{vd}, v{va}, {R4(srd_)}, {soff} offen sc1"

A("K_START:\ns_cmp_ge_u32 s2, 256\ns_cbranch_scc1 K_END")
A(f"""
s_load_dwordx16 s[4:19], s[0:1], 0
s_load_dwordx8 s[20:27], s[0:1], 64
""")
stamp()
A(f"""
s_and_b32 s68, s2, 7
s_lshr_b32 s69, s2, 3
v_and_b32 v182, 15, v0
v_bfe_u32 v183, v0, 4, 2
v_bfe_u32 v184, v0, 6, 1
v_lshrrev_b32 v185, 7, v0
s_lshl_b32 s71, s69, 6
s_lshl_b32 s72, s68, 7
v_lshlrev_b32 v186, 3, v183
v_lshl_add_u32 v186, v185, 5, v186
v_add_u32 v186, s71, v186        ; row0
v_lshlrev_b32 v187, 2, v182
v_lshl_add_u32 v187, v184, 6, v187
v_add_u32 v187, s72, v187        ; ch*2
v_lshl_add_u32 v188, v186, 10, v187
v_add_u32 v189, 4096, v188
v_subrev_u32 v190, 3072, v188
v_lshlrev_b32 v191, 2, v187
s_mov_b32 s{SK_+2}, 0x200000
s_mov_b32 s{SK_+3}, 0x00020000
s_mov_b32 s{SV+2}, 0x200000
s_mov_b32 s{SV+3}, 0x00020000
s_lshl_b32 s73, s68, 6
s_lshl_b32 s74, s69, 1
s_add_u32 s73, s73, s74           ; c0 = 64x + 2j
s_lshl_b32 s75, s73, 12
v_lshlrev_b32 v3, 4, v0
v_add_u32 v3, s75, v3
v_add_u32 v4, 4096, v3
s_waitcnt lgkmcnt(0)
s_mov_b32 s{SK_}, s6
s_mov_b32 s{SK_+1}, s7
s_mov_b32 s{SV}, s8
s_mov_b32 s{SV+1}, s9
""")
for j in range(3): A(f"buffer_load_dword v{64+j}, v190, {R4(SK_)}, 0 offen offset:{1024*j}")
for j in range(4): A(f"buffer_load_dword v{67+j}, v188, {R4(SK_)}, 0 offen offset:{1024*j}")
for j in range(4): A(f"buffer_load_dword v{71+j}, v189, {R4(SK_)}, 0 offen offset:{1024*j}")
srd(SSH, 10, 4096); srd(WS, 26, WS_SIZE)
A(f"buffer_load_dwordx4 v[92:95], v191, {R4(SSH)}, 0 offen")
A(f"s_mov_b32 s76, {EPOCH}\nbuffer_load_dword v200, off, {R4(WS)}, s76")
for j in range(4): A(f"buffer_load_dword v{75+j}, v188, {R4(SV)}, 0 offen offset:{1024*j}")
for j in range(4): A(f"buffer_load_dword v{79+j}, v189, {R4(SV)}, 0 offen offset:{1024*j}")
srd(SQ, 4, 0x200000)
for j in range(4): A(f"buffer_load_dword v{83+j}, v188, {R4(SQ)}, 0 offen offset:{1024*j}")
for j in range(4): A(f"buffer_load_dword v{87+j}, v189, {R4(SQ)}, 0 offen offset:{1024*j}")
srd(SKN, 12, 0x200000)
A(f"""
buffer_load_dwordx4 v[16:19], v3, {R4(SKN)}, 0 offen
buffer_load_dwordx2 v[20:21], v3, {R4(SKN)}, 0 offen offset:16
buffer_load_dwordx4 v[28:31], v4, {R4(SKN)}, 0 offen
buffer_load_dwordx2 v[32:33], v4, {R4(SKN)}, 0 offen offset:16
v_and_b32 v1, 63, v0
v_lshrrev_b32 v2, 6, v0
v_bfe_u32 v5, v1, 2, 1
v_lshlrev_b32 v5, 12, v5
v_readfirstlane_b32 s70, v2
v_add_u32 v5, s75, v5
buffer_load_dwordx2 v[48:49], v5, {R4(SKN)}, 0 offen
s_lshl_b32 {sGL}, s68, 12
s_add_u32 {sGL}, {sGL}, {GL}
v_and_b32 v6, 7, v1
v_lshlrev_b32 v6, 7, v6
buffer_load_dword v208, v6, {R4(WS)}, {sGL} offen sc1
""")
srd(SSD, 14, 1024)
A(f"""
s_lshr_b32 s77, s70, 1
s_add_u32 s77, s77, s73
s_lshl_b32 s77, s77, 1
buffer_load_ushort v50, off, {R4(SSD)}, s77
""")
srd(SW1, 18, 512*1792*2); srd(SW2, 20, 512*1792*2); srd(SOUT, 22, 0x200000)
A(f"""
s_getreg_b32 s74, hwreg(HW_REG_XCC_ID, 0, 4)
s_mov_b32 {sWAVE}, s70
s_mov_b32 {sX}, s68
s_mov_b32 {sJ}, s69
s_lshr_b32 {sCHL}, s70, 1
s_and_b32 {sPAR}, s70, 1
s_add_u32 {sCH}, s73, {sCHL}
s_lshl_b32 {sMT}, s68, 1
s_and_b32 s76, s69, 1
s_add_u32 {sMT}, {sMT}, s76
s_lshr_b32 {sFG}, s69, 1
s_lshl_b32 {sFT}, {sFG}, 2
s_add_u32 {sFT}, {sFT}, s70
s_lshl_b32 {sSM}, s68, 2
s_and_b32 s76, s69, 3
s_add_u32 {sSM}, {sSM}, s76
s_lshr_b32 {sDN}, s69, 2
s_lshl_b32 {sDT}, {sDN}, 1
s_add_u32 {sDT}, {sDT}, {sCHL}
s_lshl_b32 {sST}, {sSM}, 1
s_add_u32 {sST}, {sST}, {sPAR}
s_mov_b32 {sFAST}, 0
s_mul_i32 {sW2C}, {sWAVE}, {448*1024}
v_lshrrev_b32 v5, 3, v1
v_and_b32 v6, 7, v1
v_bfe_u32 v7, v1, 4, 1
v_lshlrev_b32 v7, 2, v7
v_xor_b32 v6, v6, v7
v_lshlrev_b32 v2, 4, v6
v_lshl_add_u32 v2, v5, 10, v2
s_lshl_b32 s76, {sDN}, 7
v_add_u32 v2, s76, v2
v_lshlrev_b32 v195, 11, v187
v_lshlrev_b32 v196, 1, v186
v_sub_u32 v197, v195, v196
v_add_u32 v197, {KVR + 4080}, v197
v_add_u32 v198, v195, v196
v_add_u32 v198, {XT}, v198
s_mul_i32 {sW2W}, {sWAVE}, {WWS}
s_add_u32 {sW2W}, {sW2W}, {WW}
v_lshrrev_b32 v192, 3, v1
s_lshl_b32 s76, s2, 3
v_add_u32 v192, s76, v192
v_and_b32 v193, 7, v1
v_lshlrev_b32 v194, 4, v193
v_lshl_add_u32 v194, v192, 10, v194
v_bfe_u32 v5, v1, 2, 2
v_and_b32 v6, 3, v1
v_bfe_u32 v7, v1, 4, 1
v_lshrrev_b32 v8, 5, v1
v_lshlrev_b32 v9, 2, v8
v_add_u32 v9, v9, v5
v_lshlrev_b32 v9, 7, v9
v_lshl_add_u32 v9, v7, 5, v9
v_lshl_add_u32 v9, v6, 3, v9
v_lshrrev_b32 v10, 1, v5
v_xor_b32 v10, {sCHL}, v10
v_lshl_add_u32 v3, v10, 6, v9
v_xor_b32 v4, 64, v3
v_lshlrev_b32 v51, 4, v0
v_add_u32 v51, {KC + 32}, v51
v_mov_b32 v52, 0
v_mov_b32 v53, 0
v_mov_b32 v54, 0
v_mov_b32 v55, 0
v_lshrrev_b32 v5, 5, v1
v_mul_u32_u24 v5, {KVS}, v5
v_and_b32 v6, 31, v1
v_lshl_add_u32 v5, v6, 4, v5
v_add_u32 v5, {KV + 4096}, v5
ds_write_b128 v5, v[52:55]
s_mov_b32 s76, 4096
s_mov_b32 s77, 0x05040100
s_mov_b32 s78, 0x07060302
""")
stamp()
A(f"""
s_waitcnt vmcnt(23)
v_readfirstlane_b32 {sTAG}, v200
s_lshl_b32 s79, {sJ}, 2
s_add_u32 s79, s79, {sGL}
""")
stamp()
A(f"""
v_lshlrev_b32 v142, 16, v92
v_lshlrev_b32 v143, 16, v94
s_add_u32 {sTAG}, {sTAG}, 1
s_lshl_b32 {sINFO}, {sTAG}, 4
s_or_b32 {sINFO}, {sINFO}, s74
v_mov_b32 v5, {sINFO}
s_mov_b64 exec, 1
buffer_store_dword v5, off, {R4(WS)}, s79
s_mov_b64 exec, -1
v_and_b32 v144, 0xffff0000, v92
v_and_b32 v145, 0xffff0000, v94
v_lshlrev_b32 v146, 16, v93
v_lshlrev_b32 v147, 16, v95
v_and_b32 v148, 0xffff0000, v93
v_and_b32 v149, 0xffff0000, v95
""")
for r in range(11): A(f"v_lshlrev_b32 v{104+2*r}, 16, v{64+r}\nv_and_b32 v{105+2*r}, 0xffff0000, v{64+r}")
for r in range(8):
    R = 150 + 2 * r
    A(f"v_pk_mul_f32 v[{R}:{R+1}], v[{104+2*(r+3)}:{105+2*(r+3)}], v[142:143]")
for j in range(1, 4):
    for r in range(8):
        R = 150 + 2 * r; K = 104 + 2 * (r + 3 - j)
        A(f"v_pk_fma_f32 v[{R}:{R+1}], v[{K}:{K+1}], v[{142+2*j}:{143+2*j}], v[{R}:{R+1}]")
A("s_waitcnt vmcnt(16)")
for r in range(8): A(f"v_lshlrev_b32 v{126+2*r}, 16, v{75+r}\nv_and_b32 v{127+2*r}, 0xffff0000, v{75+r}")
for r in range(8):
    R = 150 + 2 * r
    A(f"v_pk_mul_f32 v[{R}:{R+1}], v[{R}:{R+1}], v[{126+2*r}:{127+2*r}]")
for i in range(4):
    A(f"v_cvt_pk_bf16_f32 v{166+i}, v{150+2*(7-2*i)}, v{150+2*(6-2*i)}")
    A(f"v_cvt_pk_bf16_f32 v{170+i}, v{151+2*(7-2*i)}, v{151+2*(6-2*i)}")
A(f"buffer_store_dwordx4 v[166:169], v197, {R4(WS)}, 0 offen sc1\nbuffer_store_dwordx4 v[170:173], v197, {R4(WS)}, s76 offen sc1")
A("s_waitcnt vmcnt(10)")
for i in range(4):
    A(f"v_perm_b32 v{174+i}, v{84+2*i}, v{83+2*i}, s77")
    A(f"v_perm_b32 v{178+i}, v{84+2*i}, v{83+2*i}, s78")
A(f"buffer_store_dwordx4 v[174:177], v198, {R4(WS)}, 0 offen sc1\nbuffer_store_dwordx4 v[178:181], v198, {R4(WS)}, s76 offen sc1")
info_load(201, 202)
L3 = newlab("T3"); L1 = newlab("T1"); L2 = newlab("T2"); LD = newlab("TD")
A(f"""
s_mul_i32 s79, s2, 7168
v_min_u32 v204, 55, v1
v_lshlrev_b32 v204, 7, v204
s_cmp_eq_u32 {sWAVE}, 3
s_cbranch_scc1 {L3}
s_cmp_eq_u32 {sWAVE}, 1
s_cbranch_scc1 {L1}
s_cmp_eq_u32 {sWAVE}, 2
s_cbranch_scc0 {LD}
""")
if CODEPF:
    A(f"""
    s_getpc_b64 s[0:1]
    CPF_HERE:
    s_mul_i32 s79, {sJ}, 896
    s_mov_b32 s80, K_END-CPF_HERE
    v_min_u32 v204, 6, v1
    v_lshlrev_b32 v204, 7, v204
    v_add_u32 v204, s79, v204
    v_min_u32 v204, s80, v204
    global_load_dword v205, v204, s[0:1] sc1
    """)
else:
    A(f"buffer_load_dword v205, v204, {R4(SW1)}, s79 offen sc1")
A(f"""
s_branch {LD}
{L1}:
buffer_load_dword v205, v204, {R4(SW2)}, s79 offen sc1
s_branch {LD}
{L3}:
""")
for j in range(8): A(f"buffer_load_dwordx4 v[{64+4*j}:{67+4*j}], v194, {R4(SQ)}, 0 offen offset:{128*j}")
A(f"{LD}:")
stamp()
def wait_role(n0):
    La = newlab("WR"); Lb = newlab("WR"); Lc = newlab("WR")
    A(f"""
    s_cmp_eq_u32 {sWAVE}, 0
    s_cbranch_scc1 {La}
    s_cmp_eq_u32 {sWAVE}, 3
    s_cbranch_scc1 {Lc}
    s_waitcnt vmcnt({n0+1})
    s_branch {Lb}
    {Lc}:
    s_waitcnt vmcnt({n0+8})
    s_branch {Lb}
    {La}:
    s_waitcnt vmcnt({n0})
    {Lb}:
    """)
wait_role(6)
for c, (D, E, O) in enumerate([(16, 24, 40), (28, 36, 56)]):
    for w in range(4): A(f"v_alignbit_b32 v{O+w}, v{D+w+1}, v{D+w}, 16")
    for w in range(4): A(f"v_alignbit_b32 v{O+4+w}, v{D+w+2}, v{D+w+1}, 16")
    for w in range(4): A(f"v_mov_b32 v{E+w}, v{D+w+1}")
    base = c * CHS
    A(f"ds_write_b128 v51, v[{O}:{O+3}] offset:{base}")
    A(f"ds_write_b128 v51, v[{O+4}:{O+7}] offset:{base + 2*CPS}")
    A(f"ds_write_b128 v51, v[{D+2}:{D+5}] offset:{base + 3*CPS}")
    A(f"ds_write_b128 v51, v[{E}:{E+3}] offset:{base + CPS}")
A(f"""
v_and_b32 v6, 3, v1
v_sub_u32 v7, 3, v6
v_lshlrev_b32 v7, 4, v7
v_lshlrev_b64 v[54:55], v7, v[48:49]
v_bfe_u32 v7, v1, 2, 1
v_mul_u32_u24 v7, {CHS}, v7
v_mul_u32_u24 v6, {CPS}, v6
v_add3_u32 v6, v6, v7, {KC}
v_mov_b32 v8, 0
v_mov_b32 v9, 0
v_mov_b32 v10, 0
v_mov_b32 v11, 0
s_mov_b64 exec, 0xff
ds_write_b128 v6, v[8:11]
ds_write_b128 v6, v[52:55] offset:16
s_mov_b64 exec, -1
v_lshlrev_b32 v15, 16, v50
""")
ACC = 64; AB = 96; BB = 160; GR = 16; MR = 48; RRa = 232; XR = 224
A(f"""
s_mul_i32 s79, {sCHL}, {KVS}
v_and_b32 v11, 15, v1
v_lshrrev_b32 v12, 4, v1
v_lshlrev_b32 v13, 4, v11
v_lshl_add_u32 v13, v12, 2, v13
s_lshl_b32 s80, {sPAR}, 10
v_add_u32 v13, s80, v13          ; s0
v_and_b32 v6, 3, v11
v_mul_u32_u24 v6, {CPS}, v6
v_lshrrev_b32 v7, 2, v11
v_lshl_add_u32 v6, v7, 3, v6
v_lshl_add_u32 v6, v12, 4, v6
s_mul_i32 s83, {sCHL}, {CHS}
s_lshl_b32 s84, {sPAR}, 6
s_add_u32 s83, s83, s84
s_add_u32 s83, s83, {KC}
v_add_u32 v6, s83, v6            ; vAfrag
v_lshlrev_b32 v7, 4, v12
v_lshlrev_b32 v8, 5, v11
v_sub_u32 v7, v7, v8
s_add_u32 s83, s79, s84
s_add_u32 s83, s83, {KV + 480}
v_add_u32 v7, s83, v7            ; vBfrag
v_lshlrev_b32 v14, 1, v13        ; s0*2
s_lshl_b32 s85, {sCH}, 12
s_add_u32 s85, s85, {XT}
s_add_u32 s80, {sGL}, {oFA}
s_lshl_b32 s81, {sJ}, 2
s_add_u32 s81, s81, s80
""")
wait_role(0)
info_eval(202)
A("s_waitcnt lgkmcnt(0)")
stamp()
A("s_barrier")
stamp()
LW0 = newlab("W0"); LJ = newlab("AJ")
A(f"""
s_cmp_eq_u32 {sWAVE}, 0
s_cbranch_scc1 {LW0}
s_cmp_lg_u32 {sWAVE}, 3
s_cbranch_scc1 {LJ}
v_mov_b32 v104, 0
v_mov_b32 v105, 0
v_mov_b32 v106, 0
v_mov_b32 v107, 0
v_mov_b32 v110, 0x3f803f80
""")
for j in range(8):
    A(f"s_waitcnt vmcnt({7-j})")
    for i in range(4):
        r = 64 + 4 * j + i
        A(f"v_dot2c_f32_bf16 v{104+2*(i&1)}, v{r}, v110\nv_dot2c_f32_bf16 v{105+2*(i&1)}, v{r}, v{r}")
A("v_add_f32 v104, v104, v106\nv_add_f32 v105, v105, v107")
for pat in ["quad_perm:[1,0,3,2]", "quad_perm:[2,3,0,1]", "row_half_mirror"]:
    A(f"v_add_f32_dpp v104, v104, v104 {pat} row_mask:0xf bank_mask:0xf")
    A(f"v_add_f32_dpp v105, v105, v105 {pat} row_mask:0xf bank_mask:0xf")
rowstats_pack(104, 105, 108)
A(f"""
v_mov_b32 v109, {sTAG}
v_lshlrev_b32 v107, 3, v192
s_mov_b32 s82, {XS}
s_mov_b32 exec_lo, 0x01010101
s_mov_b32 exec_hi, 0x01010101
buffer_store_dwordx2 v[108:109], v107, {R4(WS)}, s82 offen sc1
s_mov_b64 exec, -1
s_branch {LJ}
{LW0}:
""")
flag_store("s81", 8, True)
A(f"v_and_b32 v5, 31, v1\nv_lshlrev_b32 v5, 2, v5\nv_add_u32 v5, s80, v5")
poll(5, 8)
A(f"""
s_lshl_b32 s83, {sCH}, 12
s_add_u32 s83, s83, {KVR}
s_mov_b32 m0, {KV}
v_lshlrev_b32 v5, 4, v1
s_add_u32 s84, s83, 4096
buffer_load_dwordx4 v5, {R4(WS)}, s83 offen sc1 lds
buffer_load_dwordx4 v5, {R4(WS)}, s83 offen offset:1024 sc1 lds
buffer_load_dwordx4 v5, {R4(WS)}, s83 offen offset:2048 sc1 lds
buffer_load_dwordx4 v5, {R4(WS)}, s83 offen offset:3072 sc1 lds
s_mov_b32 m0, {KV + KVS}
s_nop 0
buffer_load_dwordx4 v5, {R4(WS)}, s84 offen sc1 lds
buffer_load_dwordx4 v5, {R4(WS)}, s84 offen offset:1024 sc1 lds
buffer_load_dwordx4 v5, {R4(WS)}, s84 offen offset:2048 sc1 lds
buffer_load_dwordx4 v5, {R4(WS)}, s84 offen offset:3072 sc1 lds
s_lshr_b32 s84, {sJ}, 3
s_mul_i32 s84, s84, {448*1024}
s_and_b32 s83, {sJ}, 7
s_mul_i32 s83, s83, 20480
s_add_u32 s84, s84, s83
v_lshlrev_b32 v5, 7, v1
{pf(SW2, "s84", 5, 252)}
s_add_u32 s84, s84, 8192
{pf(SW2, "s84", 5, 252)}
s_add_u32 s84, s84, 8192
v_and_b32 v5, 31, v1
v_lshlrev_b32 v5, 7, v5
{pf(SW2, "s84", 5, 252)}
{LJ}:
""")
stamp()
def creadsA(j, buf):
    L = []
    for U in range(8):
        a = AB + buf * 32 + 4 * U
        L.append(f"ds_read_b64 v[{a}:{a+1}], v6 offset:{512*U + 128*j}")
        L.append(f"ds_read_b64 v[{a+2}:{a+3}], v6 offset:{512*U + 128*j + 8}")
    return L
def creadsB(j, buf):
    return [f"ds_read_b128 v[{BB+buf*32+4*U}:{BB+buf*32+4*U+3}], v7 offset:{3584 - 512*U + 128*j}" for U in range(8)]
def xs_loads():
    A(f"v_lshlrev_b32 v5, 3, v13\ns_mov_b32 s87, {XS}\ns_mov_b32 s88, {XS+4096}")
    for t in range(4):
        so = "s87" if t < 2 else "s88"
        A(f"buffer_load_dwordx4 v[{GR+8*t}:{GR+8*t+3}], v5, {R4(WS)}, {so} offen offset:{2048*(t&1)} sc1")
        A(f"buffer_load_dwordx4 v[{GR+8*t+4}:{GR+8*t+7}], v5, {R4(WS)}, {so} offen offset:{2048*(t&1)+16} sc1")
def gather(first):
    return (f"s_mov_b32 m0, s86\n" if first else "") + f"buffer_load_dword v14, {R4(SQ)}, s85 offen lds\ns_add_u32 s85, s85, 65536\ns_add_u32 m0, m0, 256"
for r in creadsA(0, 0): A(r)
LW = only_wave(0)
A(f"s_waitcnt vmcnt(3)\n{LW}:\ns_barrier")
stamp()
for r in creadsB(0, 0): A(r)
pairs = [(U, W) for U in range(8) for W in range(8) if U + W <= 7]
first = set()
for j in range(4):
    buf = j & 1
    A("s_waitcnt lgkmcnt(0)")
    nxt = []
    if j < 3:
        a_, b_ = creadsA(j + 1, buf ^ 1), creadsB(j + 1, buf ^ 1)
        for U in range(8): nxt += [a_[2*U], a_[2*U+1], b_[U]]
    vm = {}
    fill = []
    if j == 0:
        A(f"""
        s_lshl_b32 s83, {sWAVE}, 12
        s_add_u32 s84, s83, {XS}
        s_add_u32 s83, s83, {XSL}
        s_mov_b32 m0, s83
        v_lshlrev_b32 v5, 4, v1
        """)
        for t in range(4): vm[1 + 2 * t] = f"buffer_load_dwordx2 v[{XR+2*t}:{XR+2*t+1}], v14, {R4(WS)}, s85 offen offset:{512*t} sc1"
        for c in range(4): vm[20 + 3 * c] = f"buffer_load_dwordx4 v5, {R4(WS)}, s84 offen offset:{1024*c} sc1 lds"
        vm[33] = f"v_and_b32 v250, 31, v1\nv_lshlrev_b32 v250, 2, v250\nbuffer_load_dword v251, v250, {R4(WS)}, {sGL} offen sc1"
    if j in (1, 2):
        for i in range(7): vm[2 + 5 * i] = w2_dma(m0base=sW2W if (j == 1 and i == 0) else None)
    if j == 3:
        for i in range(6): vm[1 + 3 * i] = w2_dma()
        A("s_waitcnt vmcnt(14)\ns_barrier")
        info_eval(251)
        A(f"v_lshlrev_b32 v5, 3, v13\nv_add_u32 v5, {XSL}, v5\ns_add_u32 s83, s79, {KV + 4088 - 1536}\nv_sub_u32 v10, s83, v14")
        for t in range(4):
            nxt.append(f"ds_read_b128 v[{GR+8*t}:{GR+8*t+3}], v5 offset:{2048*t}")
            nxt.append(f"ds_read_b128 v[{GR+8*t+4}:{GR+8*t+7}], v5 offset:{2048*t+16}")
        for t in range(4): nxt.append(f"ds_read_b64 v[{112+2*t}:{113+2*t}], v10 offset:{1536-512*t}")
    for idx, (U, W) in enumerate(pairs):
        acc = ACC + 4 * (U + W)
        a = AB + buf * 32 + 4 * U; b = BB + buf * 32 + 4 * W
        cin = f"v[{acc}:{acc+3}]" if acc in first else "0"
        first.add(acc)
        A(f"v_mfma_f32_16x16x32_bf16 v[{acc}:{acc+3}], v[{a}:{a+3}], v[{b}:{b+3}], {cin}")
        if nxt and idx >= (2 if j < 3 else 0): A(nxt.pop(0))
        if idx in vm: A(vm[idx])
        if j == 3 and idx == 17:
            Lok = newlab("XSOK"); Lre = newlab("XSRE")
            tags = [GR + 2 * i + 1 for i in range(16)]
            A(f"s_waitcnt lgkmcnt(0)\ns_mov_b32 s96, 0\n{Lre}:")
            A(f"v_min3_u32 v8, v{tags[0]}, v{tags[1]}, v{tags[2]}\nv_max3_u32 v9, v{tags[0]}, v{tags[1]}, v{tags[2]}")
            for i in range(3, 15, 2):
                A(f"v_min3_u32 v8, v8, v{tags[i]}, v{tags[i+1]}\nv_max3_u32 v9, v9, v{tags[i]}, v{tags[i+1]}")
            A(f"""
            v_min_u32 v8, v8, v{tags[15]}
            v_max_u32 v9, v9, v{tags[15]}
            v_xor_b32 v8, {sTAG}, v8
            v_xor_b32 v9, {sTAG}, v9
            v_or_b32 v8, v8, v9
            v_cmp_ne_u32 vcc, 0, v8
            s_cbranch_vccz {Lok}
            s_add_u32 s96, s96, 1
            s_cmp_ge_u32 s96, {POLL_LIMIT}
            s_cbranch_scc1 {Lok}
            """)
            xs_loads()
            A(f"s_waitcnt vmcnt(0)\ns_branch {Lre}\n{Lok}:")
            for i in range(16):
                fill.append(f"v_and_b32 v{RRa+i}, 0xffff0000, v{GR+2*i}")
                fill.append(f"v_lshlrev_b32 v{MR+i}, 16, v{GR+2*i}")
                fill.append(f"v_rcp_f32 v{RRa+i}, v{RRa+i}")
        for _ in range(3):
            if fill: A(fill.pop(0))
    assert not nxt and not fill, (j, len(nxt), len(fill))
    if j < 3: stamp()
stamp()
A(f"""
v_lshlrev_b32 v8, 4, v1
s_lshl_b32 s83, {sWAVE}, 12
s_add_u32 s83, s83, {RED}
v_add_u32 v9, s83, v8
s_xor_b32 s84, {sWAVE}, 1
s_lshl_b32 s84, s84, 12
s_add_u32 s84, s84, {RED}
v_add_u32 v8, s84, v8
s_cmp_eq_u32 {sPAR}, 0
s_cbranch_scc1 C_P0
""")
for j in range(4): A(f"ds_write_b128 v9, v[{ACC+4*j}:{ACC+4*j+3}] offset:{1024*j}")
A("s_nop 1")
for j in range(8): A(f"v_mov_b64 v[{ACC+2*j}:{ACC+2*j+1}], v[{ACC+16+2*j}:{ACC+16+2*j+1}]")
A("s_branch C_PJ\nC_P0:\ns_nop 7")
for j in range(4): A(f"ds_write_b128 v9, v[{ACC+16+4*j}:{ACC+16+4*j+3}] offset:{1024*j}")
A("C_PJ:")
PR = 160; T = 120; OUTR = 128; Q = 136; XF = 176
A(f"""
s_and_b32 s83, {sCH}, 3
s_lshl_b32 s83, s83, 1
v_and_b32 v5, 7, v11
v_xor_b32 v5, s83, v5
v_lshlrev_b32 v5, 5, v5
v_lshl_add_u32 v5, v12, 3, v5
v_lshrrev_b32 v9, 3, v11
v_lshl_add_u32 v5, v9, 17, v5
s_lshl_b32 s83, {sCH}, 8
s_lshl_b32 s84, {sPAR}, 20
s_add_u32 s83, s83, s84
s_add_u32 s83, s83, {HT}
v_add_u32 v5, s83, v5
s_mov_b32 s88, 0
s_mov_b32 s89, {2*131072}
s_mov_b32 s90, {4*131072}
s_mov_b32 s91, {6*131072}
s_waitcnt lgkmcnt(0)
s_barrier
""")
for j in range(4): A(f"ds_read_b128 v[{PR+4*j}:{PR+4*j+3}], v8 offset:{1024*j}")
for j in range(4):
    acc = ACC + 4 * j; kv = 112 + 2 * j; x = XR + 2 * j; m = MR + 4 * j; rs = RRa + 4 * j; X = XF + 4 * j; q = Q + 4 * j
    A(f"""
    v_and_b32 v{T}, 0xffff0000, v{kv+1}
    v_lshlrev_b32 v{T+1}, 16, v{kv+1}
    v_and_b32 v{T+2}, 0xffff0000, v{kv}
    v_lshlrev_b32 v{T+3}, 16, v{kv}
    v_lshlrev_b32 v{X}, 16, v{x}
    v_and_b32 v{X+1}, 0xffff0000, v{x}
    v_lshlrev_b32 v{X+2}, 16, v{x+1}
    v_and_b32 v{X+3}, 0xffff0000, v{x+1}
    v_pk_fma_f32 v[{acc}:{acc+1}], v[{T}:{T+1}], v[14:15], v[{acc}:{acc+1}] op_sel:[0,1,0] op_sel_hi:[1,1,1]
    v_pk_fma_f32 v[{acc+2}:{acc+3}], v[{T+2}:{T+3}], v[14:15], v[{acc+2}:{acc+3}] op_sel:[0,1,0] op_sel_hi:[1,1,1]
    v_pk_add_f32 v[{q}:{q+1}], v[{X}:{X+1}], v[{m}:{m+1}] neg_lo:[0,1] neg_hi:[0,1]
    v_pk_add_f32 v[{q+2}:{q+3}], v[{X+2}:{X+3}], v[{m+2}:{m+3}] neg_lo:[0,1] neg_hi:[0,1]
    v_pk_mul_f32 v[{q}:{q+1}], v[{q}:{q+1}], v[{rs}:{rs+1}]
    v_pk_mul_f32 v[{q+2}:{q+3}], v[{q+2}:{q+3}], v[{rs+2}:{rs+3}]
    """)
stamp()
for j in range(4):
    acc = ACC + 4 * j; P = PR + 4 * j; X = XF + 4 * j; q = Q + 4 * j
    A(f"""
    s_waitcnt lgkmcnt({3-j})
    v_pk_add_f32 v[{acc}:{acc+1}], v[{acc}:{acc+1}], v[{P}:{P+1}]
    v_pk_add_f32 v[{acc+2}:{acc+3}], v[{acc+2}:{acc+3}], v[{P+2}:{P+3}]
    v_pk_fma_f32 v[{q}:{q+1}], v[{q}:{q+1}], v[{acc}:{acc+1}], v[{X}:{X+1}]
    v_pk_fma_f32 v[{q+2}:{q+3}], v[{q+2}:{q+3}], v[{acc+2}:{acc+3}], v[{X+2}:{X+3}]
    v_cvt_pk_bf16_f32 v{OUTR+2*j}, v{q}, v{q+1}
    v_cvt_pk_bf16_f32 v{OUTR+2*j+1}, v{q+2}, v{q+3}
    buffer_store_dwordx2 v[{OUTR+2*j}:{OUTR+2*j+1}], v5, {R4(WS)}, s{88+j} offen sc1
    """)
stamp()
A(f"v_add_u32 v12, {sW2W}, v3\nv_add_u32 v13, {sW2W}, v4\ns_waitcnt vmcnt(4)")
w2_tr(R1, 0, 12, 13)
A(f"""
s_add_u32 s76, {sGL}, {oFB}
s_lshl_b32 s77, {sJ}, 2
s_add_u32 s77, s77, s76
s_lshl_b32 s78, {sWAVE}, 13
s_add_u32 s78, s78, {W3W}
v_add_u32 v12, s78, v3
v_add_u32 v13, s78, v4
v_lshrrev_b32 v5, 2, v1
v_mul_u32_u24 v5, 3584, v5
v_and_b32 v6, 3, v1
v_lshl_add_u32 v5, v6, 4, v5
s_lshl_b32 s79, {sFT}, 6
v_add_u32 v5, s79, v5
s_and_b32 {sROT}, {sFG}, 7
s_lshl_b32 s79, {sROT}, 2
s_lshl_b32 s80, {sWAVE}, 15
v_bfe_u32 v14, v1, 2, 2
v_bfe_u32 v7, v1, 4, 1
v_lshrrev_b32 v8, 5, v1
v_lshlrev_b32 v9, 3, v8
v_add_u32 v9, v9, v14
v_lshlrev_b32 v9, 6, v9
v_lshl_add_u32 v9, v7, 5, v9
v_lshl_add_u32 v9, v6, 3, v9
v_add_u32 v9, s80, v9
v_add_u32 v14, s80, v3
v_add_u32 v15, s80, v4
v_mov_b32 v10, 0
v_mov_b32 v11, 0x3f803f80
v_mov_b32 v20, 0
v_mov_b32 v21, 0
v_mov_b32 v22, 0
s_waitcnt vmcnt(0) lgkmcnt(0)
s_barrier
""")
stamp()
L = only_wave(0)
flag_store("s77", 6, True)
A(f"{L}:\ns_cmp_ge_u32 {sFG}, 14\ns_cbranch_scc1 B_STATS\ns_mov_b32 m0, s80")
WF = 128
for i in range(32):
    A(f"""
    s_mul_i32 s81, s79, 57344
    buffer_load_dwordx4 v5, {R4(SW1)}, s81 offen lds
    s_add_u32 s79, s79, 1
    s_and_b32 s79, s79, 31
    s_add_u32 m0, m0, 1024
    """)
for i in range(8): A(w2_dma(m0base="s78" if i == 0 else None))
def dots(lo, hi):
    for i in range(lo, hi): A(f"v_dot2c_f32_bf16 v{[10,20,21,22][i%4]}, v{WF+i}, v11")
for q in range(4):
    A(f"s_waitcnt vmcnt({32 - 8*q})")
    for i in range(8 * q, 8 * q + 8):
        r = WF + 4 * i
        A(f"ds_read_b64_tr_b16 v[{r}:{r+1}], v9 offset:{1024*i}")
        A(f"ds_read_b64_tr_b16 v[{r+2}:{r+3}], v9 offset:{1024*i+256}")
    if q > 0:
        A("s_waitcnt lgkmcnt(15)")
        dots(32 * (q - 1), 32 * q)
A("s_waitcnt vmcnt(0)")
w2_tr(4, R1, 12, 13)
A("s_waitcnt lgkmcnt(15)")
dots(96, 128)
A(f"""
v_add_f32 v10, v10, v20
v_add_f32 v21, v21, v22
v_add_f32 v10, v10, v21
v_mov_b32 v20, v10
s_nop 1
v_permlane32_swap_b32 v10, v20
v_add_f32 v10, v10, v20
s_branch B_JOIN
B_STATS:
""")
L = only_wave(1)
A(f"""
s_cmp_lg_u32 {sJ}, 31
s_cbranch_scc1 {L}
v_and_b32 v5, 31, v1
v_lshlrev_b32 v5, 2, v5
v_add_u32 v5, s76, v5
""")
poll(5, 6)
A(f"""
v_lshlrev_b32 v5, 7, v1
s_lshl_b32 s79, {sX}, 2
s_add_u32 s79, s79, {FG}
v_mov_b32 v6, {sTAG}
buffer_store_dword v6, v5, {R4(WS)}, s79 offen sc1
{L}:
B_JOIN:
""")
stamp()
L = only_wave(0)
A(f"""
v_and_b32 v5, 7, v1
v_lshlrev_b32 v5, 2, v5
s_and_b32 s79, s2, 63
s_lshl_b32 s79, s79, 7
s_add_u32 s79, s79, {FG}
v_add_u32 v5, s79, v5
""")
poll(5, 6)
A(f"s_cmp_lg_u32 s2, 255\ns_cbranch_scc1 {L}\ns_mov_b32 s79, {EPOCH}")
flag_store("s79", 6, False)
A(f"{L}:\ns_waitcnt lgkmcnt(0)\ns_barrier")
stamp()
A(f"s_cmp_ge_u32 {sFG}, 14\ns_cbranch_scc1 P2_STATS")
def pf_late(va, vd):
    A(f"""
    v_min_u32 v{va}, 55, v1
    v_lshlrev_b32 v{va}, 7, v{va}
    s_lshr_b32 s88, {sJ}, 3
    s_mul_i32 s88, s88, {448*1024}
    s_and_b32 s89, {sJ}, 7
    s_mul_i32 s89, s89, 28672
    s_add_u32 s88, s88, s89
    s_mul_i32 s89, {sWAVE}, 7168
    s_add_u32 s88, s88, s89
    s_add_u32 s88, s88, {224*1024}
    {pf(SW2, "s88", va, vd)}
    """)
ACC2 = 64; BF = 16
A(f"""
v_lshlrev_b32 v9, 4, v1
s_lshl_b32 s76, {sMT}, 17
s_add_u32 s76, s76, {HT}
s_lshl_b32 s77, {sWAVE}, 12
s_add_u32 s76, s76, s77
s_mov_b32 s80, {sROT}
""")
def issue2():
    A(f"""
    s_lshl_b32 s79, s80, 14
    s_add_u32 s79, s79, s76
    s_mov_b32 m0, s77
    s_add_u32 s80, s80, 1
    s_and_b32 s80, s80, 7
    s_add_u32 s77, s77, 16384
    """)
    return [f"buffer_load_dwordx4 v9, {R4(WS)}, s79 offen offset:{1024*c} sc1 lds" for c in range(4)]
PRE = 4
for p in range(PRE):
    for l in issue2(): A(l)
A("""
v_bfe_u32 v12, v1, 2, 2
v_and_b32 v13, 3, v1
v_bfe_u32 v14, v1, 4, 1
v_lshrrev_b32 v15, 5, v1
v_lshlrev_b32 v11, 3, v15
v_add_u32 v11, v11, v12
v_lshlrev_b32 v11, 8, v11
v_lshl_add_u32 v11, v14, 5, v11
v_lshl_add_u32 v11, v13, 3, v11
""")
for j in range(4): A(f"v_xor_b32 v13, {j}, v12\nv_lshl_add_u32 v{5+j}, v13, 6, v11")
A(f"""
v_and_b32 v12, 31, v1
v_lshlrev_b32 v11, 3, v12
s_and_b32 s81, {sMT}, 1
s_lshl_b32 s81, s81, 10
s_add_u32 s81, s81, {sGL}
s_add_u32 s81, s81, {oHST}
v_lshlrev_b32 v12, 2, v12
v_add_u32 v12, s78, v12
ds_write_b32 v12, v10
v_lshlrev_b32 v0, 4, v15
v_add_u32 v0, s78, v0
""")
def trreads(ks):
    L = []; buf = ks % 3
    off = (ks % 16) * 4096
    for j in range(4):
        b = BF + 16 * buf + 4 * j
        L.append(f"ds_read_b64_tr_b16 v[{b}:{b+1}], v{5+j} offset:{off}")
        L.append(f"ds_read_b64_tr_b16 v[{b+2}:{b+3}], v{5+j} offset:{off+1024}")
    return L
HS = 128
def hs_loads():
    for j in range(4): A(f"buffer_load_dwordx2 v[{HS+2*j}:{HS+2*j+1}], v11, {R4(WS)}, s81 offen offset:{256*j} sc1")
A(f"s_waitcnt vmcnt({4*(PRE-1)}) lgkmcnt(0)\ns_barrier")
stamp()
for r in trreads(0) + trreads(1): A(r)
issued = PRE; young = 0
for ks in range(32):
    p, c = divmod(ks, 4)
    A(f"s_waitcnt lgkmcnt({8 if ks < 31 else 0})")
    fill = []
    if c == 0 and issued < 8:
        fill += issue2(); issued += 1
    if c == 2 and p < 7:
        A(f"s_waitcnt vmcnt({4*(issued - (p+2)) + young})\ns_barrier")
    if ks == 14:
        for j in range(4): A(f"v_add_u32 v{5+j}, 0x10000, v{5+j}")
    nxt = trreads(ks + 2) if ks < 30 else []
    if ks == 13: pf_late(12, 13); young += 1
    if ks == 27: hs_loads()
    w = WF + 4 * ks
    for j in range(4):
        b = BF + 16 * (ks % 3) + 4 * j; acc = ACC2 + 16 * j
        cin = "0" if ks == 0 else f"v[{acc}:{acc+15}]"
        A(f"v_mfma_f32_32x32x16_bf16 v[{acc}:{acc+15}], v[{w}:{w+3}], v[{b}:{b+3}], {cin}")
        for _ in range(3 if j < 2 else 2 if j == 2 else 0):
            if nxt: A(nxt.pop(0))
        if fill: A(fill.pop(0))
stamp()
A("s_barrier")
for g in range(4): A(f"ds_read_b128 v[{32+4*g}:{35+4*g}], v0 offset:{32*g}")
Lok = newlab("HSOK"); Lre = newlab("HSRE")
A(f"""
s_lshl_b32 s83, {sFT}, 11
s_add_u32 s83, s83, {H1F}
s_mul_i32 s84, {sMT}, {4*114688}
s_add_u32 s83, s83, s84
s_add_u32 s84, s83, 114688
s_add_u32 s85, s83, {2*114688}
s_add_u32 s86, s83, {3*114688}
s_lshl_b32 s87, {sWAVE}, 15
s_mov_b32 s96, 0
{Lre}:
s_waitcnt vmcnt(0)
v_xor_b32 v12, {sTAG}, v{HS+1}
v_xor_b32 v13, {sTAG}, v{HS+3}
v_xor_b32 v14, {sTAG}, v{HS+5}
v_xor_b32 v15, {sTAG}, v{HS+7}
v_or3_b32 v12, v12, v13, v14
v_or_b32 v12, v12, v15
v_cmp_ne_u32 vcc, 0, v12
s_cbranch_vccz {Lok}
s_add_u32 s96, s96, 1
s_cmp_ge_u32 s96, {POLL_LIMIT}
s_cbranch_scc1 {Lok}
""")
hs_loads()
A(f"s_branch {Lre}\n{Lok}:")
for j in range(4):
    S = 48 + 4 * j
    A(f"""
    v_and_b32 v{S+2}, 0xffff0000, v{HS+2*j}
    v_lshlrev_b32 v{S}, 16, v{HS+2*j}
    v_rcp_f32 v{S+1}, v{S+2}
    v_xor_b32 v{S}, 0x80000000, v{S}
    v_mul_f32 v{S+1}, 0xbfb8aa3b, v{S+1}
    """)
A("s_waitcnt lgkmcnt(0)")
stamp()
for j in range(4):
    S = 48 + 4 * j; O = 136 + 8 * j
    for h in range(2):
        Tt = 168 + 16 * h + 32 * (j & 1)
        a0 = ACC2 + 16 * j + 8 * h
        for p in range(4):
            A(f"v_pk_fma_f32 v[{a0+2*p}:{a0+2*p+1}], v[{32+8*h+2*p}:{33+8*h+2*p}], v[{S}:{S+1}], v[{a0+2*p}:{a0+2*p+1}] op_sel_hi:[1,0,1]")
        for p in range(4):
            A(f"v_pk_mul_f32 v[{Tt+2*p}:{Tt+2*p+1}], v[{a0+2*p}:{a0+2*p+1}], v[{S}:{S+1}] op_sel:[0,1] op_sel_hi:[1,1]")
        for q3 in range(2): A(w2_dma(m0base="s87" if (j == 0 and h == 0 and q3 == 0) else None))
        for p in range(8): A(f"v_exp_f32 v{Tt+p}, v{Tt+p}")
        for p in range(4):
            A(f"v_pk_fma_f32 v[{Tt+2*p}:{Tt+2*p+1}], v[{Tt+2*p}:{Tt+2*p+1}], v[{S+2}:{S+3}], v[{S+2}:{S+3}] op_sel_hi:[1,0,0]")
        for q3 in range(2 if (j, h) < (3, 0) else 0): A(w2_dma())
        for p in range(8): A(f"v_rcp_f32 v{Tt+p}, v{Tt+p}")
        for p in range(4):
            A(f"v_pk_mul_f32 v[{Tt+2*p}:{Tt+2*p+1}], v[{Tt+2*p}:{Tt+2*p+1}], v[{a0+2*p}:{a0+2*p+1}]")
        for p in range(4):
            A(f"v_cvt_pk_bf16_f32 v{O+4*h+p}, v{Tt+2*p}, v{Tt+2*p+1}")
        A(f"buffer_store_dwordx4 v[{O+4*h}:{O+4*h+3}], v9, {R4(WS)}, s{83+j} offen offset:{1024*h} sc1")
stamp()
A(f"""
s_and_b32 s76, {sMT}, 1
s_lshl_b32 s76, s76, 7
s_add_u32 s76, s76, {sGL}
s_add_u32 s76, s76, {oFC}
s_lshl_b32 s77, {sFG}, 2
s_add_u32 s77, s77, s76
v_add_u32 v12, s87, v3
v_add_u32 v13, s87, v4
s_waitcnt vmcnt(0)
s_barrier
""")
L = only_wave(0)
flag_store("s77", 6, True)
A(f"{L}:")
w2_tr(14, 14, 12, 13)
A("s_branch P3_START")
A("P2_STATS:")
nstamp[0] = 17
A(f"""
s_sub_u32 s76, {sFG}, 14
v_and_b32 v5, 7, v0
v_lshrrev_b32 v6, 3, v0
v_lshrrev_b32 v7, 2, v5
s_lshl_b32 s77, s76, 1
v_add_u32 v7, s77, v7
v_and_b32 v8, 3, v6
v_xor_b32 v7, v7, v8
v_lshlrev_b32 v7, 6, v7
v_and_b32 v8, 3, v5
v_lshl_add_u32 v7, v8, 4, v7
v_lshl_add_u32 v7, v6, 8, v7
s_lshl_b32 s79, {sMT}, 17
s_add_u32 s79, s79, {HT}
""")
for it in range(16):
    A(f"buffer_load_dwordx4 v[{64+4*it}:{67+4*it}], v7, {R4(WS)}, s79 offen sc1\ns_add_u32 s79, s79, 8192")
for i in range(16): A(f"v_mov_b32 v{32+i}, 0")
for it in range(16):
    A(f"s_waitcnt vmcnt({15-it})")
    for d in range(4):
        r = 64 + 4 * it + d; t = 20 + 2 * (d & 1)
        A(f"""
        v_lshlrev_b32 v{t}, 16, v{r}
        v_and_b32 v{t+1}, 0xffff0000, v{r}
        v_pk_add_f32 v[{32+2*d}:{33+2*d}], v[{32+2*d}:{33+2*d}], v[{t}:{t+1}]
        v_pk_fma_f32 v[{40+2*d}:{41+2*d}], v[{t}:{t+1}], v[{t}:{t+1}], v[{40+2*d}:{41+2*d}]
        """)
stamp()
for i in range(16): A(f"v_add_f32_dpp v{32+i}, v{32+i}, v{32+i} row_ror:8 row_mask:0xf bank_mask:0xf")
for i in range(16): A(f"v_mov_b32 v{48+i}, v{32+i}")
for i in range(16): A(f"v_permlane16_swap_b32 v{32+i}, v{48+i}")
for i in range(16): A(f"v_add_f32 v{32+i}, v{32+i}, v{48+i}")
for i in range(16): A(f"v_mov_b32 v{48+i}, v{32+i}")
for i in range(16): A(f"v_permlane32_swap_b32 v{32+i}, v{48+i}")
for i in range(16): A(f"v_add_f32 v{32+i}, v{32+i}, v{48+i}")
SRED = 155648
A(f"""
v_lshlrev_b32 v8, 6, v5
s_lshl_b32 s79, {sWAVE}, 9
s_add_u32 s79, s79, {SRED}
v_add_u32 v8, s79, v8
s_mov_b64 exec, 0xff
ds_write_b128 v8, v[32:35]
ds_write_b128 v8, v[36:39] offset:16
ds_write_b128 v8, v[40:43] offset:32
ds_write_b128 v8, v[44:47] offset:48
s_mov_b64 exec, -1
s_waitcnt lgkmcnt(0)
s_barrier
""")
L = only_wave(0)
A(f"""
v_lshrrev_b32 v8, 3, v1
v_lshlrev_b32 v8, 6, v8
v_and_b32 v9, 7, v1
v_lshl_add_u32 v8, v9, 2, v8
v_add_u32 v8, {SRED}, v8
""")
for w in range(4): A(f"ds_read_b32 v{20+w}, v8 offset:{512*w}\nds_read_b32 v{24+w}, v8 offset:{512*w+32}")
A("""
s_waitcnt lgkmcnt(0)
v_add_f32 v20, v20, v21
v_add_f32 v22, v22, v23
v_add_f32 v24, v24, v25
v_add_f32 v26, v26, v27
v_add_f32 v20, v20, v22
v_add_f32 v24, v24, v26
""")
rowstats_pack(20, 24, 28)
A(f"""
v_mov_b32 v29, {sTAG}
v_lshlrev_b32 v8, 3, v1
s_and_b32 s79, {sMT}, 1
s_lshl_b32 s79, s79, 10
s_lshl_b32 s80, s76, 9
s_add_u32 s79, s79, s80
s_add_u32 s79, s79, {sGL}
s_add_u32 s79, s79, {oHST}
buffer_store_dwordx2 v[28:29], v8, {R4(WS)}, s79 offen sc1
{L}:
""")
stamp()
pf_late(20, 21)
A(f"s_lshl_b32 s87, {sWAVE}, 15\nv_add_u32 v12, s87, v3\nv_add_u32 v13, s87, v4")
for i in range(32): A(w2_dma(m0base="s87" if i == 0 else None))
A("s_waitcnt vmcnt(0)")
w2_tr(16, R1, 12, 13)
A("s_waitcnt lgkmcnt(0)")
for i in range(4): A(w2_dma(m0base="s87" if i == 0 else None))
A("s_waitcnt vmcnt(0)")
w2_tr(2, R1 + 16, 12, 13)
A("P3_START:")
nstamp[0] = 21
stamp()
ACC3 = 64; HB = 128; NS3 = 12; AH3 = env("AH3", "8")
A(f"""
v_lshlrev_b32 v17, 4, v1
v_lshrrev_b32 v5, 2, v1
v_and_b32 v6, 3, v1
v_and_b32 v7, 3, v5
s_and_b32 s76, {sST}, 3
v_xor_b32 v7, s76, v7
v_lshlrev_b32 v7, 6, v7
v_lshl_add_u32 v7, v6, 4, v7
v_lshl_add_u32 v7, v5, 8, v7
s_lshr_b32 s77, {sST}, 2
s_lshl_b32 s78, s77, 17
s_lshl_b32 s79, {sDT}, 13
s_add_u32 s78, s78, s79
s_add_u32 s78, s78, {HT}
s_add_u32 s79, s78, 3072
s_lshl_b32 {sRES}, {sWAVE}, 11
s_add_u32 {sRES}, {sRES}, {RES3B}
s_mov_b32 m0, {sRES}
s_nop 0
buffer_load_dwordx4 v7, {R4(WS)}, s78 offen sc1 lds
buffer_load_dwordx4 v7, {R4(WS)}, s79 offen offset:1024 sc1 lds
s_mul_i32 s80, {sWAVE}, {28*1024}
s_add_u32 s80, s80, {H1F}
s_mul_i32 s81, {sST}, 114688
s_add_u32 s81, s81, s80
s_xor_b32 s82, {sST}, 1
s_mul_i32 s82, s82, 114688
s_add_u32 s82, s82, s80
v_min_u32 v5, 13, v1
v_lshlrev_b32 v5, 2, v5
s_and_b32 s77, s77, 1
s_lshl_b32 s77, s77, 7
s_add_u32 s77, s77, {sGL}
s_add_u32 s77, s77, {oFC}
v_add_u32 v5, s77, v5
""")
L = only_wave(0)
poll(5, 6)
A(f"{L}:\ns_waitcnt lgkmcnt(0)\ns_barrier")
stamp()
def load3(ks):
    sl = HB + (ks % NS3) * 8
    A(f"buffer_load_dwordx4 v[{sl}:{sl+3}], v17, {R4(WS)}, s81 offen offset:{1024*(ks%4)} sc1")
    A(f"buffer_load_dwordx4 v[{sl+4}:{sl+7}], v17, {R4(WS)}, s82 offen offset:{1024*(ks%4)} sc1")
    if ks % 4 == 3: A("s_add_u32 s81, s81, 4096\ns_add_u32 s82, s82, 4096")
for ks in range(AH3): load3(ks)
A(f"""
v_bfe_u32 v5, v1, 2, 2
v_and_b32 v6, 3, v1
v_bfe_u32 v7, v1, 4, 1
v_lshrrev_b32 v8, 5, v1
v_lshlrev_b32 v9, 2, v8
v_add_u32 v9, v9, v5
v_lshlrev_b32 v9, 6, v9
v_lshl_add_u32 v9, v7, 5, v9
v_lshl_add_u32 v9, v6, 3, v9
v_add_u32 v9, {sRES}, v9
v_and_b32 v5, 31, v1
v_lshlrev_b32 v5, 10, v5
v_lshl_add_u32 v5, v8, 4, v5
s_lshl_b32 s77, {sST}, 15
s_lshl_b32 s78, {sDT}, 6
s_add_u32 s77, s77, s78
s_mul_i32 s76, {sWAVE}, 12288
v_add_u32 v10, s76, v17
""")
for j in range(1, 4):
    A(f"s_xor_b32 s76, {sWAVE}, {j}\ns_mul_i32 s76, s76, 12288\ns_add_u32 s76, s76, {(j-1)*4096}\nv_add_u32 v{10+j}, s76, v17")
for ks in range(28):
    iss = min(28, ks + AH3)
    A(f"s_waitcnt vmcnt({2*(iss - ks - 1)})")
    if ks == 0: stamp()
    if ks == 1:
        for g in range(4): A(f"ds_read_b64_tr_b16 v[{20+2*g}:{21+2*g}], v9 offset:{512*g}")
    if ks == 3:
        A("s_waitcnt lgkmcnt(0)")
        for g in range(4):
            A(f"""
            v_lshlrev_b32 v{32+4*g}, 16, v{20+2*g}
            v_and_b32 v{33+4*g}, 0xffff0000, v{20+2*g}
            v_lshlrev_b32 v{34+4*g}, 16, v{21+2*g}
            v_and_b32 v{35+4*g}, 0xffff0000, v{21+2*g}
            """)
    sl = HB + (ks % NS3) * 8
    order = [(0, 0), (0, 1), (1, 0), (1, 1)] if ks < 27 else [(1, 1), (1, 0), (0, 1), (0, 0)]
    for n_, (a, b) in enumerate(order):
        acc = ACC3 + 16 * (2 * a + b)
        cin = "0" if ks == 0 else f"v[{acc}:{acc+15}]"
        A(f"v_mfma_f32_32x32x16_bf16 v[{acc}:{acc+15}], a[{8*ks+4*a}:{8*ks+4*a+3}], v[{sl+4*b}:{sl+4*b+3}], {cin}")
        if n_ == 1 and ks + AH3 < 28: load3(ks + AH3)
stamp()
for j in (3, 2, 1):
    for g in range(4):
        a = ACC3 + 16 * j + 4 * g
        A(f"ds_write_b128 v{10+j}, v[{a}:{a+3}] offset:{1024*g}")
for p in range(8): A(f"v_pk_add_f32 v[{ACC3+2*p}:{ACC3+2*p+1}], v[{ACC3+2*p}:{ACC3+2*p+1}], v[{32+2*p}:{33+2*p}]")
A("s_waitcnt lgkmcnt(0)\ns_barrier")
for j in range(3):
    for g in range(4):
        r = 80 + 16 * j + 4 * g
        A(f"ds_read_b128 v[{r}:{r+3}], v10 offset:{4096*j + 1024*g}")
for j in range(3):
    A(f"s_waitcnt lgkmcnt({8 - 4*j})")
    for p in range(8):
        r = 80 + 16 * j + 2 * p
        A(f"v_pk_add_f32 v[{ACC3+2*p}:{ACC3+2*p+1}], v[{ACC3+2*p}:{ACC3+2*p+1}], v[{r}:{r+1}]")
for p in range(8): A(f"v_cvt_pk_bf16_f32 v{48+p}, v{ACC3+2*p}, v{ACC3+2*p+1}")
A(f"""
v_permlane32_swap_b32 v48, v50
v_permlane32_swap_b32 v49, v51
v_permlane32_swap_b32 v52, v54
v_permlane32_swap_b32 v53, v55
buffer_store_dwordx4 v[48:51], v5, {R4(SOUT)}, s77 offen
buffer_store_dwordx4 v[52:55], v5, {R4(SOUT)}, s77 offen offset:32
""")
if DIAG:
    stamp()
    A("s_waitcnt vmcnt(0)")
    stamp()
    A(f"v_accvgpr_write_b32 a{224+nstamp[0]}, {sFAST}"); nstamp[0] += 1
    A(f"s_lshl_b32 s76, s2, 2\ns_add_u32 s76, s76, {sWAVE}\ns_lshl_b32 s76, s76, 7\ns_add_u32 s76, s76, {DIAGBASE}")
    for i in range(nstamp[0]):
        A(f"v_accvgpr_read_b32 v2, a{224+i}\nbuffer_store_dword v2, off, {R4(WS)}, s76 offset:{4*i}")
A("K_END:\ns_endpgm")

kn = NAME + "_kernel"
body = A.finalize()
out = [f"; {NAME}: persistent single launch (generated by gen/gen4.py)",
       "; phases: kv^T + LN(x) stats -> Toeplitz-MFMA long conv + gate + residual -> LN(h)@W1 + SiLU -> @W2 + residual; tagged flag hand-offs in d_ws",
       f"; @launch grid=(256,1,1) block=(256,1,1) lds={LDS_TOTAL}",
       '.amdgcn_target "amdgcn-amd-amdhsa--gfx950"', ".text",
       f".globl {kn}\n.p2align 8\n.type {kn},@function\n{kn}:",
       body,
       ".fill 256, 4, 0xbf800000",
       '.section .rodata,"a"\n.p2align 6',
       f".amdhsa_kernel {kn}\n  .amdhsa_next_free_vgpr 512\n  .amdhsa_next_free_sgpr 102\n  .amdhsa_accum_offset 256\n"
       "  .amdhsa_group_segment_fixed_size 0\n  .amdhsa_kernarg_size 96\n  .amdhsa_user_sgpr_count 2\n"
       "  .amdhsa_user_sgpr_kernarg_segment_ptr 1\n  .amdhsa_system_sgpr_workgroup_id_x 1\n.end_amdhsa_kernel\n"]
path = sys.argv[1] if len(sys.argv) > 1 else f"p4.s"
open(path, "w").write("\n".join(out))
print("wrote", path, "stamps", nstamp[0])
```

```python
import sys, os
sys.path.insert(0, os.path.dirname(os.path.abspath(__file__)))
from asmlib import Asm

NAME = "sequential_preLN__ssm_conv_h3__dense_activation_silu__prompt"
KVR = 0x000000
XT  = 0x200000
XS  = 0x400000
FL  = 0x480000
EPOCH = FL
FG = FL + 0x4000
GL = FL + 0x10000
oINFO, oFA, oFB, oFX, oFC, oHST = 0, 128, 256, 384, 640, 2048
sGL = "s3"
HT  = 0x500000
H1F = 0xC00000
WS_SIZE = 0x1400000
DIAG = int(os.environ.get("DIAG", "0"))
NOFAST = int(os.environ.get("NOFAST", "0"))
DIAGBASE = 0x1300000
POLL_LIMIT = 50000
H1T = int(os.environ.get('H1T', '1'))
TIMER = "s_memrealtime" if os.environ.get("RT") else "s_memtime"
TOUCHA = int(os.environ.get("TOUCHA", "0"))

WS, SQ, SK_, SV, SSH, SKN, SSD, SW1, SW2, SOUT, SDBG = 28, 32, 36, 40, 44, 48, 52, 56, 60, 64, 92
def R4(b): return f"s[{b}:{b+3}]"
sWAVE, sX, sJ, sTAG, sCHL, sPAR, sCH = "s4", "s5", "s6", "s7", "s8", "s9", "s10"
sMT, sFG, sFT, sSM, sDN, sDT, sST = "s11", "s12", "s13", "s14", "s15", "s16", "s17"
sW2C, sW2W, sROT, sRES, sPW2, sPW1, sP8, sP24, sFAST, sINFO = "s18", "s19", "s20", "s21", "s22", "s23", "s24", "s25", "s26", "s27"

KC = 0; CHS = 16640; CPS = 4160
KV = 33280; KVS = 4608
WW = 43008; WWS = 24576
RED = WW + 4 * WWS
W3W = 131072
CSL = 131072
RES3 = 49152
LDS_TOTAL = 163840

A = Asm()
nstamp = [0]
def stamp():
    if DIAG:
        i = nstamp[0]; nstamp[0] += 1
        assert i < 31
        A(f"{TIMER} s[100:101]\ns_waitcnt lgkmcnt(0)\nv_accvgpr_write_b32 a{224+i}, s100")
def srd(d, lo, nbytes):
    A(f"s_mov_b32 s{d}, s{lo}\ns_mov_b32 s{d+1}, s{lo+1}\ns_mov_b32 s{d+2}, {hex(nbytes)}\ns_mov_b32 s{d+3}, 0x00020000")
lab = [0]
def newlab(p="L"):
    lab[0] += 1
    return f"{p}{lab[0]}"

def rowstats_pack(vsum, vsq, t0, inv_n="0x3b000000"):
    A(f"""
    v_mul_f32 v{vsum}, {inv_n}, v{vsum}
    v_mul_f32 v{vsq}, {inv_n}, v{vsq}
    v_fma_f32 v{vsq}, -v{vsum}, v{vsum}, v{vsq}
    v_max_f32 v{vsq}, 0, v{vsq}
    v_cvt_pk_bf16_f32 v{t0}, v{vsq}, v{vsq}
    v_lshlrev_b32 v{vsq}, 16, v{t0}
    v_add_f32 v{vsq}, 0x3727c5ac, v{vsq}
    v_cvt_pk_bf16_f32 v{t0}, v{vsq}, v{vsq}
    v_lshlrev_b32 v{vsq}, 16, v{t0}
    v_sqrt_f32 v{vsq}, v{vsq}
    v_cvt_pk_bf16_f32 v{t0}, v{vsum}, v{vsq}
    """)

def poll(voff, vtmp, two=False):
    L = newlab("POLL"); D = newlab("PDONE")
    if two:
        ld = f"buffer_load_dwordx2 v[{vtmp}:{vtmp+1}], v{voff}, {R4(WS)}, 0 offen sc1"
        ck = f"v_xor_b32 v{vtmp}, {sTAG}, v{vtmp}\nv_xor_b32 v{vtmp+1}, {sTAG}, v{vtmp+1}\nv_or_b32 v{vtmp}, v{vtmp}, v{vtmp+1}\nv_cmp_ne_u32 vcc, 0, v{vtmp}"
    else:
        ld = f"buffer_load_dword v{vtmp}, v{voff}, {R4(WS)}, 0 offen sc1"
        ck = f"v_cmp_ne_u32 vcc, {sTAG}, v{vtmp}"
    A(f"""
    s_mov_b32 s96, 0
    {L}:
    {ld}
    s_waitcnt vmcnt(0)
    {ck}
    s_cbranch_vccz {D}
    s_add_u32 s96, s96, 1
    s_cmp_lt_u32 s96, {POLL_LIMIT}
    s_cbranch_scc1 {L}
    {D}:
    """)

def flag_store(soff, vtmp, local):
    A(f"v_mov_b32 v{vtmp}, {sTAG}\ns_mov_b64 exec, 1")
    if local:
        L1 = newlab("FS"); L2 = newlab("FS")
        A(f"""
        s_cmp_eq_u32 {sFAST}, 0
        s_cbranch_scc1 {L1}
        buffer_store_dword v{vtmp}, off, {R4(WS)}, {soff}
        s_branch {L2}
        {L1}:
        buffer_store_dword v{vtmp}, off, {R4(WS)}, {soff} sc1
        {L2}:
        """)
    else:
        A(f"buffer_store_dword v{vtmp}, off, {R4(WS)}, {soff} sc1")
    A("s_mov_b64 exec, -1")

def acquire_if_slow():
    L = newlab("AQ"); A(f"s_cmp_lg_u32 {sFAST}, 0\ns_cbranch_scc1 {L}\nbuffer_inv sc1\ns_waitcnt vmcnt(0)\n{L}:")
def only_wave(w):
    L = newlab("NW"); A(f"s_cmp_lg_u32 {sWAVE}, {w}\ns_cbranch_scc1 {L}"); return L
def skip_if_fast():
    L = newlab("SF"); A(f"s_cmp_lg_u32 {sFAST}, 0\ns_cbranch_scc1 {L}"); return L
def info_load(va, vd):
    A(f"v_and_b32 v{va}, 31, v1\nv_lshlrev_b32 v{va}, 2, v{va}\nbuffer_load_dword v{vd}, v{va}, {R4(WS)}, {sGL} offen sc1")
def info_eval(vd):
    if NOFAST:
        A(f"s_mov_b32 {sFAST}, 0"); return
    A(f"""
    v_cmp_ne_u32 vcc, {sINFO}, v{vd}
    s_cmp_eq_u64 vcc, 0
    s_cselect_b32 {sFAST}, 1, 0
    """)
def w2_dma(m0base=None):
    L = []
    if m0base is not None: L.append(f"s_mov_b32 m0, {m0base}")
    L.append(f"buffer_load_dwordx4 v2, {R4(SW2)}, {sW2C} offen lds")
    L.append(f"s_add_u32 {sW2C}, {sW2C}, 8192\ns_add_u32 m0, m0, 1024")
    return "\n".join(L)
def w2_tr_list(nk, areg0, b0, b1):
    L = []
    for t in range(nk):
        for a, b in ((0, b0), (1, b1)):
            r = areg0 + 8 * t + 4 * a
            L.append(f"ds_read_b64_tr_b16 a[{r}:{r+1}], v{b} offset:{2048*t}")
            L.append(f"ds_read_b64_tr_b16 a[{r+2}:{r+3}], v{b} offset:{2048*t+1024}")
    return L
def w2_tr(nk, areg0, b0, b1):
    for l in w2_tr_list(nk, areg0, b0, b1): A(l)
def pf(srd_, soff, va=232, vd=233): return f"buffer_load_dword v{vd}, v{va}, {R4(srd_)}, {soff} offen sc1"

A("s_cmp_ge_u32 s2, 256\ns_cbranch_scc1 K_END")
stamp()
A(f"""
s_load_dwordx16 s[4:19], s[0:1], 0
s_load_dwordx8 s[20:27], s[0:1], 64
v_and_b32 v1, 63, v0
v_lshrrev_b32 v2, 6, v0
s_and_b32 s68, s2, 7
s_lshr_b32 s69, s2, 3
v_readfirstlane_b32 s70, v2
s_getreg_b32 s74, hwreg(HW_REG_XCC_ID, 0, 4)
v_and_b32 v182, 15, v0
v_bfe_u32 v183, v0, 4, 2
v_bfe_u32 v184, v0, 6, 1
v_lshrrev_b32 v185, 7, v0
s_lshl_b32 s71, s69, 6
s_lshl_b32 s72, s68, 7
v_lshlrev_b32 v186, 3, v183
v_lshl_add_u32 v186, v185, 5, v186
v_add_u32 v186, s71, v186        ; row0
v_lshlrev_b32 v187, 2, v182
v_lshl_add_u32 v187, v184, 6, v187
v_add_u32 v187, s72, v187        ; ch*2
v_lshl_add_u32 v188, v186, 10, v187
v_add_u32 v189, 4096, v188
v_subrev_u32 v190, 3072, v188
v_lshlrev_b32 v191, 2, v187
v_lshrrev_b32 v192, 3, v1
s_lshl_b32 s73, s2, 3
v_add_u32 v192, s73, v192
v_and_b32 v193, 7, v1
v_lshlrev_b32 v194, 4, v193
v_lshl_add_u32 v194, v192, 10, v194
v_lshlrev_b32 v203, 3, v183      ; rb*8
s_add_u32 s73, s71, 32
s_lshl_b32 s76, s70, 5
s_sub_u32 s73, s73, 64
s_add_u32 s73, s73, s76          ; 64rt + 32*(w-1)
v_add_u32 v203, s73, v203        ; x row0
v_lshlrev_b32 v204, 3, v182
v_add_u32 v204, s72, v204
v_lshl_add_u32 v205, v203, 10, v204
v_add_u32 v206, 4096, v205
v_lshlrev_b32 v207, 11, v204
v_lshl_add_u32 v207, v203, 1, v207
v_add_u32 v207, {XT}, v207
s_lshl_b32 s71, s68, 6
s_lshl_b32 s72, s69, 1
s_add_u32 s71, s71, s72           ; c0 = 64x + 2j
s_lshl_b32 s75, s71, 12
v_lshlrev_b32 v3, 4, v0
v_add_u32 v3, s75, v3
v_add_u32 v4, 4096, v3
v_bfe_u32 v5, v1, 2, 1
v_lshlrev_b32 v5, 12, v5
v_add_u32 v5, s75, v5
s_lshl_b32 {sGL}, s68, 12
s_add_u32 {sGL}, {sGL}, {GL}
s_lshl_b32 s76, s68, 18
s_lshl_b32 s77, s69, 13
s_add_u32 s76, s76, s77
s_add_u32 s78, s76, {KVR}
s_add_u32 s79, s76, {XT}
s_cmp_eq_u32 s70, {1 if TOUCHA else 99}
s_cselect_b32 s80, s78, {sGL}
s_cselect_b32 s81, {63 if TOUCHA else 7}, 7
s_cmp_eq_u32 s70, {2 if TOUCHA else 99}
s_cselect_b32 s80, s79, s80
s_cselect_b32 s81, 63, s81
v_and_b32 v209, s81, v1
v_lshlrev_b32 v209, 7, v209
v_add_u32 v209, s80, v209
s_waitcnt lgkmcnt(0)
""")
srd(WS, 26, WS_SIZE); srd(SK_, 6, 0x200000); srd(SV, 8, 0x200000); srd(SSH, 10, 4096)
A(f"s_mov_b32 s76, {EPOCH}")
A(f"buffer_load_dword v200, off, {R4(WS)}, s76")
A(f"buffer_load_dwordx4 v[92:95], v191, {R4(SSH)}, 0 offen")
for j in range(3): A(f"buffer_load_dword v{64+j}, v190, {R4(SK_)}, 0 offen offset:{1024*j}")
for j in range(4): A(f"buffer_load_dword v{67+j}, v188, {R4(SK_)}, 0 offen offset:{1024*j}")
for j in range(4): A(f"buffer_load_dword v{71+j}, v189, {R4(SK_)}, 0 offen offset:{1024*j}")
for j in range(4): A(f"buffer_load_dword v{75+j}, v188, {R4(SV)}, 0 offen offset:{1024*j}")
for j in range(4): A(f"buffer_load_dword v{79+j}, v189, {R4(SV)}, 0 offen offset:{1024*j}")
A(f"buffer_load_dword v208, v209, {R4(WS)}, 0 offen sc1")
srd(SKN, 12, 0x200000); srd(SSD, 14, 1024); srd(SQ, 4, 0x200000)
A(f"""
buffer_load_dwordx4 v[16:19], v3, {R4(SKN)}, 0 offen
buffer_load_dwordx2 v[20:21], v3, {R4(SKN)}, 0 offen offset:16
buffer_load_dwordx4 v[24:27], v3, {R4(SKN)}, 0 offen offset:4
buffer_load_dwordx4 v[28:31], v4, {R4(SKN)}, 0 offen
buffer_load_dwordx2 v[32:33], v4, {R4(SKN)}, 0 offen offset:16
buffer_load_dwordx4 v[36:39], v4, {R4(SKN)}, 0 offen offset:4
buffer_load_dwordx2 v[48:49], v5, {R4(SKN)}, 0 offen
s_lshr_b32 s77, s70, 1
s_add_u32 s77, s77, s71
s_lshl_b32 s77, s77, 1
buffer_load_ushort v50, off, {R4(SSD)}, s77
""")
srd(SW1, 18, 512*1792*2); srd(SW2, 20, 512*1792*2); srd(SOUT, 22, 0x200000)
A(f"""
s_mov_b32 {sWAVE}, s70
s_mov_b32 {sX}, s68
s_mov_b32 {sJ}, s69
s_lshr_b32 {sCHL}, s70, 1
s_and_b32 {sPAR}, s70, 1
s_add_u32 {sCH}, s71, {sCHL}
s_lshl_b32 {sMT}, s68, 1
s_and_b32 s72, s69, 1
s_add_u32 {sMT}, {sMT}, s72
s_lshr_b32 {sFG}, s69, 1
s_lshl_b32 {sFT}, {sFG}, 2
s_add_u32 {sFT}, {sFT}, s70
s_lshl_b32 {sSM}, s68, 2
s_and_b32 s72, s69, 3
s_add_u32 {sSM}, {sSM}, s72
s_lshr_b32 {sDN}, s69, 2
s_lshl_b32 {sDT}, {sDN}, 1
s_add_u32 {sDT}, {sDT}, {sCHL}
s_lshl_b32 {sST}, {sSM}, 1
s_add_u32 {sST}, {sST}, {sPAR}
s_mov_b32 {sFAST}, 0
v_lshrrev_b32 v5, 3, v1
v_and_b32 v6, 7, v1
v_bfe_u32 v7, v1, 4, 1
v_lshlrev_b32 v7, 2, v7
v_xor_b32 v6, v6, v7
v_lshlrev_b32 v2, 4, v6
v_lshl_add_u32 v2, v5, 10, v2
s_lshl_b32 s76, {sDN}, 7
v_add_u32 v2, s76, v2
s_mul_i32 {sW2C}, {sWAVE}, {448*1024}
s_mul_i32 {sW2W}, {sWAVE}, {WWS}
s_add_u32 {sW2W}, {sW2W}, {WW}
v_lshlrev_b32 v232, 7, v1
s_lshr_b32 s76, {sJ}, 3
s_mul_i32 {sPW2}, s76, {448*1024}
s_and_b32 s76, {sJ}, 7
s_lshl_b32 {sP8}, s76, 13
s_mul_i32 {sP24}, s76, 24576
s_mul_i32 {sPW1}, {sJ}, 57344
v_lshlrev_b32 v195, 11, v187
v_lshlrev_b32 v196, 1, v186
v_sub_u32 v197, v195, v196
v_add_u32 v197, {KVR + 4080}, v197
v_add_u32 v198, v195, v196
v_add_u32 v198, {XT}, v198
s_mov_b32 s76, 4096
s_mov_b32 s77, 0x05040100
s_mov_b32 s78, 0x07060302
v_bfe_u32 v5, v1, 2, 2
v_and_b32 v6, 3, v1
v_bfe_u32 v7, v1, 4, 1
v_lshrrev_b32 v8, 5, v1
v_lshlrev_b32 v9, 2, v8
v_add_u32 v9, v9, v5
v_lshlrev_b32 v9, 7, v9
v_lshl_add_u32 v9, v7, 5, v9
v_lshl_add_u32 v9, v6, 3, v9
v_lshrrev_b32 v10, 1, v5
v_xor_b32 v10, {sCHL}, v10
v_lshl_add_u32 v3, v10, 6, v9
v_xor_b32 v4, 64, v3
v_lshlrev_b32 v51, 4, v0
v_add_u32 v51, {KC + 32}, v51
v_mov_b32 v52, 0
v_mov_b32 v53, 0
v_mov_b32 v54, 0
v_mov_b32 v55, 0
v_lshrrev_b32 v5, 5, v1
v_mul_u32_u24 v5, {KVS}, v5
v_and_b32 v6, 31, v1
v_lshl_add_u32 v5, v6, 4, v5
v_add_u32 v5, {KV + 4096}, v5
ds_write_b128 v5, v[52:55]
""")
stamp()
A(f"""
s_waitcnt vmcnt(29)
v_readfirstlane_b32 {sTAG}, v200
s_lshl_b32 s79, {sJ}, 2
s_add_u32 s79, s79, {sGL}
s_add_u32 {sTAG}, {sTAG}, 1
s_lshl_b32 {sINFO}, {sTAG}, 4
s_or_b32 {sINFO}, {sINFO}, s74
v_mov_b32 v5, {sINFO}
s_mov_b64 exec, 1
buffer_store_dword v5, off, {R4(WS)}, s79
s_mov_b64 exec, -1
""")
A("s_waitcnt vmcnt(18)")
stamp()
A(f"""
v_lshlrev_b32 v142, 16, v92
v_lshlrev_b32 v143, 16, v94
v_and_b32 v144, 0xffff0000, v92
v_and_b32 v145, 0xffff0000, v94
v_lshlrev_b32 v146, 16, v93
v_lshlrev_b32 v147, 16, v95
v_and_b32 v148, 0xffff0000, v93
v_and_b32 v149, 0xffff0000, v95
""")
for r in range(11): A(f"v_lshlrev_b32 v{104+2*r}, 16, v{64+r}\nv_and_b32 v{105+2*r}, 0xffff0000, v{64+r}")
for r in range(8):
    R = 150 + 2 * r
    A(f"v_pk_mul_f32 v[{R}:{R+1}], v[{104+2*(r+3)}:{105+2*(r+3)}], v[142:143]")
for j in range(1, 4):
    for r in range(8):
        R = 150 + 2 * r; K = 104 + 2 * (r + 3 - j)
        A(f"v_pk_fma_f32 v[{R}:{R+1}], v[{K}:{K+1}], v[{142+2*j}:{143+2*j}], v[{R}:{R+1}]")
A("s_waitcnt vmcnt(10)")
for r in range(8): A(f"v_lshlrev_b32 v{126+2*r}, 16, v{75+r}\nv_and_b32 v{127+2*r}, 0xffff0000, v{75+r}")
for r in range(8):
    R = 150 + 2 * r
    A(f"v_pk_mul_f32 v[{R}:{R+1}], v[{R}:{R+1}], v[{126+2*r}:{127+2*r}]")
for i in range(4):
    A(f"v_cvt_pk_bf16_f32 v{166+i}, v{150+2*(7-2*i)}, v{150+2*(6-2*i)}")
    A(f"v_cvt_pk_bf16_f32 v{170+i}, v{151+2*(7-2*i)}, v{151+2*(6-2*i)}")
def by_mode(lines):
    L1 = newlab("BM"); L2 = newlab("BM")
    A(f"s_cmp_eq_u32 {sFAST}, 0\ns_cbranch_scc1 {L1}")
    for l in lines: A(l)
    A(f"s_branch {L2}\n{L1}:")
    for l in lines: A(l + " sc1")
    A(f"{L2}:")
A(f"buffer_store_dwordx4 v[166:169], v197, {R4(WS)}, 0 offen sc1\nbuffer_store_dwordx4 v[170:173], v197, {R4(WS)}, s76 offen sc1")
info_load(201, 202)
LX3 = newlab("X3"); LXD = newlab("XD"); LX4 = newlab("X4"); LX5 = newlab("X5")
A(f"""
s_cmp_eq_u32 {sWAVE}, 0
s_cbranch_scc1 {LXD}
s_cmp_eq_u32 {sWAVE}, 3
s_cbranch_scc1 {LX3}
""")
for j in range(4): A(f"buffer_load_dwordx2 v[{64+2*j}:{65+2*j}], v205, {R4(SQ)}, 0 offen offset:{1024*j}")
for j in range(4): A(f"buffer_load_dwordx2 v[{72+2*j}:{73+2*j}], v206, {R4(SQ)}, 0 offen offset:{1024*j}")
A(f"s_branch {LXD}\n{LX3}:")
for j in range(8): A(f"buffer_load_dwordx4 v[{64+4*j}:{67+4*j}], v194, {R4(SQ)}, 0 offen offset:{128*j}")
A(f"""
s_lshr_b32 s79, s2, 6
s_mul_i32 s79, s79, {448*1024}
s_and_b32 s80, s2, 63
s_mul_i32 s80, s80, 3072
s_add_u32 s79, s79, s80
v_min_u32 v210, 23, v1
v_lshlrev_b32 v210, 7, v210
buffer_load_dword v211, v210, {R4(SW2)}, s79 offen sc1
{LXD}:
""")
stamp()
def wait_role(n0):
    La = newlab("WR"); Lb = newlab("WR"); Lc = newlab("WR")
    A(f"""
    s_cmp_eq_u32 {sWAVE}, 0
    s_cbranch_scc1 {La}
    s_cmp_eq_u32 {sWAVE}, 3
    s_cbranch_scc1 {Lc}
    s_waitcnt vmcnt({n0+8})
    s_branch {Lb}
    {Lc}:
    s_waitcnt vmcnt({n0+9})
    s_branch {Lb}
    {La}:
    s_waitcnt vmcnt({n0})
    {Lb}:
    """)
wait_role(3)
for c, (D, E, O) in enumerate([(16, 24, 40), (28, 36, 56)]):
    for w in range(4): A(f"v_alignbit_b32 v{O+w}, v{D+w+1}, v{D+w}, 16")
    for w in range(4): A(f"v_alignbit_b32 v{O+4+w}, v{D+w+2}, v{D+w+1}, 16")
    base = c * CHS
    A(f"ds_write_b128 v51, v[{O}:{O+3}] offset:{base}")
    A(f"ds_write_b128 v51, v[{E}:{E+3}] offset:{base + CPS}")
    A(f"ds_write_b128 v51, v[{O+4}:{O+7}] offset:{base + 2*CPS}")
    A(f"ds_write_b128 v51, v[{D+2}:{D+5}] offset:{base + 3*CPS}")
A(f"""
v_and_b32 v6, 3, v1
v_sub_u32 v7, 3, v6
v_lshlrev_b32 v7, 4, v7
v_lshlrev_b64 v[54:55], v7, v[48:49]
v_bfe_u32 v7, v1, 2, 1
v_mul_u32_u24 v7, {CHS}, v7
v_mul_u32_u24 v6, {CPS}, v6
v_add3_u32 v6, v6, v7, {KC}
v_mov_b32 v8, 0
v_mov_b32 v9, 0
v_mov_b32 v10, 0
v_mov_b32 v11, 0
s_mov_b64 exec, 0xff
ds_write_b128 v6, v[8:11]
ds_write_b128 v6, v[52:55] offset:16
s_mov_b64 exec, -1
v_lshlrev_b32 v15, 16, v50
""")
wait_role(0)
info_eval(202)
A("s_waitcnt lgkmcnt(0)")
stamp()
A("s_barrier")
stamp()
A(f"""
s_add_u32 s79, {sGL}, {oFA}
s_lshl_b32 s80, {sJ}, 2
s_add_u32 s80, s80, s79
""")
LW0 = newlab("W0"); LW3 = newlab("W3"); LJ = newlab("AJ"); LPF = newlab("PF")
A(f"""
s_add_u32 s81, {sGL}, {oFX}
s_cmp_eq_u32 {sWAVE}, 0
s_cbranch_scc1 {LW0}
s_cmp_eq_u32 {sWAVE}, 3
s_cbranch_scc1 {LW3}
s_mov_b32 s82, 8192
s_mov_b32 s83, 12288
s_waitcnt vmcnt(0)
""")
for e in range(4):
    d = e >> 1; sel = "s77" if (e & 1) == 0 else "s78"
    for i in range(4): A(f"v_perm_b32 v{104+4*e+i}, v{64+2*(2*i+1)+d}, v{64+2*(2*i)+d}, {sel}")
L1 = newlab("XS"); L2 = newlab("XS")
so = ["0", "s76", "s82", "s83"]
for e in range(4): A(f"buffer_store_dwordx4 v[{104+4*e}:{107+4*e}], v207, {R4(WS)}, {so[e]} offen sc1")
A(f"""
{L2}:
s_lshl_b32 s82, {sJ}, 3
s_lshl_b32 s83, {sWAVE}, 2
s_add_u32 s82, s82, s83
s_add_u32 s82, s82, s81
s_sub_u32 s82, s82, 4             ; FX + (2j + w-1)*4
s_waitcnt vmcnt(0)
""")
flag_store("s82", 6, True)
A(f"""
s_branch {LPF}
{LW3}:
v_mov_b32 v104, 0
v_mov_b32 v105, 0
v_mov_b32 v106, 0
v_mov_b32 v107, 0
v_mov_b32 v110, 0x3f803f80
""")
for j in range(8):
    A(f"s_waitcnt vmcnt({8-j})")
    for i in range(4):
        r = 64 + 4 * j + i
        A(f"v_dot2c_f32_bf16 v{104+2*(i&1)}, v{r}, v110\nv_dot2c_f32_bf16 v{105+2*(i&1)}, v{r}, v{r}")
A("v_add_f32 v104, v104, v106\nv_add_f32 v105, v105, v107")
for pat in ["quad_perm:[1,0,3,2]", "quad_perm:[2,3,0,1]", "row_half_mirror"]:
    A(f"v_add_f32_dpp v104, v104, v104 {pat} row_mask:0xf bank_mask:0xf")
    A(f"v_add_f32_dpp v105, v105, v105 {pat} row_mask:0xf bank_mask:0xf")
rowstats_pack(104, 105, 108)
A(f"""
v_mov_b32 v109, {sTAG}
v_lshlrev_b32 v107, 3, v192
s_mov_b32 s82, {XS}
s_mov_b32 exec_lo, 0x01010101
s_mov_b32 exec_hi, 0x01010101
buffer_store_dwordx2 v[108:109], v107, {R4(WS)}, s82 offen sc1
s_mov_b64 exec, -1
{LPF}:
s_branch {LJ}
{LW0}:
""")
flag_store("s80", 6, True)
A(f"""
v_and_b32 v5, 31, v1
v_lshlrev_b32 v5, 2, v5
v_add_u32 v5, s79, v5
""")
poll(5, 6)
A(f"""
s_lshl_b32 s83, {sCH}, 12
s_add_u32 s83, s83, {KVR}
s_mov_b32 m0, {KV}
v_lshlrev_b32 v5, 4, v1
s_add_u32 s84, s83, 4096
buffer_load_dwordx4 v5, {R4(WS)}, s83 offen sc1 lds
buffer_load_dwordx4 v5, {R4(WS)}, s83 offen offset:1024 sc1 lds
buffer_load_dwordx4 v5, {R4(WS)}, s83 offen offset:2048 sc1 lds
buffer_load_dwordx4 v5, {R4(WS)}, s83 offen offset:3072 sc1 lds
s_mov_b32 m0, {KV + KVS}
s_nop 0
buffer_load_dwordx4 v5, {R4(WS)}, s84 offen sc1 lds
buffer_load_dwordx4 v5, {R4(WS)}, s84 offen offset:1024 sc1 lds
buffer_load_dwordx4 v5, {R4(WS)}, s84 offen offset:2048 sc1 lds
buffer_load_dwordx4 v5, {R4(WS)}, s84 offen offset:3072 sc1 lds
s_add_u32 s84, {sPW2}, {sP24}
{pf(SW2, "s84")}
s_add_u32 s84, s84, 8192
{pf(SW2, "s84")}
s_add_u32 s84, s84, 8192
{pf(SW2, "s84")}
{LJ}:
""")
stamp()
ACC = 64; AB = 96; BB = 160; XR = 224; GR = 16; MR = 48; RRa = 234
A(f"""
s_lshl_b32 s76, {sCH}, 12
s_mul_i32 s79, {sCHL}, {KVS}
v_and_b32 v11, 15, v1
v_lshrrev_b32 v12, 4, v1
v_lshlrev_b32 v13, 4, v11
v_lshl_add_u32 v13, v12, 2, v13
s_lshl_b32 s80, {sPAR}, 10
v_add_u32 v13, s80, v13          ; s0
v_lshlrev_b32 v14, 1, v13
s_add_u32 s82, s76, {XT}
v_lshlrev_b32 v13, 3, v13
v_and_b32 v6, 3, v11
v_mul_u32_u24 v6, {CPS}, v6
v_lshrrev_b32 v7, 2, v11
v_lshl_add_u32 v6, v7, 3, v6
v_lshl_add_u32 v6, v12, 4, v6
s_mul_i32 s83, {sCHL}, {CHS}
s_lshl_b32 s84, {sPAR}, 6
s_add_u32 s83, s83, s84
s_add_u32 s83, s83, {KC}
v_add_u32 v6, s83, v6
v_lshlrev_b32 v7, 4, v12
v_lshlrev_b32 v8, 5, v11
v_sub_u32 v7, v7, v8
s_add_u32 s83, s79, s84
s_add_u32 s83, s83, {KV + 480}
v_add_u32 v7, s83, v7
v_lshlrev_b32 v10, 2, v1
v_add_u32 v10, s81, v10
s_mov_b32 s85, {XS}
s_mov_b32 s86, {XS + 4096}
""")
def creadsA(j, buf):
    L = []
    for U in range(8):
        a = AB + buf * 32 + 4 * U
        L.append(f"ds_read_b64 v[{a}:{a+1}], v6 offset:{512*U + 128*j}")
        L.append(f"ds_read_b64 v[{a+2}:{a+3}], v6 offset:{512*U + 128*j + 8}")
    return L
def creadsB(j, buf):
    return [f"ds_read_b128 v[{BB+buf*32+4*U}:{BB+buf*32+4*U+3}], v7 offset:{3584 - 512*U + 128*j}" for U in range(8)]
def xs_loads():
    for t in range(4):
        so = "s85" if t < 2 else "s86"
        A(f"buffer_load_dwordx4 v[{GR+8*t}:{GR+8*t+3}], v13, {R4(WS)}, {so} offen offset:{2048*(t&1)} sc1")
        A(f"buffer_load_dwordx4 v[{GR+8*t+4}:{GR+8*t+7}], v13, {R4(WS)}, {so} offen offset:{2048*(t&1)+16} sc1")
for r in creadsA(0, 0): A(r)
LW = only_wave(0)
A(f"s_waitcnt vmcnt(3)\n{LW}:\ns_barrier")
stamp()
for r in creadsB(0, 0): A(r)
pairs = [(U, W) for U in range(8) for W in range(8) if U + W <= 7]
first = set()
for j in range(4):
    buf = j & 1
    A("s_waitcnt lgkmcnt(0)")
    nxt = []
    if j < 3:
        a_, b_ = creadsA(j + 1, buf ^ 1), creadsB(j + 1, buf ^ 1)
        for U in range(8): nxt += [a_[2*U], a_[2*U+1], b_[U]]
    dm = 8 if j != 0 else 0
    fill = []
    if j == 0:
        A(f"""
        s_lshl_b32 s83, {sWAVE}, 12
        s_add_u32 s84, s83, {XS}
        s_add_u32 s83, s83, {RED}
        s_mov_b32 m0, s83
        v_lshlrev_b32 v5, 4, v1
        """)
        for c in range(4): A(f"buffer_load_dwordx4 v5, {R4(WS)}, s84 offen offset:{1024*c} sc1 lds")
        info_load(250, 251)
    if j == 1:
        A(f"buffer_load_dword v8, v10, {R4(WS)}, 0 offen sc1")
    if j == 2:
        Lok = newlab("FXOK")
        A(f"""
        s_waitcnt vmcnt(8)
        v_cmp_ne_u32 vcc, {sTAG}, v8
        s_cbranch_vccz {Lok}
        """)
        poll(10, 8)
        A(f"{Lok}:")
        for t in range(4): A(f"buffer_load_dwordx2 v[{XR+2*t}:{XR+2*t+1}], v14, {R4(WS)}, s82 offen offset:{512*t} sc1")
        info_eval(251)
        A(f"""
        s_mul_i32 s84, s2, 7168
        s_mul_i32 s83, {sWAVE}, 1792
        s_add_u32 s84, s84, s83
        v_min_u32 v5, 13, v1
        v_lshlrev_b32 v5, 7, v5
        {pf(SW1, "s84", 5)}
        s_lshr_b32 s84, s2, 6
        s_mul_i32 s84, s84, {448*1024}
        s_and_b32 s83, s2, 63
        s_lshl_b32 s83, s83, 12
        s_add_u32 s84, s84, s83
        s_lshl_b32 s83, {sWAVE}, 10
        s_add_u32 s84, s84, s83
        s_add_u32 s84, s84, {192*1024}
        v_and_b32 v9, 7, v1
        v_lshlrev_b32 v9, 7, v9
        {pf(SW2, "s84", 9)}
        """)
        A(f"s_barrier\nv_add_u32 v5, {RED}, v13")
        for t in range(4):
            fill.append(f"ds_read_b128 v[{GR+8*t}:{GR+8*t+3}], v5 offset:{2048*t}")
            fill.append(f"ds_read_b128 v[{GR+8*t+4}:{GR+8*t+7}], v5 offset:{2048*t+16}")
    if j == 3:
        Lok = newlab("XSOK"); Lre = newlab("XSRE")
        tags = [GR + 2 * i + 1 for i in range(16)]
        A(f"s_barrier\ns_mov_b32 s96, 0\n{Lre}:")
        A(f"v_min3_u32 v8, v{tags[0]}, v{tags[1]}, v{tags[2]}\nv_max3_u32 v9, v{tags[0]}, v{tags[1]}, v{tags[2]}")
        for i in range(3, 15, 2):
            A(f"v_min3_u32 v8, v8, v{tags[i]}, v{tags[i+1]}\nv_max3_u32 v9, v9, v{tags[i]}, v{tags[i+1]}")
        A(f"""
        v_min_u32 v8, v8, v{tags[15]}
        v_max_u32 v9, v9, v{tags[15]}
        v_xor_b32 v8, {sTAG}, v8
        v_xor_b32 v9, {sTAG}, v9
        v_or_b32 v8, v8, v9
        v_cmp_ne_u32 vcc, 0, v8
        s_cbranch_vccz {Lok}
        s_add_u32 s96, s96, 1
        s_cmp_ge_u32 s96, {POLL_LIMIT}
        s_cbranch_scc1 {Lok}
        """)
        xs_loads()
        A(f"s_waitcnt vmcnt(0)\ns_branch {Lre}\n{Lok}:")
        for i in range(16):
            fill.append(f"v_and_b32 v{RRa+i}, 0xffff0000, v{GR+2*i}")
            fill.append(f"v_lshlrev_b32 v{MR+i}, 16, v{GR+2*i}")
            fill.append(f"v_rcp_f32 v{RRa+i}, v{RRa+i}")
    for idx, (U, W) in enumerate(pairs):
        acc = ACC + 4 * (U + W)
        a = AB + buf * 32 + 4 * U; b = BB + buf * 32 + 4 * W
        cin = f"v[{acc}:{acc+3}]" if acc in first else "0"
        first.add(acc)
        A(f"v_mfma_f32_16x16x32_bf16 v[{acc}:{acc+3}], v[{a}:{a+3}], v[{b}:{b+3}], {cin}")
        if nxt and idx >= 2: A(nxt.pop(0))
        if dm and idx % 4 == 1 and idx < 32:
            A(w2_dma(m0base=sW2W if (j == 1 and idx == 1) else None)); dm -= 1
        for _ in range(2 if idx % 3 else 1):
            if fill: A(fill.pop(0))
    assert not nxt and dm == 0 and not fill
    if j < 3: stamp()
stamp()
A(f"""
v_lshlrev_b32 v8, 4, v1
s_lshl_b32 s83, {sWAVE}, 12
s_add_u32 s83, s83, {RED}
v_add_u32 v9, s83, v8
s_xor_b32 s84, {sWAVE}, 1
s_lshl_b32 s84, s84, 12
s_add_u32 s84, s84, {RED}
v_add_u32 v8, s84, v8
s_add_u32 s83, s79, {KV + 4088 - 1536}
v_sub_u32 v10, s83, v14
s_cmp_eq_u32 {sPAR}, 0
s_cbranch_scc1 C_P0
""")
for j in range(4): A(f"ds_write_b128 v9, v[{ACC+4*j}:{ACC+4*j+3}] offset:{1024*j}")
A("s_nop 1")
for j in range(16): A(f"v_mov_b32 v{ACC+j}, v{ACC+16+j}")
A("s_branch C_PJ\nC_P0:\ns_nop 7")
for j in range(4): A(f"ds_write_b128 v9, v[{ACC+16+4*j}:{ACC+16+4*j+3}] offset:{1024*j}")
A("C_PJ:")
KVE = 96; PR = 104; T = 120; OUTR = 128
for j in range(4): A(f"ds_read_b64 v[{KVE+2*j}:{KVE+2*j+1}], v10 offset:{1536-512*j}")
A(f"""
s_and_b32 s83, {sCH}, 3
s_lshl_b32 s83, s83, 1
v_and_b32 v5, 7, v11
v_xor_b32 v5, s83, v5
v_lshlrev_b32 v5, 5, v5
v_lshl_add_u32 v5, v12, 3, v5
v_lshrrev_b32 v9, 3, v11
v_lshl_add_u32 v5, v9, 17, v5
s_lshl_b32 s83, {sCH}, 8
s_lshl_b32 s84, {sPAR}, 20
s_add_u32 s83, s83, s84
s_add_u32 s83, s83, {HT}
v_add_u32 v5, s83, v5
s_mov_b32 s88, 0
s_mov_b32 s89, {2*131072}
s_mov_b32 s90, {4*131072}
s_mov_b32 s91, {6*131072}
s_waitcnt lgkmcnt(0)
s_barrier
""")
for j in range(4): A(f"ds_read_b128 v[{PR+4*j}:{PR+4*j+3}], v8 offset:{1024*j}")
A("s_waitcnt vmcnt(18)")
Q = 136
for j in range(4):
    acc = ACC + 4 * j; kv = KVE + 2 * j; x = XR + 2 * j; m = MR + 4 * j; rs = RRa + 4 * j; X = 152 + 4 * j; q = Q + 4 * j
    A(f"""
    v_and_b32 v{T}, 0xffff0000, v{kv+1}
    v_lshlrev_b32 v{T+1}, 16, v{kv+1}
    v_and_b32 v{T+2}, 0xffff0000, v{kv}
    v_lshlrev_b32 v{T+3}, 16, v{kv}
    v_lshlrev_b32 v{X}, 16, v{x}
    v_and_b32 v{X+1}, 0xffff0000, v{x}
    v_lshlrev_b32 v{X+2}, 16, v{x+1}
    v_and_b32 v{X+3}, 0xffff0000, v{x+1}
    v_pk_fma_f32 v[{acc}:{acc+1}], v[{T}:{T+1}], v[14:15], v[{acc}:{acc+1}] op_sel:[0,1,0] op_sel_hi:[1,1,1]
    v_pk_fma_f32 v[{acc+2}:{acc+3}], v[{T+2}:{T+3}], v[14:15], v[{acc+2}:{acc+3}] op_sel:[0,1,0] op_sel_hi:[1,1,1]
    v_pk_add_f32 v[{q}:{q+1}], v[{X}:{X+1}], v[{m}:{m+1}] neg_lo:[0,1] neg_hi:[0,1]
    v_pk_add_f32 v[{q+2}:{q+3}], v[{X+2}:{X+3}], v[{m+2}:{m+3}] neg_lo:[0,1] neg_hi:[0,1]
    v_pk_mul_f32 v[{q}:{q+1}], v[{q}:{q+1}], v[{rs}:{rs+1}]
    v_pk_mul_f32 v[{q+2}:{q+3}], v[{q+2}:{q+3}], v[{rs+2}:{rs+3}]
    """)
stamp()
for j in range(4):
    acc = ACC + 4 * j; P = PR + 4 * j; X = 152 + 4 * j; q = Q + 4 * j
    A(f"""
    s_waitcnt lgkmcnt({3-j})
    v_pk_add_f32 v[{acc}:{acc+1}], v[{acc}:{acc+1}], v[{P}:{P+1}]
    v_pk_add_f32 v[{acc+2}:{acc+3}], v[{acc+2}:{acc+3}], v[{P+2}:{P+3}]
    v_pk_fma_f32 v[{q}:{q+1}], v[{q}:{q+1}], v[{acc}:{acc+1}], v[{X}:{X+1}]
    v_pk_fma_f32 v[{q+2}:{q+3}], v[{q+2}:{q+3}], v[{acc+2}:{acc+3}], v[{X+2}:{X+3}]
    v_cvt_pk_bf16_f32 v{OUTR+2*j}, v{q}, v{q+1}
    v_cvt_pk_bf16_f32 v{OUTR+2*j+1}, v{q+2}, v{q+3}
    buffer_store_dwordx2 v[{OUTR+2*j}:{OUTR+2*j+1}], v5, {R4(WS)}, s{88+j} offen sc1
    """)
stamp()
A(f"v_add_u32 v12, {sW2W}, v3\nv_add_u32 v13, {sW2W}, v4\ns_waitcnt vmcnt(4)")
w2_tr(12, 0, 12, 13)
A("s_waitcnt vmcnt(0) lgkmcnt(0)\ns_barrier")
stamp()
A(f"""
s_add_u32 s76, {sGL}, {oFB}
s_lshl_b32 s77, {sJ}, 2
s_add_u32 s77, s77, s76
""")
L = only_wave(0)
flag_store("s77", 6, True)
A(f"{L}:")
L = only_wave(1)
A(f"""
s_cmp_lg_u32 {sJ}, 31
s_cbranch_scc1 {L}
v_and_b32 v5, 31, v1
v_lshlrev_b32 v5, 2, v5
v_add_u32 v5, s76, v5
""")
poll(5, 6)
A(f"""
v_lshlrev_b32 v5, 7, v1
s_lshl_b32 s79, {sX}, 2
s_add_u32 s79, s79, {FG}
v_mov_b32 v6, {sTAG}
buffer_store_dword v6, v5, {R4(WS)}, s79 offen sc1
{L}:
""")
A(f"s_lshl_b32 s78, {sWAVE}, 13\ns_add_u32 s78, s78, {W3W}")
WF = 128
A(f"""
v_add_u32 v12, s78, v3
v_add_u32 v13, s78, v4
s_cmp_ge_u32 {sFG}, 14
s_cbranch_scc1 B_NOW1
v_lshrrev_b32 v5, 2, v1
v_mul_u32_u24 v5, 3584, v5
v_and_b32 v6, 3, v1
v_lshl_add_u32 v5, v6, 4, v5
s_lshl_b32 s79, {sFT}, 6
v_add_u32 v5, s79, v5
s_and_b32 {sROT}, {sFG}, 7
s_lshl_b32 s79, {sROT}, 2
s_lshl_b32 s80, {sWAVE}, 15
s_mov_b32 m0, s80
""")
for i in range(32):
    A(f"""
    s_mul_i32 s81, s79, 57344
    buffer_load_dwordx4 v5, {R4(SW1)}, s81 offen lds
    s_add_u32 s79, s79, 1
    s_and_b32 s79, s79, 31
    s_add_u32 m0, m0, 1024
    """)
for i in range(8): A(w2_dma(m0base="s78" if i == 0 else None))
A(f"""
v_bfe_u32 v5, v1, 2, 2
v_and_b32 v6, 3, v1
v_bfe_u32 v7, v1, 4, 1
v_lshrrev_b32 v8, 5, v1
v_lshlrev_b32 v9, 3, v8
v_add_u32 v9, v9, v5
v_lshlrev_b32 v9, 6, v9
v_lshl_add_u32 v9, v7, 5, v9
v_lshl_add_u32 v9, v6, 3, v9
v_add_u32 v9, s80, v9
v_mov_b32 v10, 0
v_mov_b32 v11, 0x3f803f80
v_mov_b32 v20, 0
v_mov_b32 v21, 0
v_mov_b32 v22, 0
""")
for q in range(4):
    A(f"s_waitcnt vmcnt({32-8*q})")
    for i in range(8 * q, 8 * q + 8):
        r = WF + 4 * i
        A(f"ds_read_b64_tr_b16 v[{r}:{r+1}], v9 offset:{1024*i}")
        A(f"ds_read_b64_tr_b16 v[{r+2}:{r+3}], v9 offset:{1024*i+256}")
    if q > 0:
        A("s_waitcnt lgkmcnt(15)")
        for i in range(32 * (q - 1), 32 * q): A(f"v_dot2c_f32_bf16 v{[10,20,21,22][i%4]}, v{WF+i}, v11")
A("s_waitcnt vmcnt(0)")
w2_tr(4, 96, 12, 13)
A("s_waitcnt lgkmcnt(15)")
for i in range(96, 128): A(f"v_dot2c_f32_bf16 v{[10,20,21,22][i%4]}, v{WF+i}, v11")
A(f"""
v_add_f32 v10, v10, v20
v_add_f32 v21, v21, v22
v_add_f32 v10, v10, v21
v_mov_b32 v20, v10
s_nop 1
v_permlane32_swap_b32 v10, v20
v_add_f32 v10, v10, v20
s_branch B_W1D
B_NOW1:
""")
for i in range(8): A(w2_dma(m0base="s78" if i == 0 else None))
A("s_waitcnt vmcnt(0)")
w2_tr(4, 96, 12, 13)
A("B_W1D:")
stamp()
L = only_wave(0)
A(f"""
v_and_b32 v5, 7, v1
v_lshlrev_b32 v5, 2, v5
s_and_b32 s79, s2, 63
s_lshl_b32 s79, s79, 7
s_add_u32 s79, s79, {FG}
v_add_u32 v5, s79, v5
""")
poll(5, 6)
A(f"s_cmp_lg_u32 s2, 255\ns_cbranch_scc1 {L}\ns_mov_b32 s79, {EPOCH}")
flag_store("s79", 6, False)
A(f"{L}:\ns_waitcnt lgkmcnt(0)\ns_barrier")
stamp()
A(f"s_cmp_ge_u32 {sFG}, 14\ns_cbranch_scc1 P2_STATS")
def pf_r3(va, vd):
    A(f"""
    v_lshlrev_b32 v{va}, 7, v1
    s_min_u32 s88, {sWAVE}, 2
    s_lshl_b32 s88, s88, 13
    s_add_u32 s88, s88, {sPW2}
    s_add_u32 s88, s88, {sP24}
    s_add_u32 s88, s88, {256*1024}
    {pf(SW2, "s88", va, vd)}
    """)
ACC2 = 64; BF = 16
A(f"""
v_lshlrev_b32 v9, 4, v1
s_lshl_b32 s76, {sMT}, 17
s_add_u32 s76, s76, {HT}
s_lshl_b32 s77, {sWAVE}, 12
s_add_u32 s76, s76, s77
s_mov_b32 s78, {sROT}
""")
def issue2():
    A(f"""
    s_lshl_b32 s79, s78, 14
    s_add_u32 s79, s79, s76
    s_mov_b32 m0, s77
    s_add_u32 s78, s78, 1
    s_and_b32 s78, s78, 7
    s_add_u32 s77, s77, 16384
    """)
    return [f"buffer_load_dwordx4 v9, {R4(WS)}, s79 offen offset:{1024*c} sc1 lds" for c in range(4)]
PRE = 4
for p in range(PRE):
    for l in issue2(): A(l)
A("""
v_bfe_u32 v12, v1, 2, 2
v_and_b32 v13, 3, v1
v_bfe_u32 v14, v1, 4, 1
v_lshrrev_b32 v15, 5, v1
v_lshlrev_b32 v11, 3, v15
v_add_u32 v11, v11, v12
v_lshlrev_b32 v11, 8, v11
v_lshl_add_u32 v11, v14, 5, v11
v_lshl_add_u32 v11, v13, 3, v11
""")
for j in range(4): A(f"v_xor_b32 v13, {j}, v12\nv_lshl_add_u32 v{5+j}, v13, 6, v11")
A(f"""
v_and_b32 v12, 31, v1
v_lshlrev_b32 v11, 3, v12         ; (l&31)*8
s_and_b32 s81, {sMT}, 1
s_lshl_b32 s81, s81, 10
s_add_u32 s81, s81, {sGL}
s_add_u32 s81, s81, {oHST}
s_lshl_b32 s82, {sWAVE}, 7
s_add_u32 s82, s82, {CSL}
v_lshlrev_b32 v12, 2, v12
v_add_u32 v12, s82, v12
ds_write_b32 v12, v10
v_lshlrev_b32 v0, 4, v15
v_add_u32 v0, s82, v0
""")
def trreads(ks):
    L = []; buf = ks % 3
    off = (ks % 16) * 4096
    for j in range(4):
        b = BF + 16 * buf + 4 * j
        L.append(f"ds_read_b64_tr_b16 v[{b}:{b+1}], v{5+j} offset:{off}")
        L.append(f"ds_read_b64_tr_b16 v[{b+2}:{b+3}], v{5+j} offset:{off+1024}")
    return L
HS = 128
def hs_loads():
    for j in range(4): A(f"buffer_load_dwordx2 v[{HS+2*j}:{HS+2*j+1}], v11, {R4(WS)}, s81 offen offset:{256*j} sc1")
A(f"s_waitcnt vmcnt({4*(PRE-1)}) lgkmcnt(0)\ns_barrier")
stamp()
for r in trreads(0) + trreads(1): A(r)
issued = PRE
for ks in range(32):
    p, c = divmod(ks, 4)
    A(f"s_waitcnt lgkmcnt({8 if ks < 31 else 0})")
    fill = []
    if c == 0 and issued < 8:
        fill += issue2(); issued += 1
    if c == 2 and p < 7:
        A(f"s_waitcnt vmcnt({4*(issued - (p+2)) + ((1 + H1T) if ks > 13 else 0)})\ns_barrier")
    if ks == 14:
        for j in range(4): A(f"v_add_u32 v{5+j}, 0x10000, v{5+j}")
    nxt = trreads(ks + 2) if ks < 30 else []
    if ks == 13:
        pf_r3(12, 13)
        if H1T: A(f"""
v_lshrrev_b32 v14, 4, v1
s_mov_b32 s89, 114688
v_mul_lo_u32 v14, v14, s89
v_and_b32 v15, 15, v1
v_lshl_add_u32 v14, v15, 7, v14
s_lshl_b32 s89, {sFT}, 11
s_mul_i32 s90, {sMT}, {4*114688}
s_add_u32 s89, s89, s90
s_add_u32 s89, s89, {H1F}
{pf(WS, "s89", 14, 15)}
""")
    if ks == 27: hs_loads()
    w = WF + 4 * ks
    for j in range(4):
        b = BF + 16 * (ks % 3) + 4 * j; acc = ACC2 + 16 * j
        cin = "0" if ks == 0 else f"v[{acc}:{acc+15}]"
        A(f"v_mfma_f32_32x32x16_bf16 v[{acc}:{acc+15}], v[{w}:{w+3}], v[{b}:{b+3}], {cin}")
        for _ in range(3 if j < 2 else 2 if j == 2 else 0):
            if nxt: A(nxt.pop(0))
        if fill: A(fill.pop(0))
stamp()
A("s_barrier")
for g in range(4): A(f"ds_read_b128 v[{32+4*g}:{35+4*g}], v0 offset:{32*g}")
Lok = newlab("HSOK"); Lre = newlab("HSRE")
A(f"""
s_lshl_b32 s83, {sFT}, 11
s_add_u32 s83, s83, {H1F}
s_mul_i32 s84, {sMT}, {4*114688}
s_add_u32 s83, s83, s84
s_add_u32 s84, s83, 114688
s_add_u32 s85, s83, {2*114688}
s_add_u32 s86, s83, {3*114688}
s_mul_i32 s87, {sWAVE}, {WWS}
s_mov_b32 s96, 0
{Lre}:
s_waitcnt vmcnt(0)
v_xor_b32 v12, {sTAG}, v{HS+1}
v_xor_b32 v13, {sTAG}, v{HS+3}
v_xor_b32 v14, {sTAG}, v{HS+5}
v_xor_b32 v15, {sTAG}, v{HS+7}
v_or3_b32 v12, v12, v13, v14
v_or_b32 v12, v12, v15
v_cmp_ne_u32 vcc, 0, v12
s_cbranch_vccz {Lok}
s_add_u32 s96, s96, 1
s_cmp_ge_u32 s96, {POLL_LIMIT}
s_cbranch_scc1 {Lok}
""")
hs_loads()
A(f"s_branch {Lre}\n{Lok}:")
for j in range(4):
    S = 48 + 4 * j
    A(f"""
    v_and_b32 v{S+2}, 0xffff0000, v{HS+2*j}
    v_lshlrev_b32 v{S}, 16, v{HS+2*j}
    v_rcp_f32 v{S+1}, v{S+2}
    v_xor_b32 v{S}, 0x80000000, v{S}
    v_mul_f32 v{S+1}, 0xbfb8aa3b, v{S+1}
    """)
A("s_waitcnt lgkmcnt(0)")
stamp()
for j in range(4):
    S = 48 + 4 * j; O = 136 + 8 * j
    for h in range(2):
        Tt = 168 + 16 * h + 32 * (j & 1)
        a0 = ACC2 + 16 * j + 8 * h
        for p in range(4):
            A(f"v_pk_fma_f32 v[{a0+2*p}:{a0+2*p+1}], v[{32+8*h+2*p}:{33+8*h+2*p}], v[{S}:{S+1}], v[{a0+2*p}:{a0+2*p+1}] op_sel_hi:[1,0,1]")
        for p in range(4):
            A(f"v_pk_mul_f32 v[{Tt+2*p}:{Tt+2*p+1}], v[{a0+2*p}:{a0+2*p+1}], v[{S}:{S+1}] op_sel:[0,1] op_sel_hi:[1,1]")
        for q3 in range(3): A(w2_dma(m0base="s87" if (j == 0 and h == 0 and q3 == 0) else None))
        for p in range(8): A(f"v_exp_f32 v{Tt+p}, v{Tt+p}")
        for p in range(4):
            A(f"v_pk_fma_f32 v[{Tt+2*p}:{Tt+2*p+1}], v[{Tt+2*p}:{Tt+2*p+1}], v[{S+2}:{S+3}], v[{S+2}:{S+3}] op_sel_hi:[1,0,0]")
        for p in range(8): A(f"v_rcp_f32 v{Tt+p}, v{Tt+p}")
        for p in range(4):
            A(f"v_pk_mul_f32 v[{Tt+2*p}:{Tt+2*p+1}], v[{Tt+2*p}:{Tt+2*p+1}], v[{a0+2*p}:{a0+2*p+1}]")
        for p in range(4):
            A(f"v_cvt_pk_bf16_f32 v{O+4*h+p}, v{Tt+2*p}, v{Tt+2*p+1}")
    if j == 1 or j == 3:
        (by_mode if H1T else (lambda ls: [A(l + " sc1") for l in ls]))([f"buffer_store_dwordx4 v[{136+8*jj+4*h}:{136+8*jj+4*h+3}], v9, {R4(WS)}, s{83+jj} offen offset:{1024*h}" for jj in (j-1, j) for h in range(2)])
stamp()
A(f"""
s_waitcnt vmcnt(0)
s_barrier
s_and_b32 s76, {sMT}, 1
s_lshl_b32 s76, s76, 7
s_add_u32 s76, s76, {sGL}
s_add_u32 s76, s76, {oFC}
s_lshl_b32 s77, {sFG}, 2
s_add_u32 s77, s77, s76
""")
L = only_wave(0)
flag_store("s77", 6, True)
A(f"{L}:\nv_add_u32 v12, s87, v3\nv_add_u32 v13, s87, v4")
w2_tr(12, 128, 12, 13)
A("s_branch P3_START")
A("P2_STATS:")
nstamp[0] = 17
A(f"""
s_sub_u32 s76, {sFG}, 14
v_and_b32 v5, 7, v0
v_lshrrev_b32 v6, 3, v0
v_lshrrev_b32 v7, 2, v5
s_lshl_b32 s77, s76, 1
v_add_u32 v7, s77, v7
v_and_b32 v8, 3, v6
v_xor_b32 v7, v7, v8
v_lshlrev_b32 v7, 6, v7
v_and_b32 v8, 3, v5
v_lshl_add_u32 v7, v8, 4, v7
v_lshl_add_u32 v7, v6, 8, v7
s_lshl_b32 s78, {sMT}, 17
s_add_u32 s78, s78, {HT}
""")
for it in range(16):
    A(f"buffer_load_dwordx4 v[{64+4*it}:{67+4*it}], v7, {R4(WS)}, s78 offen sc1\ns_add_u32 s78, s78, 8192")
for i in range(16): A(f"v_mov_b32 v{32+i}, 0")
for it in range(16):
    A(f"s_waitcnt vmcnt({15-it})")
    for d in range(4):
        r = 64 + 4 * it + d; t = 20 + 2 * (d & 1)
        A(f"""
        v_lshlrev_b32 v{t}, 16, v{r}
        v_and_b32 v{t+1}, 0xffff0000, v{r}
        v_pk_add_f32 v[{32+2*d}:{33+2*d}], v[{32+2*d}:{33+2*d}], v[{t}:{t+1}]
        v_pk_fma_f32 v[{40+2*d}:{41+2*d}], v[{t}:{t+1}], v[{t}:{t+1}], v[{40+2*d}:{41+2*d}]
        """)
stamp()
for i in range(16): A(f"v_add_f32_dpp v{32+i}, v{32+i}, v{32+i} row_ror:8 row_mask:0xf bank_mask:0xf")
for i in range(16): A(f"v_mov_b32 v{48+i}, v{32+i}")
for i in range(16): A(f"v_permlane16_swap_b32 v{32+i}, v{48+i}")
for i in range(16): A(f"v_add_f32 v{32+i}, v{32+i}, v{48+i}")
for i in range(16): A(f"v_mov_b32 v{48+i}, v{32+i}")
for i in range(16): A(f"v_permlane32_swap_b32 v{32+i}, v{48+i}")
for i in range(16): A(f"v_add_f32 v{32+i}, v{32+i}, v{48+i}")
A(f"""
v_lshlrev_b32 v8, 6, v5
s_lshl_b32 s79, {sWAVE}, 9
v_add_u32 v8, s79, v8
s_mov_b64 exec, 0xff
ds_write_b128 v8, v[32:35]
ds_write_b128 v8, v[36:39] offset:16
ds_write_b128 v8, v[40:43] offset:32
ds_write_b128 v8, v[44:47] offset:48
s_mov_b64 exec, -1
s_waitcnt lgkmcnt(0)
s_barrier
""")
L = only_wave(0)
A("""
v_lshrrev_b32 v8, 3, v1
v_lshlrev_b32 v8, 6, v8
v_and_b32 v9, 7, v1
v_lshl_add_u32 v8, v9, 2, v8
""")
for w in range(4): A(f"ds_read_b32 v{20+w}, v8 offset:{512*w}\nds_read_b32 v{24+w}, v8 offset:{512*w+32}")
A("""
s_waitcnt lgkmcnt(0)
v_add_f32 v20, v20, v21
v_add_f32 v22, v22, v23
v_add_f32 v24, v24, v25
v_add_f32 v26, v26, v27
v_add_f32 v20, v20, v22
v_add_f32 v24, v24, v26
""")
rowstats_pack(20, 24, 28)
L1 = newlab("HS"); L2 = newlab("HS")
A(f"""
v_mov_b32 v29, {sTAG}
v_lshlrev_b32 v8, 3, v1
s_and_b32 s79, {sMT}, 1
s_lshl_b32 s79, s79, 10
s_lshl_b32 s80, s76, 9
s_add_u32 s79, s79, s80
s_add_u32 s79, s79, {sGL}
s_add_u32 s79, s79, {oHST}
buffer_store_dwordx2 v[28:29], v8, {R4(WS)}, s79 offen sc1
{L}:
""")
stamp()
pf_r3(12, 13)
for i in range(24): A(w2_dma(m0base=sW2W if i == 0 else None))
A(f"v_add_u32 v12, {sW2W}, v3\nv_add_u32 v13, {sW2W}, v4\ns_waitcnt vmcnt(0)")
w2_tr(12, 128, 12, 13)
A("P3_START:")
nstamp[0] = 21
stamp()
ACC3 = 64; HB = 128; NS3 = 12; AH3 = int(os.environ.get("AH3", "8"))
RES3B = 147456
A(f"""
v_lshlrev_b32 v17, 4, v1
v_lshrrev_b32 v5, 2, v1
v_and_b32 v6, 3, v1
v_and_b32 v7, 3, v5
s_and_b32 s76, {sST}, 3
v_xor_b32 v7, s76, v7
v_lshlrev_b32 v7, 6, v7
v_lshl_add_u32 v7, v6, 4, v7
v_lshl_add_u32 v7, v5, 8, v7
s_lshr_b32 s77, {sST}, 2
s_lshl_b32 s78, s77, 17
s_lshl_b32 s79, {sDT}, 13
s_add_u32 s78, s78, s79
s_add_u32 s78, s78, {HT}
s_add_u32 s79, s78, 3072
s_lshl_b32 {sRES}, {sWAVE}, 11
s_add_u32 {sRES}, {sRES}, {RES3B}
s_mov_b32 m0, {sRES}
s_nop 0
buffer_load_dwordx4 v7, {R4(WS)}, s78 offen sc1 lds
buffer_load_dwordx4 v7, {R4(WS)}, s79 offen offset:1024 sc1 lds
s_mul_i32 s80, {sWAVE}, {28*1024}
s_add_u32 s80, s80, {H1F}
s_mul_i32 s81, {sST}, 114688
s_add_u32 s81, s81, s80
s_xor_b32 s82, {sST}, 1
s_mul_i32 s82, s82, 114688
s_add_u32 s82, s82, s80
v_min_u32 v5, 13, v1
v_lshlrev_b32 v5, 2, v5
s_and_b32 s77, s77, 1
s_lshl_b32 s77, s77, 7
s_add_u32 s77, s77, {sGL}
s_add_u32 s77, s77, {oFC}
v_add_u32 v5, s77, v5
""")
L = only_wave(0)
poll(5, 6)
A(f"{L}:\ns_waitcnt lgkmcnt(0)\ns_barrier")
stamp()
def load3(ks):
    sl = HB + (ks % NS3) * 8
    A(f"buffer_load_dwordx4 v[{sl}:{sl+3}], v17, {R4(WS)}, s81 offen offset:{1024*(ks%4)} sc1")
    A(f"buffer_load_dwordx4 v[{sl+4}:{sl+7}], v17, {R4(WS)}, s82 offen offset:{1024*(ks%4)} sc1")
    if ks % 4 == 3: A("s_add_u32 s81, s81, 4096\ns_add_u32 s82, s82, 4096")
for ks in range(AH3): load3(ks)
A(f"""
v_bfe_u32 v5, v1, 2, 2
v_and_b32 v6, 3, v1
v_bfe_u32 v7, v1, 4, 1
v_lshrrev_b32 v8, 5, v1
v_lshlrev_b32 v9, 2, v8
v_add_u32 v9, v9, v5
v_lshlrev_b32 v9, 6, v9
v_lshl_add_u32 v9, v7, 5, v9
v_lshl_add_u32 v9, v6, 3, v9
v_add_u32 v9, {sRES}, v9
v_and_b32 v5, 31, v1
v_lshlrev_b32 v5, 10, v5
v_lshl_add_u32 v5, v8, 4, v5
s_lshl_b32 s77, {sST}, 15
s_lshl_b32 s78, {sDT}, 6
s_add_u32 s77, s77, s78
s_mul_i32 s76, {sWAVE}, 12288
v_add_u32 v10, s76, v17
""")
for j in range(1, 4):
    A(f"""
    s_xor_b32 s76, {sWAVE}, {j}
    s_mul_i32 s76, s76, 12288
    s_add_u32 s76, s76, {(j-1)*4096}
    v_add_u32 v{10+j}, s76, v17
    """)
for ks in range(28):
    iss = min(28, ks + AH3)
    A(f"s_waitcnt vmcnt({2*(iss - ks - 1)})")
    if ks == 0: stamp()
    if ks == 1:
        for g in range(4): A(f"ds_read_b64_tr_b16 v[{20+2*g}:{21+2*g}], v9 offset:{512*g}")
    if ks == 3:
        A("s_waitcnt lgkmcnt(0)")
        for g in range(4):
            A(f"""
            v_lshlrev_b32 v{32+4*g}, 16, v{20+2*g}
            v_and_b32 v{33+4*g}, 0xffff0000, v{20+2*g}
            v_lshlrev_b32 v{34+4*g}, 16, v{21+2*g}
            v_and_b32 v{35+4*g}, 0xffff0000, v{21+2*g}
            """)
    sl = HB + (ks % NS3) * 8
    order = [(0, 0), (0, 1), (1, 0), (1, 1)] if ks < 27 else [(1, 1), (1, 0), (0, 1), (0, 0)]
    for n_, (a, b) in enumerate(order):
        acc = ACC3 + 16 * (2 * a + b)
        cin = "0" if ks == 0 else f"v[{acc}:{acc+15}]"
        A(f"v_mfma_f32_32x32x16_bf16 v[{acc}:{acc+15}], a[{8*ks+4*a}:{8*ks+4*a+3}], v[{sl+4*b}:{sl+4*b+3}], {cin}")
        if n_ == 1 and ks + AH3 < 28: load3(ks + AH3)
stamp()
for j in (3, 2, 1):
    for g in range(4):
        a = ACC3 + 16 * j + 4 * g
        A(f"ds_write_b128 v{10+j}, v[{a}:{a+3}] offset:{1024*g}")
for p in range(8): A(f"v_pk_add_f32 v[{ACC3+2*p}:{ACC3+2*p+1}], v[{ACC3+2*p}:{ACC3+2*p+1}], v[{32+2*p}:{33+2*p}]")
A("s_waitcnt lgkmcnt(0)\ns_barrier")
for j in range(3):
    for g in range(4):
        r = 80 + 16 * j + 4 * g
        A(f"ds_read_b128 v[{r}:{r+3}], v10 offset:{4096*j + 1024*g}")
for j in range(3):
    A(f"s_waitcnt lgkmcnt({8 - 4*j})")
    for p in range(8):
        r = 80 + 16 * j + 2 * p
        A(f"v_pk_add_f32 v[{ACC3+2*p}:{ACC3+2*p+1}], v[{ACC3+2*p}:{ACC3+2*p+1}], v[{r}:{r+1}]")
for p in range(8): A(f"v_cvt_pk_bf16_f32 v{48+p}, v{ACC3+2*p}, v{ACC3+2*p+1}")
A(f"""
v_permlane32_swap_b32 v48, v50
v_permlane32_swap_b32 v49, v51
v_permlane32_swap_b32 v52, v54
v_permlane32_swap_b32 v53, v55
buffer_store_dwordx4 v[48:51], v5, {R4(SOUT)}, s77 offen
buffer_store_dwordx4 v[52:55], v5, {R4(SOUT)}, s77 offen offset:32
""")
if DIAG:
    stamp()
    A("s_waitcnt vmcnt(0)")
    stamp()
    A(f"v_accvgpr_write_b32 a{224+nstamp[0]}, {sFAST}"); nstamp[0] += 1
    A(f"s_lshl_b32 s76, s2, 2\ns_add_u32 s76, s76, {sWAVE}\ns_lshl_b32 s76, s76, 7\ns_add_u32 s76, s76, {DIAGBASE}")
    for i in range(nstamp[0]):
        A(f"v_accvgpr_read_b32 v2, a{224+i}\nbuffer_store_dword v2, off, {R4(WS)}, s76 offset:{4*i}")
A("K_END:\ns_endpgm")

kn = NAME + "_kernel"
out = [f"; {NAME}: persistent single launch (generated by gen/gen3.py)",
       "; phases: kv/x^T/LN stats -> Toeplitz-MFMA long conv + gate + residual -> LN(h)@W1 + SiLU -> @W2 + residual; flag hand-offs in d_ws",
       f"; @launch grid=(256,1,1) block=(256,1,1) lds={LDS_TOTAL}",
       '.amdgcn_target "amdgcn-amd-amdhsa--gfx950"', ".text",
       f".globl {kn}\n.p2align 8\n.type {kn},@function\n{kn}:",
       A.finalize(),
       '.section .rodata,"a"\n.p2align 6',
       f".amdhsa_kernel {kn}\n  .amdhsa_next_free_vgpr 512\n  .amdhsa_next_free_sgpr 102\n  .amdhsa_accum_offset 256\n"
       "  .amdhsa_group_segment_fixed_size 0\n  .amdhsa_kernarg_size 96\n  .amdhsa_user_sgpr_count 2\n"
       "  .amdhsa_user_sgpr_kernarg_segment_ptr 1\n  .amdhsa_system_sgpr_workgroup_id_x 1\n.end_amdhsa_kernel\n"]
path = sys.argv[1] if len(sys.argv) > 1 else f"p3.s"
open(path, "w").write("\n".join(out))
print("wrote", path, "stamps", nstamp[0])
```

```python
import sys, os
sys.path.insert(0, os.path.dirname(os.path.abspath(__file__)))
from asmlib import Asm

NAME = "sequential_preLN__ssm_conv_h3__dense_activation_silu__prompt"
KVR = 0x000000
XT  = 0x200000
XS  = 0x400000
FL  = 0x480000
EPOCH = FL
FG = FL + 0x4000
GL = FL + 0x10000
oINFO, oFA, oFB, oFC, oHST = 0, 128, 256, 1024, 2048
HT  = 0x500000
H1F = 0xC00000
WS_SIZE = 0x1400000
env = lambda k, d: int(os.environ.get(k, d))
DIAG = env("DIAG", "0"); NOFAST = env("NOFAST", "0"); CODEPF = env("CODEPF", "0")
TIMER = "s_memrealtime" if os.environ.get("RT") else "s_memtime"
DIAGBASE = 0x1300000
POLL_LIMIT = 50000

WS, SQ, SK_, SV, SSH, SKN, SSD, SW1, SW2, SOUT = 28, 32, 36, 40, 44, 48, 52, 56, 60, 64
def R4(b): return f"s[{b}:{b+3}]"
sGL = "s3"
sWAVE, sX, sJ, sTAG, sCHL, sPAR, sCH = "s4", "s5", "s6", "s7", "s8", "s9", "s10"
sMT, sFG, sFT, sSM, sDN, sDT, sST = "s11", "s12", "s13", "s14", "s15", "s16", "s17"
sW2C, sW2W, sROT, sRES, sFAST, sINFO = "s18", "s19", "s20", "s21", "s26", "s27"

KC = 0; CHS = 16640; CPS = 4160
KV = 33280; KVS = 4608
XSL = 42496
RED = 58880
WW = 75264; R1 = 10; WWS = R1 * 2048
W3W = 131072
CSL = 131072
RES3B = 147456
LDS_TOTAL = 163840

A = Asm()
nstamp = [0]
def stamp():
    if DIAG:
        i = nstamp[0]; nstamp[0] += 1
        assert i < 31
        A(f"{TIMER} s[100:101]\ns_waitcnt lgkmcnt(0)\nv_accvgpr_write_b32 a{224+i}, s100")
def srd(d, lo, nbytes):
    A(f"s_mov_b32 s{d}, s{lo}\ns_mov_b32 s{d+1}, s{lo+1}\ns_mov_b32 s{d+2}, {hex(nbytes)}\ns_mov_b32 s{d+3}, 0x00020000")
lab = [0]
def newlab(p="L"):
    lab[0] += 1
    return f"{p}{lab[0]}"
def rowstats_pack(vsum, vsq, t0, inv_n="0x3b000000"):
    A(f"""
    v_mul_f32 v{vsum}, {inv_n}, v{vsum}
    v_mul_f32 v{vsq}, {inv_n}, v{vsq}
    v_fma_f32 v{vsq}, -v{vsum}, v{vsum}, v{vsq}
    v_max_f32 v{vsq}, 0, v{vsq}
    v_cvt_pk_bf16_f32 v{t0}, v{vsq}, v{vsq}
    v_lshlrev_b32 v{vsq}, 16, v{t0}
    v_add_f32 v{vsq}, 0x3727c5ac, v{vsq}
    v_cvt_pk_bf16_f32 v{t0}, v{vsq}, v{vsq}
    v_lshlrev_b32 v{vsq}, 16, v{t0}
    v_sqrt_f32 v{vsq}, v{vsq}
    v_cvt_pk_bf16_f32 v{t0}, v{vsum}, v{vsq}
    """)
def poll(voff, vtmp):
    L = newlab("POLL"); D = newlab("PDONE")
    A(f"""
    s_mov_b32 s96, 0
    {L}:
    buffer_load_dword v{vtmp}, v{voff}, {R4(WS)}, 0 offen sc1
    s_waitcnt vmcnt(0)
    v_cmp_ne_u32 vcc, {sTAG}, v{vtmp}
    s_cbranch_vccz {D}
    s_add_u32 s96, s96, 1
    s_cmp_lt_u32 s96, {POLL_LIMIT}
    s_cbranch_scc1 {L}
    {D}:
    """)
def flag_store(soff, vtmp, local):
    A(f"v_mov_b32 v{vtmp}, {sTAG}\ns_mov_b64 exec, 1")
    if local:
        L1 = newlab("FS"); L2 = newlab("FS")
        A(f"""
        s_cmp_eq_u32 {sFAST}, 0
        s_cbranch_scc1 {L1}
        buffer_store_dword v{vtmp}, off, {R4(WS)}, {soff}
        s_branch {L2}
        {L1}:
        buffer_store_dword v{vtmp}, off, {R4(WS)}, {soff} sc1
        {L2}:
        """)
    else:
        A(f"buffer_store_dword v{vtmp}, off, {R4(WS)}, {soff} sc1")
    A("s_mov_b64 exec, -1")
def only_wave(w):
    L = newlab("NW"); A(f"s_cmp_lg_u32 {sWAVE}, {w}\ns_cbranch_scc1 {L}"); return L
def info_load(va, vd):
    A(f"v_and_b32 v{va}, 31, v1\nv_lshlrev_b32 v{va}, 2, v{va}\nbuffer_load_dword v{vd}, v{va}, {R4(WS)}, {sGL} offen sc1")
def info_eval(vd):
    if NOFAST:
        A(f"s_mov_b32 {sFAST}, 0"); return
    A(f"v_cmp_ne_u32 vcc, {sINFO}, v{vd}\ns_cmp_eq_u64 vcc, 0\ns_cselect_b32 {sFAST}, 1, 0")
ROT3 = env("ROT3", "1")
sW2E = "s22"
sR3 = "s23"
def w2_dma(m0base=None):
    L = []
    if m0base is not None: L.append(f"s_mov_b32 m0, {m0base}")
    L.append(f"buffer_load_dwordx4 v2, {R4(SW2)}, {sW2C} offen lds")
    L.append(f"s_add_u32 {sW2C}, {sW2C}, 8192\ns_add_u32 m0, m0, 1024")
    if ROT3: L.append(f"s_cmp_eq_u32 {sW2C}, {sW2E}\ns_cselect_b32 s97, {448*1024}, 0\ns_sub_u32 {sW2C}, {sW2C}, s97")
    return "\n".join(L)
def w2_tr(nk, k0, b0, b1, off0=0):
    for t in range(nk):
        for a, b in ((0, b0), (1, b1)):
            r = 8 * (k0 + t) + 4 * a
            A(f"ds_read_b64_tr_b16 a[{r}:{r+1}], v{b} offset:{off0+2048*t}")
            A(f"ds_read_b64_tr_b16 a[{r+2}:{r+3}], v{b} offset:{off0+2048*t+1024}")
def pf_rot(i0_expr, n, va, vt, vd):
    A(f"""
    v_min_u32 v{va}, {n-1}, v1
    s_lshl_b32 s97, {sR3}, 6
    s_add_u32 s97, s97, {i0_expr}
    v_add_u32 v{va}, s97, v{va}
    v_subrev_u32 v{vt}, 448, v{va}
    v_min_u32 v{va}, v{va}, v{vt}
    v_lshlrev_b32 v{va}, 10, v{va}
    s_and_b32 s97, {sJ}, 3
    s_mul_i32 s97, s97, {448*1024}
    s_lshl_b32 s94, {sDN}, 7
    s_add_u32 s97, s97, s94
    buffer_load_dword v{vd}, v{va}, {R4(SW2)}, s97 offen sc1
    """)
def pf(srd_, soff, va, vd): return f"buffer_load_dword v{vd}, v{va}, {R4(srd_)}, {soff} offen sc1"

A("K_START:\ns_cmp_ge_u32 s2, 256\ns_cbranch_scc1 K_END")
A(f"""
s_load_dwordx16 s[4:19], s[0:1], 0
s_load_dwordx8 s[20:27], s[0:1], 64
""")
stamp()
A(f"""
s_and_b32 s68, s2, 7
s_lshr_b32 s69, s2, 3
v_and_b32 v182, 15, v0
v_bfe_u32 v183, v0, 4, 2
v_bfe_u32 v184, v0, 6, 1
v_lshrrev_b32 v185, 7, v0
s_lshl_b32 s71, s69, 6
s_lshl_b32 s72, s68, 7
v_lshlrev_b32 v186, 3, v183
v_lshl_add_u32 v186, v185, 5, v186
v_add_u32 v186, s71, v186        ; row0
v_lshlrev_b32 v187, 2, v182
v_lshl_add_u32 v187, v184, 6, v187
v_add_u32 v187, s72, v187        ; ch*2
v_lshl_add_u32 v188, v186, 10, v187
v_add_u32 v189, 4096, v188
v_subrev_u32 v190, 3072, v188
v_lshlrev_b32 v191, 2, v187
s_mov_b32 s{SK_+2}, 0x200000
s_mov_b32 s{SK_+3}, 0x00020000
s_mov_b32 s{SV+2}, 0x200000
s_mov_b32 s{SV+3}, 0x00020000
s_lshl_b32 s73, s68, 6
s_lshl_b32 s74, s69, 1
s_add_u32 s73, s73, s74           ; c0 = 64x + 2j
s_lshl_b32 s75, s73, 12
v_lshlrev_b32 v3, 4, v0
v_add_u32 v3, s75, v3
v_add_u32 v4, 4096, v3
s_waitcnt lgkmcnt(0)
s_mov_b32 s{SK_}, s6
s_mov_b32 s{SK_+1}, s7
s_mov_b32 s{SV}, s8
s_mov_b32 s{SV+1}, s9
""")
for j in range(3): A(f"buffer_load_dword v{64+j}, v190, {R4(SK_)}, 0 offen offset:{1024*j}")
for j in range(4): A(f"buffer_load_dword v{67+j}, v188, {R4(SK_)}, 0 offen offset:{1024*j}")
for j in range(4): A(f"buffer_load_dword v{71+j}, v189, {R4(SK_)}, 0 offen offset:{1024*j}")
srd(SSH, 10, 4096); srd(WS, 26, WS_SIZE)
A(f"buffer_load_dwordx4 v[92:95], v191, {R4(SSH)}, 0 offen")
A(f"s_mov_b32 s76, {EPOCH}\nbuffer_load_dword v200, off, {R4(WS)}, s76")
for j in range(4): A(f"buffer_load_dword v{75+j}, v188, {R4(SV)}, 0 offen offset:{1024*j}")
for j in range(4): A(f"buffer_load_dword v{79+j}, v189, {R4(SV)}, 0 offen offset:{1024*j}")
srd(SQ, 4, 0x200000)
for j in range(4): A(f"buffer_load_dword v{83+j}, v188, {R4(SQ)}, 0 offen offset:{1024*j}")
for j in range(4): A(f"buffer_load_dword v{87+j}, v189, {R4(SQ)}, 0 offen offset:{1024*j}")
srd(SKN, 12, 0x200000)
A(f"""
buffer_load_dwordx4 v[16:19], v3, {R4(SKN)}, 0 offen
buffer_load_dwordx2 v[20:21], v3, {R4(SKN)}, 0 offen offset:16
buffer_load_dwordx4 v[28:31], v4, {R4(SKN)}, 0 offen
buffer_load_dwordx2 v[32:33], v4, {R4(SKN)}, 0 offen offset:16
v_and_b32 v1, 63, v0
v_lshrrev_b32 v2, 6, v0
v_bfe_u32 v5, v1, 2, 1
v_lshlrev_b32 v5, 12, v5
v_readfirstlane_b32 s70, v2
v_add_u32 v5, s75, v5
buffer_load_dwordx2 v[48:49], v5, {R4(SKN)}, 0 offen
s_lshl_b32 {sGL}, s68, 12
s_add_u32 {sGL}, {sGL}, {GL}
v_and_b32 v6, 15, v1
v_lshlrev_b32 v6, 7, v6
buffer_load_dword v208, v6, {R4(WS)}, {sGL} offen sc1
""")
srd(SSD, 14, 1024)
A(f"""
s_lshr_b32 s77, s70, 1
s_add_u32 s77, s77, s73
s_lshl_b32 s77, s77, 1
buffer_load_ushort v50, off, {R4(SSD)}, s77
""")
srd(SW1, 18, 512*1792*2); srd(SW2, 20, 512*1792*2); srd(SOUT, 22, 0x200000)
A(f"""
s_getreg_b32 s74, hwreg(HW_REG_XCC_ID, 0, 4)
s_mov_b32 {sWAVE}, s70
s_mov_b32 {sX}, s68
s_mov_b32 {sJ}, s69
s_lshr_b32 {sCHL}, s70, 1
s_and_b32 {sPAR}, s70, 1
s_add_u32 {sCH}, s73, {sCHL}
s_lshl_b32 {sMT}, s68, 1
s_and_b32 s76, s69, 1
s_add_u32 {sMT}, {sMT}, s76
s_lshr_b32 {sFG}, s69, 1
s_lshl_b32 {sFT}, {sFG}, 2
s_add_u32 {sFT}, {sFT}, s70
s_lshl_b32 {sSM}, s68, 1
s_bfe_u32 s76, s69, 0x10001
s_add_u32 {sSM}, {sSM}, s76       ; mt3
s_lshr_b32 {sDN}, s69, 2
s_lshl_b32 {sDT}, {sDN}, 1
s_add_u32 {sDT}, {sDT}, {sCHL}
s_lshl_b32 {sST}, {sSM}, 2
s_and_b32 s76, s69, 1
s_add_u32 {sST}, {sST}, s76
s_mov_b32 {sFAST}, 0
s_mul_i32 {sW2C}, {sWAVE}, {448*1024}
s_add_u32 {sW2E}, {sW2C}, {448*1024}
s_min_u32 {sR3}, {sDN}, {6 if ROT3 else 0}
s_lshl_b32 s76, {sR3}, 16
s_add_u32 {sW2C}, {sW2C}, s76
v_lshrrev_b32 v5, 3, v1
v_and_b32 v6, 7, v1
v_bfe_u32 v7, v1, 4, 1
v_lshlrev_b32 v7, 2, v7
v_xor_b32 v6, v6, v7
v_lshlrev_b32 v2, 4, v6
v_lshl_add_u32 v2, v5, 10, v2
s_lshl_b32 s76, {sDN}, 7
v_add_u32 v2, s76, v2
v_lshlrev_b32 v195, 11, v187
v_lshlrev_b32 v196, 1, v186
v_sub_u32 v197, v195, v196
v_add_u32 v197, {KVR + 4080}, v197
v_add_u32 v198, v195, v196
v_add_u32 v198, {XT}, v198
s_mul_i32 {sW2W}, {sWAVE}, {WWS}
s_add_u32 {sW2W}, {sW2W}, {WW}
v_lshrrev_b32 v192, 3, v1
s_lshl_b32 s76, s2, 3
v_add_u32 v192, s76, v192
v_and_b32 v193, 7, v1
v_lshlrev_b32 v194, 4, v193
v_lshl_add_u32 v194, v192, 10, v194
v_bfe_u32 v5, v1, 2, 2
v_and_b32 v6, 3, v1
v_bfe_u32 v7, v1, 4, 1
v_lshrrev_b32 v8, 5, v1
v_lshlrev_b32 v9, 2, v8
v_add_u32 v9, v9, v5
v_lshlrev_b32 v9, 7, v9
v_lshl_add_u32 v9, v7, 5, v9
v_lshl_add_u32 v9, v6, 3, v9
v_lshrrev_b32 v10, 1, v5
v_xor_b32 v10, {sCHL}, v10
v_lshl_add_u32 v3, v10, 6, v9
v_xor_b32 v4, 64, v3
v_lshlrev_b32 v51, 4, v0
v_add_u32 v51, {KC + 32}, v51
v_mov_b32 v52, 0
v_mov_b32 v53, 0
v_mov_b32 v54, 0
v_mov_b32 v55, 0
v_lshrrev_b32 v5, 5, v1
v_mul_u32_u24 v5, {KVS}, v5
v_and_b32 v6, 31, v1
v_lshl_add_u32 v5, v6, 4, v5
v_add_u32 v5, {KV + 4096}, v5
ds_write_b128 v5, v[52:55]
s_mov_b32 s76, 4096
s_mov_b32 s77, 0x05040100
s_mov_b32 s78, 0x07060302
""")
stamp()
A(f"""
s_waitcnt vmcnt(23)
v_readfirstlane_b32 {sTAG}, v200
s_lshl_b32 s79, {sJ}, 2
s_add_u32 s79, s79, {sGL}
""")
stamp()
A(f"""
v_lshlrev_b32 v142, 16, v92
v_lshlrev_b32 v143, 16, v94
s_add_u32 {sTAG}, {sTAG}, 1
s_lshl_b32 {sINFO}, {sTAG}, 4
s_or_b32 {sINFO}, {sINFO}, s74
v_mov_b32 v5, {sINFO}
s_mov_b64 exec, 1
buffer_store_dword v5, off, {R4(WS)}, s79
s_mov_b64 exec, -1
v_and_b32 v144, 0xffff0000, v92
v_and_b32 v145, 0xffff0000, v94
v_lshlrev_b32 v146, 16, v93
v_lshlrev_b32 v147, 16, v95
v_and_b32 v148, 0xffff0000, v93
v_and_b32 v149, 0xffff0000, v95
""")
for r in range(11): A(f"v_lshlrev_b32 v{104+2*r}, 16, v{64+r}\nv_and_b32 v{105+2*r}, 0xffff0000, v{64+r}")
for r in range(8):
    R = 150 + 2 * r
    A(f"v_pk_mul_f32 v[{R}:{R+1}], v[{104+2*(r+3)}:{105+2*(r+3)}], v[142:143]")
for j in range(1, 4):
    for r in range(8):
        R = 150 + 2 * r; K = 104 + 2 * (r + 3 - j)
        A(f"v_pk_fma_f32 v[{R}:{R+1}], v[{K}:{K+1}], v[{142+2*j}:{143+2*j}], v[{R}:{R+1}]")
A("s_waitcnt vmcnt(16)")
for r in range(8): A(f"v_lshlrev_b32 v{126+2*r}, 16, v{75+r}\nv_and_b32 v{127+2*r}, 0xffff0000, v{75+r}")
for r in range(8):
    R = 150 + 2 * r
    A(f"v_pk_mul_f32 v[{R}:{R+1}], v[{R}:{R+1}], v[{126+2*r}:{127+2*r}]")
for i in range(4):
    A(f"v_cvt_pk_bf16_f32 v{166+i}, v{150+2*(7-2*i)}, v{150+2*(6-2*i)}")
    A(f"v_cvt_pk_bf16_f32 v{170+i}, v{151+2*(7-2*i)}, v{151+2*(6-2*i)}")
A(f"buffer_store_dwordx4 v[166:169], v197, {R4(WS)}, 0 offen sc1\nbuffer_store_dwordx4 v[170:173], v197, {R4(WS)}, s76 offen sc1")
A("s_waitcnt vmcnt(10)")
for i in range(4):
    A(f"v_perm_b32 v{174+i}, v{84+2*i}, v{83+2*i}, s77")
    A(f"v_perm_b32 v{178+i}, v{84+2*i}, v{83+2*i}, s78")
A(f"buffer_store_dwordx4 v[174:177], v198, {R4(WS)}, 0 offen sc1\nbuffer_store_dwordx4 v[178:181], v198, {R4(WS)}, s76 offen sc1")
info_load(201, 202)
L3 = newlab("T3"); L1 = newlab("T1"); L2 = newlab("T2"); LD = newlab("TD")
A(f"""
s_mul_i32 s79, s2, 7168
v_min_u32 v204, 55, v1
v_lshlrev_b32 v204, 7, v204
s_cmp_eq_u32 {sWAVE}, 3
s_cbranch_scc1 {L3}
s_cmp_eq_u32 {sWAVE}, 1
s_cbranch_scc1 {L1}
s_cmp_eq_u32 {sWAVE}, 2
s_cbranch_scc0 {LD}
""")
if CODEPF:
    A(f"""
    s_getpc_b64 s[0:1]
    CPF_HERE:
    s_mul_i32 s79, {sJ}, 896
    s_mov_b32 s80, K_END-CPF_HERE
    v_min_u32 v204, 6, v1
    v_lshlrev_b32 v204, 7, v204
    v_add_u32 v204, s79, v204
    v_min_u32 v204, s80, v204
    global_load_dword v205, v204, s[0:1] sc1
    """)
else:
    A(f"buffer_load_dword v205, v204, {R4(SW1)}, s79 offen sc1")
A(f"""
s_branch {LD}
{L1}:
buffer_load_dword v205, v204, {R4(SW2)}, s79 offen sc1
s_branch {LD}
{L3}:
""")
for j in range(8): A(f"buffer_load_dwordx4 v[{64+4*j}:{67+4*j}], v194, {R4(SQ)}, 0 offen offset:{128*j}")
A(f"{LD}:")
stamp()
def wait_role(n0):
    La = newlab("WR"); Lb = newlab("WR"); Lc = newlab("WR")
    A(f"""
    s_cmp_eq_u32 {sWAVE}, 0
    s_cbranch_scc1 {La}
    s_cmp_eq_u32 {sWAVE}, 3
    s_cbranch_scc1 {Lc}
    s_waitcnt vmcnt({n0+1})
    s_branch {Lb}
    {Lc}:
    s_waitcnt vmcnt({n0+8})
    s_branch {Lb}
    {La}:
    s_waitcnt vmcnt({n0})
    {Lb}:
    """)
wait_role(6)
for c, (D, E, O) in enumerate([(16, 24, 40), (28, 36, 56)]):
    for w in range(4): A(f"v_alignbit_b32 v{O+w}, v{D+w+1}, v{D+w}, 16")
    for w in range(4): A(f"v_alignbit_b32 v{O+4+w}, v{D+w+2}, v{D+w+1}, 16")
    for w in range(4): A(f"v_mov_b32 v{E+w}, v{D+w+1}")
    base = c * CHS
    A(f"ds_write_b128 v51, v[{O}:{O+3}] offset:{base}")
    A(f"ds_write_b128 v51, v[{O+4}:{O+7}] offset:{base + 2*CPS}")
    A(f"ds_write_b128 v51, v[{D+2}:{D+5}] offset:{base + 3*CPS}")
    A(f"ds_write_b128 v51, v[{E}:{E+3}] offset:{base + CPS}")
A(f"""
v_and_b32 v6, 3, v1
v_sub_u32 v7, 3, v6
v_lshlrev_b32 v7, 4, v7
v_lshlrev_b64 v[54:55], v7, v[48:49]
v_bfe_u32 v7, v1, 2, 1
v_mul_u32_u24 v7, {CHS}, v7
v_mul_u32_u24 v6, {CPS}, v6
v_add3_u32 v6, v6, v7, {KC}
v_mov_b32 v8, 0
v_mov_b32 v9, 0
v_mov_b32 v10, 0
v_mov_b32 v11, 0
s_mov_b64 exec, 0xff
ds_write_b128 v6, v[8:11]
ds_write_b128 v6, v[52:55] offset:16
s_mov_b64 exec, -1
v_lshlrev_b32 v15, 16, v50
""")
ACC = 64; AB = 96; BB = 160; GR = 16; MR = 48; RRa = 232; XR = 224
A(f"""
s_mul_i32 s79, {sCHL}, {KVS}
v_and_b32 v11, 15, v1
v_lshrrev_b32 v12, 4, v1
v_lshlrev_b32 v13, 4, v11
v_lshl_add_u32 v13, v12, 2, v13
s_lshl_b32 s80, {sPAR}, 10
v_add_u32 v13, s80, v13          ; s0
v_and_b32 v6, 3, v11
v_mul_u32_u24 v6, {CPS}, v6
v_lshrrev_b32 v7, 2, v11
v_lshl_add_u32 v6, v7, 3, v6
v_lshl_add_u32 v6, v12, 4, v6
s_mul_i32 s83, {sCHL}, {CHS}
s_lshl_b32 s84, {sPAR}, 6
s_add_u32 s83, s83, s84
s_add_u32 s83, s83, {KC}
v_add_u32 v6, s83, v6            ; vAfrag
v_lshlrev_b32 v7, 4, v12
v_lshlrev_b32 v8, 5, v11
v_sub_u32 v7, v7, v8
s_add_u32 s83, s79, s84
s_add_u32 s83, s83, {KV + 480}
v_add_u32 v7, s83, v7            ; vBfrag
v_lshlrev_b32 v14, 1, v13        ; s0*2
s_lshl_b32 s85, {sCH}, 12
s_add_u32 s85, s85, {XT}
s_add_u32 s80, {sGL}, {oFA}
s_lshl_b32 s81, {sJ}, 2
s_add_u32 s81, s81, s80
""")
wait_role(0)
info_eval(202)
A("s_waitcnt lgkmcnt(0)")
stamp()
A("s_barrier")
stamp()
LW0 = newlab("W0"); LJ = newlab("AJ")
A(f"""
s_cmp_eq_u32 {sWAVE}, 0
s_cbranch_scc1 {LW0}
s_cmp_lg_u32 {sWAVE}, 3
s_cbranch_scc1 {LJ}
v_mov_b32 v104, 0
v_mov_b32 v105, 0
v_mov_b32 v106, 0
v_mov_b32 v107, 0
v_mov_b32 v110, 0x3f803f80
""")
for j in range(8):
    A(f"s_waitcnt vmcnt({7-j})")
    for i in range(4):
        r = 64 + 4 * j + i
        A(f"v_dot2c_f32_bf16 v{104+2*(i&1)}, v{r}, v110\nv_dot2c_f32_bf16 v{105+2*(i&1)}, v{r}, v{r}")
A("v_add_f32 v104, v104, v106\nv_add_f32 v105, v105, v107")
for pat in ["quad_perm:[1,0,3,2]", "quad_perm:[2,3,0,1]", "row_half_mirror"]:
    A(f"v_add_f32_dpp v104, v104, v104 {pat} row_mask:0xf bank_mask:0xf")
    A(f"v_add_f32_dpp v105, v105, v105 {pat} row_mask:0xf bank_mask:0xf")
rowstats_pack(104, 105, 108)
A(f"""
v_mov_b32 v109, {sTAG}
v_lshlrev_b32 v107, 3, v192
s_mov_b32 s82, {XS}
s_mov_b32 exec_lo, 0x01010101
s_mov_b32 exec_hi, 0x01010101
buffer_store_dwordx2 v[108:109], v107, {R4(WS)}, s82 offen sc1
s_mov_b64 exec, -1
s_branch {LJ}
{LW0}:
""")
flag_store("s81", 8, True)
A(f"v_and_b32 v5, 31, v1\nv_lshlrev_b32 v5, 2, v5\nv_add_u32 v5, s80, v5")
poll(5, 8)
A(f"""
s_lshl_b32 s83, {sCH}, 12
s_add_u32 s83, s83, {KVR}
s_mov_b32 m0, {KV}
v_lshlrev_b32 v5, 4, v1
s_add_u32 s84, s83, 4096
buffer_load_dwordx4 v5, {R4(WS)}, s83 offen sc1 lds
buffer_load_dwordx4 v5, {R4(WS)}, s83 offen offset:1024 sc1 lds
buffer_load_dwordx4 v5, {R4(WS)}, s83 offen offset:2048 sc1 lds
buffer_load_dwordx4 v5, {R4(WS)}, s83 offen offset:3072 sc1 lds
s_mov_b32 m0, {KV + KVS}
s_nop 0
buffer_load_dwordx4 v5, {R4(WS)}, s84 offen sc1 lds
buffer_load_dwordx4 v5, {R4(WS)}, s84 offen offset:1024 sc1 lds
buffer_load_dwordx4 v5, {R4(WS)}, s84 offen offset:2048 sc1 lds
buffer_load_dwordx4 v5, {R4(WS)}, s84 offen offset:3072 sc1 lds
""")
pf_rot(0, 64, 5, 8, 252); pf_rot(64, 64, 5, 8, 252); pf_rot(128, 32, 5, 8, 252)
A(f"""
{LJ}:
""")
stamp()
def creadsA(j, buf):
    L = []
    for U in range(8):
        a = AB + buf * 32 + 4 * U
        L.append(f"ds_read_b64 v[{a}:{a+1}], v6 offset:{512*U + 128*j}")
        L.append(f"ds_read_b64 v[{a+2}:{a+3}], v6 offset:{512*U + 128*j + 8}")
    return L
def creadsB(j, buf):
    return [f"ds_read_b128 v[{BB+buf*32+4*U}:{BB+buf*32+4*U+3}], v7 offset:{3584 - 512*U + 128*j}" for U in range(8)]
def xs_loads():
    A(f"v_lshlrev_b32 v5, 3, v13\ns_mov_b32 s87, {XS}\ns_mov_b32 s88, {XS+4096}")
    for t in range(4):
        so = "s87" if t < 2 else "s88"
        A(f"buffer_load_dwordx4 v[{GR+8*t}:{GR+8*t+3}], v5, {R4(WS)}, {so} offen offset:{2048*(t&1)} sc1")
        A(f"buffer_load_dwordx4 v[{GR+8*t+4}:{GR+8*t+7}], v5, {R4(WS)}, {so} offen offset:{2048*(t&1)+16} sc1")
def gather(first):
    return (f"s_mov_b32 m0, s86\n" if first else "") + f"buffer_load_dword v14, {R4(SQ)}, s85 offen lds\ns_add_u32 s85, s85, 65536\ns_add_u32 m0, m0, 256"
for r in creadsA(0, 0): A(r)
LW = only_wave(0)
A(f"s_waitcnt vmcnt(3)\n{LW}:\ns_barrier")
stamp()
for r in creadsB(0, 0): A(r)
pairs = [(U, W) for U in range(8) for W in range(8) if U + W <= 7]
first = set()
for j in range(4):
    buf = j & 1
    A("s_waitcnt lgkmcnt(0)")
    nxt = []
    if j < 3:
        a_, b_ = creadsA(j + 1, buf ^ 1), creadsB(j + 1, buf ^ 1)
        for U in range(8): nxt += [a_[2*U], a_[2*U+1], b_[U]]
    vm = {}
    fill = []
    if j == 0:
        A(f"""
        s_lshl_b32 s83, {sWAVE}, 12
        s_add_u32 s84, s83, {XS}
        s_add_u32 s83, s83, {XSL}
        s_mov_b32 m0, s83
        v_lshlrev_b32 v5, 4, v1
        """)
        for t in range(4): vm[1 + 2 * t] = f"buffer_load_dwordx2 v[{XR+2*t}:{XR+2*t+1}], v14, {R4(WS)}, s85 offen offset:{512*t} sc1"
        for c in range(4): vm[20 + 3 * c] = f"buffer_load_dwordx4 v5, {R4(WS)}, s84 offen offset:{1024*c} sc1 lds"
        vm[33] = f"v_and_b32 v250, 31, v1\nv_lshlrev_b32 v250, 2, v250\nbuffer_load_dword v251, v250, {R4(WS)}, {sGL} offen sc1"
    if j in (1, 2):
        for i in range(7): vm[2 + 5 * i] = w2_dma(m0base=sW2W if (j == 1 and i == 0) else None)
    if j == 3:
        for i in range(6): vm[1 + 3 * i] = w2_dma()
        A("s_waitcnt vmcnt(14)\ns_barrier")
        info_eval(251)
        A(f"v_lshlrev_b32 v5, 3, v13\nv_add_u32 v5, {XSL}, v5\ns_add_u32 s83, s79, {KV + 4088 - 1536}\nv_sub_u32 v10, s83, v14")
        for t in range(4):
            nxt.append(f"ds_read_b128 v[{GR+8*t}:{GR+8*t+3}], v5 offset:{2048*t}")
            nxt.append(f"ds_read_b128 v[{GR+8*t+4}:{GR+8*t+7}], v5 offset:{2048*t+16}")
        for t in range(4): nxt.append(f"ds_read_b64 v[{112+2*t}:{113+2*t}], v10 offset:{1536-512*t}")
    for idx, (U, W) in enumerate(pairs):
        acc = ACC + 4 * (U + W)
        a = AB + buf * 32 + 4 * U; b = BB + buf * 32 + 4 * W
        cin = f"v[{acc}:{acc+3}]" if acc in first else "0"
        first.add(acc)
        A(f"v_mfma_f32_16x16x32_bf16 v[{acc}:{acc+3}], v[{a}:{a+3}], v[{b}:{b+3}], {cin}")
        if nxt and idx >= (2 if j < 3 else 0): A(nxt.pop(0))
        if idx in vm: A(vm[idx])
        if j == 3 and idx == 17:
            Lok = newlab("XSOK"); Lre = newlab("XSRE")
            tags = [GR + 2 * i + 1 for i in range(16)]
            A(f"s_waitcnt lgkmcnt(0)\ns_mov_b32 s96, 0\n{Lre}:")
            A(f"v_min3_u32 v8, v{tags[0]}, v{tags[1]}, v{tags[2]}\nv_max3_u32 v9, v{tags[0]}, v{tags[1]}, v{tags[2]}")
            for i in range(3, 15, 2):
                A(f"v_min3_u32 v8, v8, v{tags[i]}, v{tags[i+1]}\nv_max3_u32 v9, v9, v{tags[i]}, v{tags[i+1]}")
            A(f"""
            v_min_u32 v8, v8, v{tags[15]}
            v_max_u32 v9, v9, v{tags[15]}
            v_xor_b32 v8, {sTAG}, v8
            v_xor_b32 v9, {sTAG}, v9
            v_or_b32 v8, v8, v9
            v_cmp_ne_u32 vcc, 0, v8
            s_cbranch_vccz {Lok}
            s_add_u32 s96, s96, 1
            s_cmp_ge_u32 s96, {POLL_LIMIT}
            s_cbranch_scc1 {Lok}
            """)
            xs_loads()
            A(f"s_waitcnt vmcnt(0)\ns_branch {Lre}\n{Lok}:")
            for i in range(16):
                fill.append(f"v_and_b32 v{RRa+i}, 0xffff0000, v{GR+2*i}")
                fill.append(f"v_lshlrev_b32 v{MR+i}, 16, v{GR+2*i}")
                fill.append(f"v_rcp_f32 v{RRa+i}, v{RRa+i}")
        for _ in range(3):
            if fill: A(fill.pop(0))
    assert not nxt and not fill, (j, len(nxt), len(fill))
    if j < 3: stamp()
stamp()
A(f"""
v_lshlrev_b32 v8, 4, v1
s_lshl_b32 s83, {sWAVE}, 12
s_add_u32 s83, s83, {RED}
v_add_u32 v9, s83, v8
s_xor_b32 s84, {sWAVE}, 1
s_lshl_b32 s84, s84, 12
s_add_u32 s84, s84, {RED}
v_add_u32 v8, s84, v8
s_cmp_eq_u32 {sPAR}, 0
s_cbranch_scc1 C_P0
""")
for j in range(4): A(f"ds_write_b128 v9, v[{ACC+4*j}:{ACC+4*j+3}] offset:{1024*j}")
A("s_nop 1")
for j in range(8): A(f"v_mov_b64 v[{ACC+2*j}:{ACC+2*j+1}], v[{ACC+16+2*j}:{ACC+16+2*j+1}]")
A("s_branch C_PJ\nC_P0:\ns_nop 7")
for j in range(4): A(f"ds_write_b128 v9, v[{ACC+16+4*j}:{ACC+16+4*j+3}] offset:{1024*j}")
A("C_PJ:")
PR = 160; T = 120; OUTR = 128; Q = 136; XF = 176
A(f"""
s_and_b32 s83, {sCH}, 2
v_and_b32 v5, 3, v11
v_xor_b32 v5, s83, v5
v_lshlrev_b32 v5, 5, v5
v_lshl_add_u32 v5, v12, 3, v5
v_lshrrev_b32 v9, 2, v11
v_lshl_add_u32 v5, v9, 16, v5
s_lshl_b32 s83, {sCH}, 7
s_lshl_b32 s84, {sPAR}, 20
s_add_u32 s83, s83, s84
s_add_u32 s83, s83, {HT}
v_add_u32 v5, s83, v5
s_mov_b32 s88, 0
s_mov_b32 s89, {4*65536}
s_mov_b32 s90, {8*65536}
s_mov_b32 s91, {12*65536}
s_waitcnt lgkmcnt(0)
s_barrier
""")
for j in range(4): A(f"ds_read_b128 v[{PR+4*j}:{PR+4*j+3}], v8 offset:{1024*j}")
for j in range(4):
    acc = ACC + 4 * j; kv = 112 + 2 * j; x = XR + 2 * j; m = MR + 4 * j; rs = RRa + 4 * j; X = XF + 4 * j; q = Q + 4 * j
    A(f"""
    v_and_b32 v{T}, 0xffff0000, v{kv+1}
    v_lshlrev_b32 v{T+1}, 16, v{kv+1}
    v_and_b32 v{T+2}, 0xffff0000, v{kv}
    v_lshlrev_b32 v{T+3}, 16, v{kv}
    v_lshlrev_b32 v{X}, 16, v{x}
    v_and_b32 v{X+1}, 0xffff0000, v{x}
    v_lshlrev_b32 v{X+2}, 16, v{x+1}
    v_and_b32 v{X+3}, 0xffff0000, v{x+1}
    v_pk_fma_f32 v[{acc}:{acc+1}], v[{T}:{T+1}], v[14:15], v[{acc}:{acc+1}] op_sel:[0,1,0] op_sel_hi:[1,1,1]
    v_pk_fma_f32 v[{acc+2}:{acc+3}], v[{T+2}:{T+3}], v[14:15], v[{acc+2}:{acc+3}] op_sel:[0,1,0] op_sel_hi:[1,1,1]
    v_pk_add_f32 v[{q}:{q+1}], v[{X}:{X+1}], v[{m}:{m+1}] neg_lo:[0,1] neg_hi:[0,1]
    v_pk_add_f32 v[{q+2}:{q+3}], v[{X+2}:{X+3}], v[{m+2}:{m+3}] neg_lo:[0,1] neg_hi:[0,1]
    v_pk_mul_f32 v[{q}:{q+1}], v[{q}:{q+1}], v[{rs}:{rs+1}]
    v_pk_mul_f32 v[{q+2}:{q+3}], v[{q+2}:{q+3}], v[{rs+2}:{rs+3}]
    """)
stamp()
for j in range(4):
    acc = ACC + 4 * j; P = PR + 4 * j; X = XF + 4 * j; q = Q + 4 * j
    A(f"""
    s_waitcnt lgkmcnt({3-j})
    v_pk_add_f32 v[{acc}:{acc+1}], v[{acc}:{acc+1}], v[{P}:{P+1}]
    v_pk_add_f32 v[{acc+2}:{acc+3}], v[{acc+2}:{acc+3}], v[{P+2}:{P+3}]
    v_pk_fma_f32 v[{q}:{q+1}], v[{q}:{q+1}], v[{acc}:{acc+1}], v[{X}:{X+1}]
    v_pk_fma_f32 v[{q+2}:{q+3}], v[{q+2}:{q+3}], v[{acc+2}:{acc+3}], v[{X+2}:{X+3}]
    v_cvt_pk_bf16_f32 v{OUTR+2*j}, v{q}, v{q+1}
    v_cvt_pk_bf16_f32 v{OUTR+2*j+1}, v{q+2}, v{q+3}
    buffer_store_dwordx2 v[{OUTR+2*j}:{OUTR+2*j+1}], v5, {R4(WS)}, s{88+j} offen sc1
    """)
stamp()
A(f"v_add_u32 v12, {sW2W}, v3\nv_add_u32 v13, {sW2W}, v4\ns_waitcnt vmcnt(4)")
w2_tr(R1, 0, 12, 13)
A(f"""
s_add_u32 s76, {sGL}, {oFB}
s_lshl_b32 s77, {sJ}, 2
s_add_u32 s77, s77, s76
s_lshl_b32 s78, {sWAVE}, 13
s_add_u32 s78, s78, {W3W}
v_add_u32 v12, s78, v3
v_add_u32 v13, s78, v4
v_lshrrev_b32 v5, 2, v1
v_mul_u32_u24 v5, 3584, v5
v_and_b32 v6, 3, v1
v_lshl_add_u32 v5, v6, 4, v5
s_lshl_b32 s79, {sFT}, 6
v_add_u32 v5, s79, v5
s_and_b32 {sROT}, {sFG}, 3
s_lshl_b32 s79, {sROT}, 3
s_lshl_b32 s80, {sWAVE}, 15
v_bfe_u32 v14, v1, 2, 2
v_bfe_u32 v7, v1, 4, 1
v_lshrrev_b32 v8, 5, v1
v_lshlrev_b32 v9, 3, v8
v_add_u32 v9, v9, v14
v_lshlrev_b32 v9, 6, v9
v_lshl_add_u32 v9, v7, 5, v9
v_lshl_add_u32 v9, v6, 3, v9
v_add_u32 v9, s80, v9
v_add_u32 v14, s80, v3
v_add_u32 v15, s80, v4
v_mov_b32 v10, 0
v_mov_b32 v11, 0x3f803f80
v_mov_b32 v20, 0
v_mov_b32 v21, 0
v_mov_b32 v22, 0
s_waitcnt vmcnt(0) lgkmcnt(0)
s_barrier
""")
stamp()
L = only_wave(0)
flag_store("s77", 6, True)
A(f"{L}:\ns_cmp_ge_u32 {sFG}, 14\ns_cbranch_scc1 B_STATS\ns_mov_b32 m0, s80")
WF = 128
for i in range(32):
    A(f"""
    s_mul_i32 s81, s79, 57344
    buffer_load_dwordx4 v5, {R4(SW1)}, s81 offen lds
    s_add_u32 s79, s79, 1
    s_and_b32 s79, s79, 31
    s_add_u32 m0, m0, 1024
    """)
for i in range(8): A(w2_dma(m0base="s78" if i == 0 else None))
def dots(lo, hi):
    for i in range(lo, hi): A(f"v_dot2c_f32_bf16 v{[10,20,21,22][i%4]}, v{WF+i}, v11")
for q in range(4):
    A(f"s_waitcnt vmcnt({32 - 8*q})")
    for i in range(8 * q, 8 * q + 8):
        r = WF + 4 * i
        A(f"ds_read_b64_tr_b16 v[{r}:{r+1}], v9 offset:{1024*i}")
        A(f"ds_read_b64_tr_b16 v[{r+2}:{r+3}], v9 offset:{1024*i+256}")
    if q > 0:
        A("s_waitcnt lgkmcnt(15)")
        dots(32 * (q - 1), 32 * q)
A("s_waitcnt vmcnt(0)")
w2_tr(4, R1, 12, 13)
A("s_waitcnt lgkmcnt(15)")
dots(96, 128)
A(f"""
v_add_f32 v10, v10, v20
v_add_f32 v21, v21, v22
v_add_f32 v10, v10, v21
v_mov_b32 v20, v10
s_nop 1
v_permlane32_swap_b32 v10, v20
v_add_f32 v10, v10, v20
""")
for i in range(64): A(f"v_accvgpr_write_b32 a{160+i}, v{192+i}")
A(f"""
s_branch B_JOIN
B_STATS:
""")
L = only_wave(1)
A(f"""
s_cmp_lg_u32 {sJ}, 31
s_cbranch_scc1 {L}
v_and_b32 v5, 31, v1
v_lshlrev_b32 v5, 2, v5
v_add_u32 v5, s76, v5
""")
poll(5, 6)
A(f"""
v_lshlrev_b32 v5, 7, v1
s_lshl_b32 s79, {sX}, 2
s_add_u32 s79, s79, {FG}
v_mov_b32 v6, {sTAG}
buffer_store_dword v6, v5, {R4(WS)}, s79 offen sc1
{L}:
B_JOIN:
""")
stamp()
L = only_wave(0)
A(f"""
v_and_b32 v5, 7, v1
v_lshlrev_b32 v5, 2, v5
s_and_b32 s79, s2, 63
s_lshl_b32 s79, s79, 7
s_add_u32 s79, s79, {FG}
v_add_u32 v5, s79, v5
""")
poll(5, 6)
A(f"s_cmp_lg_u32 s2, 255\ns_cbranch_scc1 {L}\ns_mov_b32 s79, {EPOCH}")
flag_store("s79", 6, False)
A(f"{L}:\ns_waitcnt lgkmcnt(0)\ns_barrier")
stamp()
A(f"s_cmp_ge_u32 {sFG}, 14\ns_cbranch_scc1 P2_STATS")
def pf_late(va, vd):
    A(f"s_mul_i32 s88, {sWAVE}, 56\ns_add_u32 s88, s88, 224")
    pf_rot("s88", 56, va, vd, vd)
def p3_setup():
    A(f"""
    v_lshlrev_b32 v247, 4, v1
    v_lshrrev_b32 v244, 2, v1
    v_and_b32 v245, 3, v1
    v_bfe_u32 v246, v244, 1, 1
    s_and_b32 s68, {sST}, 1
    v_xor_b32 v246, s68, v246
    v_lshlrev_b32 v246, 6, v246
    v_lshl_add_u32 v246, v245, 4, v246
    v_lshl_add_u32 v246, v244, 7, v246
    s_lshr_b32 s69, {sST}, 1
    s_lshl_b32 s70, s69, 16
    s_lshl_b32 s71, {sDT}, 12
    s_add_u32 s70, s70, s71
    s_lshl_b32 s71, {sPAR}, 11
    s_add_u32 s70, s70, s71
    s_add_u32 s70, s70, {HT}
    s_add_u32 s71, s70, {65536 - 1024}
    s_lshl_b32 {sRES}, {sWAVE}, 11
    s_add_u32 {sRES}, {sRES}, 155648
    s_mov_b32 m0, {sRES}
    s_nop 0
    buffer_load_dwordx4 v246, {R4(WS)}, s70 offen sc1 lds
    buffer_load_dwordx4 v246, {R4(WS)}, s71 offen offset:1024 sc1 lds
    s_mul_i32 s72, {sWAVE}, {28*1024}
    s_add_u32 s72, s72, {H1F}
    s_mul_i32 s73, {sST}, 114688
    s_add_u32 s73, s73, s72
    s_add_u32 s75, s73, 28672
    s_lshl_b32 s88, {sR3}, 12
    s_add_u32 s73, s73, s88
    v_min_u32 v244, 13, v1
    s_mul_i32 s74, {sWAVE}, 56
    v_lshlrev_b32 v244, 2, v244
    s_and_b32 s69, {sSM}, 1
    s_lshl_b32 s69, s69, 9
    s_add_u32 s69, s69, s74
    s_add_u32 s69, s69, {sGL}
    s_add_u32 s69, s69, {oFC}
    v_add_u32 v248, s69, v244
    v_add_u32 v249, 256, v248
    """)
ACC2 = 64; BF = 16; CS = 40; SR = 56; TT = 192; OO = 224
A(f"""
v_lshlrev_b32 v9, 4, v1
s_lshl_b32 s76, {sMT}, 17
s_add_u32 s76, s76, {HT}
s_lshl_b32 s77, {sWAVE}, 12
s_add_u32 s76, s76, s77
s_mov_b32 s80, {sROT}
""")
nph = [0]
def issue2():
    q = nph[0]; nph[0] += 1
    A(f"""
    s_lshl_b32 s79, s80, 14
    s_add_u32 s79, s79, s76
    s_mov_b32 m0, s77
    s_add_u32 s80, s80, 1
    s_and_b32 s80, s80, 3
    s_add_u32 s77, s77, 16384
    """)
    if q == 3: A("s_add_u32 s76, s76, 65536")
    return [f"buffer_load_dwordx4 v9, {R4(WS)}, s79 offen offset:{1024*c} sc1 lds" for c in range(4)]
PRE = env("PRE", "3")
for p in range(PRE):
    for l in issue2(): A(l)
A(f"""
v_bfe_u32 v12, v1, 2, 2           ; r
v_and_b32 v13, 3, v1
v_bfe_u32 v14, v1, 4, 1
v_lshrrev_b32 v15, 5, v1
v_lshlrev_b32 v11, 3, v15
v_add_u32 v11, v11, v12
v_lshlrev_b32 v11, 7, v11
v_lshl_add_u32 v11, v14, 5, v11
v_lshl_add_u32 v11, v13, 3, v11
v_lshrrev_b32 v13, 1, v12
v_lshl_add_u32 v5, v13, 6, v11
v_xor_b32 v6, 64, v5
v_add_u32 v7, 0x10000, v5
v_add_u32 v8, 0x10000, v6
v_and_b32 v12, 31, v1
v_lshlrev_b32 v11, 3, v12
s_and_b32 s81, {sMT}, 1
s_lshl_b32 s82, s81, 9
s_add_u32 s82, s82, {sGL}
s_add_u32 s82, s82, {oFC}
s_lshl_b32 s83, {sFT}, 2
s_add_u32 s82, s82, s83
s_lshl_b32 s81, s81, 10
s_add_u32 s81, s81, {sGL}
s_add_u32 s81, s81, {oHST}
v_lshlrev_b32 v12, 2, v12
v_add_u32 v12, s78, v12
ds_write_b32 v12, v10
v_lshlrev_b32 v0, 4, v15
v_add_u32 v0, s78, v0
s_lshl_b32 s83, {sFT}, 11
s_add_u32 s83, s83, {H1F}
s_mul_i32 s84, {sMT}, {4*114688}
s_add_u32 s83, s83, s84
s_add_u32 s84, s83, 114688
s_add_u32 s85, s83, {2*114688}
s_add_u32 s86, s83, {3*114688}
s_lshl_b32 s87, {sWAVE}, 14
s_waitcnt lgkmcnt(0)
""")
for g in range(4): A(f"ds_read_b128 v[{CS+4*g}:{CS+4*g+3}], v0 offset:{32*g}")
def trreads(t):
    h, ks = divmod(t, 32); L = []; buf = t % 3
    for j in range(2):
        b = BF + 8 * buf + 4 * j; v = 5 + 2 * h + j
        L.append(f"ds_read_b64_tr_b16 v[{b}:{b+1}], v{v} offset:{2048*ks}")
        L.append(f"ds_read_b64_tr_b16 v[{b+2}:{b+3}], v{v} offset:{2048*ks+512}")
    return L
HS = 240
def hs_loads(h):
    for j in range(2): A(f"buffer_load_dwordx2 v[{HS+2*j}:{HS+2*j+1}], v11, {R4(WS)}, s81 offen offset:{512*h+256*j} sc1")
def hs_check(h):
    Lok = newlab("HSOK"); Lre = newlab("HSRE")
    A(f"""
    s_mov_b32 s96, 0
    {Lre}:
    v_xor_b32 v12, {sTAG}, v{HS+1}
    v_xor_b32 v13, {sTAG}, v{HS+3}
    v_or_b32 v12, v12, v13
    v_cmp_ne_u32 vcc, 0, v12
    s_cbranch_vccz {Lok}
    s_add_u32 s96, s96, 1
    s_cmp_ge_u32 s96, {POLL_LIMIT}
    s_cbranch_scc1 {Lok}
    """)
    hs_loads(h)
    A(f"s_waitcnt vmcnt(0)\ns_branch {Lre}\n{Lok}:")
    for j in range(2):
        S = SR + 4 * j
        A(f"""
        v_and_b32 v{S+2}, 0xffff0000, v{HS+2*j}
        v_lshlrev_b32 v{S}, 16, v{HS+2*j}
        v_rcp_f32 v{S+1}, v{S+2}
        v_xor_b32 v{S}, 0x80000000, v{S}
        v_mul_f32 v{S+1}, 0xbfb8aa3b, v{S+1}
        """)
def epi_list(h, packed):
    L = []
    for j in range(2):
        S = SR + 4 * j; O = OO + 8 * j
        for hh in range(2):
            Tt = TT + 8 * ((2 * j + hh) % 4)
            a0 = ACC2 + 32 * h + 16 * j + 8 * hh
            if packed:
                for p in range(4): L.append(f"v_pk_fma_f32 v[{a0+2*p}:{a0+2*p+1}], v[{CS+8*hh+2*p}:{CS+8*hh+2*p+1}], v[{S}:{S+1}], v[{a0+2*p}:{a0+2*p+1}] op_sel_hi:[1,0,1]")
                for p in range(4): L.append(f"v_pk_mul_f32 v[{Tt+2*p}:{Tt+2*p+1}], v[{a0+2*p}:{a0+2*p+1}], v[{S}:{S+1}] op_sel:[0,1] op_sel_hi:[1,1]")
            else:
                for p in range(8): L.append(f"v_fmac_f32 v{a0+p}, v{CS+8*hh+p}, v{S}")
                for p in range(8): L.append(f"v_mul_f32 v{Tt+p}, v{a0+p}, v{S+1}")
            for p in range(8): L.append(f"v_exp_f32 v{Tt+p}, v{Tt+p}")
            if packed:
                for p in range(4): L.append(f"v_pk_fma_f32 v[{Tt+2*p}:{Tt+2*p+1}], v[{Tt+2*p}:{Tt+2*p+1}], v[{S+2}:{S+3}], v[{S+2}:{S+3}] op_sel_hi:[1,0,0]")
            else:
                for p in range(8): L.append(f"v_fma_f32 v{Tt+p}, v{Tt+p}, v{S+2}, v{S+2}")
            for p in range(8): L.append(f"v_rcp_f32 v{Tt+p}, v{Tt+p}")
            if packed:
                for p in range(4): L.append(f"v_pk_mul_f32 v[{Tt+2*p}:{Tt+2*p+1}], v[{Tt+2*p}:{Tt+2*p+1}], v[{a0+2*p}:{a0+2*p+1}]")
            else:
                for p in range(8): L.append(f"v_mul_f32 v{Tt+p}, v{Tt+p}, v{a0+p}")
            for p in range(4): L.append(f"v_cvt_pk_bf16_f32 v{O+4*hh+p}, v{Tt+2*p}, v{Tt+2*p+1}")
            L.append(f"buffer_store_dwordx4 v[{O+4*hh}:{O+4*hh+3}], v9, {R4(WS)}, s{83+2*h+j} offen offset:{1024*hh} sc1")
    return L
A(f"s_waitcnt vmcnt({4*(PRE-1)}) lgkmcnt(0)\ns_barrier")
stamp()
for r in trreads(0) + trreads(1): A(r)
vq = []
for p in range(1, PRE): vq += [("ph", p)] * 4
def V_(txt, tag):
    A(txt); vq.append(tag)
def vwait(tag):
    global vq
    idx = [i for i, t in enumerate(vq) if t == tag]
    if not idx: return
    n = len(vq) - 1 - max(idx)
    A(f"s_waitcnt vmcnt({n})"); vq = vq[max(idx) + 1:]
epi = []
EP_PER = env("EPPER", "4")
for t in range(64):
    h, ks = divmod(t, 32); q, c = divmod(t, 8)
    A(f"s_waitcnt lgkmcnt({4 if t < 63 else 0})")
    fill = []
    if c == 0 and nph[0] < 8:
        qq = nph[0]; fill += [(l, ("ph", qq)) for l in issue2()]
    if c == 6 and q < 7:
        vwait(("ph", q + 1)); A("s_barrier")
    if t == 26:
        hs_loads(0); vq += [("hs", 0)] * 2
    if t == 24: pf_late(12, 13); vq.append(("pf", 0))
    if t == 32: stamp()
    if t == 34:
        vwait(("hs", 0)); hs_check(0); epi = epi_list(0, env("EPK", "0"))
    if t == 39:
        pass
    if 40 <= t < 52: fill.append((w2_dma(m0base="s87" if t == 40 else None), ("w2", 0)))
    if t == 58: hs_loads(1); vq += [("hs", 1)] * 2
    nxt = trreads(t + 2) if t < 62 else []
    w = f"v[{WF+4*ks}:{WF+4*ks+3}]" if ks < 16 else f"a[{160+4*(ks-16)}:{163+4*(ks-16)}]"
    for j in range(2):
        b = BF + 8 * (t % 3) + 4 * j; acc = ACC2 + 32 * h + 16 * j
        cin = "0" if ks == 0 else f"v[{acc}:{acc+15}]"
        A(f"v_mfma_f32_32x32x16_bf16 v[{acc}:{acc+15}], {w}, v[{b}:{b+3}], {cin}")
        for _ in range(2):
            if nxt: A(nxt.pop(0))
        if fill:
            x_, tg = fill.pop(0); V_(x_, tg)
        for _ in range(EP_PER):
            if epi:
                e = epi.pop(0)
                if e.startswith("buffer_store"): V_(e, ("st", 0))
                else: A(e)
    while fill and c == 1:
        x_, tg = fill.pop(0); V_(x_, tg)
    if c == 0 and fill:
        carry = fill
        for x_, tg in carry: V_(x_, tg)
for e in epi:
    if e.startswith("buffer_store"): V_(e, ("st", 0))
    else: A(e)
stamp()
vwait(("st", 0))
flag_store("s82", 12, True); vq.append(("fl", 0))
vwait(("hs", 1)); hs_check(1)
A(f"v_add_u32 v12, s87, v3\nv_add_u32 v13, s87, v4\ns_barrier")
w2_tr(6, 14, 12, 13)
stamp()
A(f"s_add_u32 s87, s87, 65536")
p3_setup()
el = epi_list(1, 1)
nd = 0
for i, e in enumerate(el):
    A(e)
    if i % 8 == 3 and nd < 16:
        A(w2_dma(m0base="s87" if nd == 0 else None)); nd += 1
    if i == 108: A(f"buffer_load_dword v250, v248, {R4(WS)}, 0 offen sc1"); nd_at = nd; st_after = sum(1 for x in el[i+1:] if x.startswith("buffer_store"))
assert nd == 16
stamp()
Lok = newlab("FCA")
A(f"""
s_add_u32 s82, s82, 256
v_add_u32 v15, s87, v3
v_add_u32 v16, s87, v4
s_mov_b32 s95, 1
s_waitcnt vmcnt({16 - nd_at + st_after})
v_cmp_ne_u32 vcc, {sTAG}, v250
s_cbranch_vccz P3_START
""")
poll(248, 250)
A("s_branch P3_START")
A("P2_STATS:")
nstamp[0] = 17
A(f"""
s_sub_u32 s76, {sFG}, 14
v_and_b32 v5, 7, v0
v_lshrrev_b32 v6, 3, v0
v_bfe_u32 v7, v6, 1, 1
v_lshlrev_b32 v7, 2, v7
v_xor_b32 v7, v7, v5
v_lshlrev_b32 v7, 4, v7
v_lshl_add_u32 v7, v6, 7, v7
s_lshl_b32 s79, {sMT}, 1
s_add_u32 s79, s79, s76
s_lshl_b32 s79, s79, 16
s_add_u32 s79, s79, {HT}
""")
for it in range(16):
    A(f"buffer_load_dwordx4 v[{64+4*it}:{67+4*it}], v7, {R4(WS)}, s79 offen sc1\ns_add_u32 s79, s79, 4096")
for i in range(16): A(f"v_mov_b32 v{32+i}, 0")
for it in range(16):
    A(f"s_waitcnt vmcnt({15-it})")
    for d in range(4):
        r = 64 + 4 * it + d; t = 20 + 2 * (d & 1)
        A(f"""
        v_lshlrev_b32 v{t}, 16, v{r}
        v_and_b32 v{t+1}, 0xffff0000, v{r}
        v_pk_add_f32 v[{32+2*d}:{33+2*d}], v[{32+2*d}:{33+2*d}], v[{t}:{t+1}]
        v_pk_fma_f32 v[{40+2*d}:{41+2*d}], v[{t}:{t+1}], v[{t}:{t+1}], v[{40+2*d}:{41+2*d}]
        """)
stamp()
for i in range(16): A(f"v_add_f32_dpp v{32+i}, v{32+i}, v{32+i} row_ror:8 row_mask:0xf bank_mask:0xf")
for i in range(16): A(f"v_mov_b32 v{48+i}, v{32+i}")
for i in range(16): A(f"v_permlane16_swap_b32 v{32+i}, v{48+i}")
for i in range(16): A(f"v_add_f32 v{32+i}, v{32+i}, v{48+i}")
for i in range(16): A(f"v_mov_b32 v{48+i}, v{32+i}")
for i in range(16): A(f"v_permlane32_swap_b32 v{32+i}, v{48+i}")
for i in range(16): A(f"v_add_f32 v{32+i}, v{32+i}, v{48+i}")
SRED = 131072
A(f"""
v_lshlrev_b32 v8, 6, v5
s_lshl_b32 s79, {sWAVE}, 9
s_add_u32 s79, s79, {SRED}
v_add_u32 v8, s79, v8
s_mov_b64 exec, 0xff
ds_write_b128 v8, v[32:35]
ds_write_b128 v8, v[36:39] offset:16
ds_write_b128 v8, v[40:43] offset:32
ds_write_b128 v8, v[44:47] offset:48
s_mov_b64 exec, -1
s_waitcnt lgkmcnt(0)
s_barrier
""")
L = only_wave(0)
A(f"""
v_lshrrev_b32 v8, 3, v1
v_lshlrev_b32 v8, 6, v8
v_and_b32 v9, 7, v1
v_lshl_add_u32 v8, v9, 2, v8
v_add_u32 v8, {SRED}, v8
""")
for w in range(4): A(f"ds_read_b32 v{20+w}, v8 offset:{512*w}\nds_read_b32 v{24+w}, v8 offset:{512*w+32}")
A("""
s_waitcnt lgkmcnt(0)
v_add_f32 v20, v20, v21
v_add_f32 v22, v22, v23
v_add_f32 v24, v24, v25
v_add_f32 v26, v26, v27
v_add_f32 v20, v20, v22
v_add_f32 v24, v24, v26
""")
rowstats_pack(20, 24, 28)
A(f"""
v_mov_b32 v29, {sTAG}
v_lshlrev_b32 v8, 3, v1
s_and_b32 s79, {sMT}, 1
s_lshl_b32 s79, s79, 10
s_lshl_b32 s80, s76, 9
s_add_u32 s79, s79, s80
s_add_u32 s79, s79, {sGL}
s_add_u32 s79, s79, {oHST}
buffer_store_dwordx2 v[28:29], v8, {R4(WS)}, s79 offen sc1
{L}:
""")
stamp()
pf_late(20, 21)
A(f"s_lshl_b32 s87, {sWAVE}, 15\nv_add_u32 v12, s87, v3\nv_add_u32 v13, s87, v4")
for i in range(32): A(w2_dma(m0base="s87" if i == 0 else None))
A("s_waitcnt vmcnt(0)")
w2_tr(16, R1, 12, 13)
A("s_waitcnt lgkmcnt(0)")
for i in range(4): A(w2_dma(m0base="s87" if i == 0 else None))
A("s_waitcnt vmcnt(0)")
w2_tr(2, R1 + 16, 12, 13)
A("s_mov_b32 s95, 0")
p3_setup()
poll(248, 250)
A("P3_START:\ns_waitcnt lgkmcnt(0)")
nstamp[0] = 21
stamp()
ACC3 = 64; HB = 128; NS3 = 24; AH3 = env("AH3", "14")
RD3 = 131072
stamp()
cnt3 = [0]
def load3():
    t = cnt3[0]; cnt3[0] += 1
    ks = t % 28
    sl = HB + (t % NS3) * 4
    A(f"buffer_load_dwordx4 v[{sl}:{sl+3}], v247, {R4(WS)}, s73 offen offset:{1024*(ks%4)} sc1")
    if ks % 4 == 3: A("s_add_u32 s73, s73, 4096\ns_cmp_eq_u32 s73, s75\ns_cselect_b32 s88, 28672, 0\ns_sub_u32 s73, s73, s88")
    if t == 27: A(f"s_add_u32 s73, s73, {2*114688}\ns_add_u32 s75, s75, {2*114688}")
for ks in range(AH3): load3()
A(f"""
v_bfe_u32 v5, v1, 2, 2
v_and_b32 v6, 3, v1
v_bfe_u32 v7, v1, 4, 1
v_lshrrev_b32 v8, 5, v1
v_lshlrev_b32 v9, 2, v8
v_add_u32 v9, v9, v5
v_lshlrev_b32 v9, 6, v9
v_lshl_add_u32 v9, v7, 5, v9
v_lshl_add_u32 v9, v6, 3, v9
v_add_u32 v9, {sRES}, v9
v_and_b32 v5, 31, v1
v_lshlrev_b32 v5, 10, v5
v_lshl_add_u32 v5, v8, 4, v5
s_lshl_b32 s77, {sST}, 15
s_lshl_b32 s78, {sDT}, 6
s_add_u32 s77, s77, s78
s_lshl_b32 s78, {sPAR}, 5
s_add_u32 s77, s77, s78
s_add_u32 s78, s77, 65536
s_mul_i32 s76, {sWAVE}, 6144
s_add_u32 s76, s76, {RD3}
v_add_u32 v10, s76, v247
""")
for j in range(1, 4):
    A(f"s_xor_b32 s76, {sWAVE}, {j}\ns_mul_i32 s76, s76, 6144\ns_add_u32 s76, s76, {RD3 + (j-1)*2048}\nv_add_u32 v{10+j}, s76, v247")
A("s_barrier")
def red_write(ps):
    base = ACC3 + 32 * ps
    L0 = newlab("RP"); L1 = newlab("RP")
    A(f"s_cmp_eq_u32 {sPAR}, 0\ns_cbranch_scc0 {L0}")
    for par in range(2):
        for j in (3, 2, 1):
            a, e = j >> 1, j & 1
            r = base + 16 * a + 8 * (par ^ e)
            A(f"ds_write_b128 v{10+j}, v[{r}:{r+3}] offset:{24576*0}\nds_write_b128 v{10+j}, v[{r+4}:{r+7}] offset:1024")
        r = base + 8 * par
        for p in range(4): A(f"v_mov_b64 v[{48+2*p}:{49+2*p}], v[{r+2*p}:{r+2*p+1}]")
        if par == 0: A(f"s_branch {L1}\n{L0}:\ns_nop 7\ns_nop 3")
    A(f"{L1}:")
def red_final(ps):
    L = []
    for j in range(3):
        for g in range(2): L.append(f"ds_read_b128 v[{24+8*j+4*g}:{27+8*j+4*g}], v10 offset:{2048*j+1024*g}")
    for g in range(2): L.append(f"ds_read_b64_tr_b16 v[{20+2*g}:{21+2*g}], v9 offset:{1024*ps+512*g}")
    L.append("s_waitcnt lgkmcnt(0)")
    for g in range(2):
        L += [f"v_lshlrev_b32 v{56+4*g}, 16, v{20+2*g}", f"v_and_b32 v{57+4*g}, 0xffff0000, v{20+2*g}", f"v_lshlrev_b32 v{58+4*g}, 16, v{21+2*g}", f"v_and_b32 v{59+4*g}, 0xffff0000, v{21+2*g}"]
    for p in range(8): L.append(f"v_add_f32 v{48+p}, v{48+p}, v{56+p}")
    for p in range(8): L.append(f"v_add_f32 v{24+p}, v{24+p}, v{32+p}")
    for p in range(8): L.append(f"v_add_f32 v{48+p}, v{48+p}, v{40+p}")
    for p in range(8): L.append(f"v_add_f32 v{48+p}, v{48+p}, v{24+p}")
    for p in range(4): L.append(f"v_cvt_pk_bf16_f32 v{56+p}, v{48+2*p}, v{49+2*p}")
    L += ["v_permlane32_swap_b32 v56, v58", "v_permlane32_swap_b32 v57, v59",
          f"buffer_store_dwordx4 v[56:59], v5, {R4(SOUT)}, {'s77' if ps == 0 else 's78'} offen"]
    return L
fin = []
q3 = [("ld", i) for i in range(AH3)]
def w3(tag):
    global q3
    idx = [i for i, x in enumerate(q3) if x == tag]
    if not idx: return
    A(f"s_waitcnt vmcnt({len(q3) - 1 - idx[-1]})"); q3 = q3[idx[-1] + 1:]
for t in range(56):
    ps, ks = divmod(t, 28)
    w3(("ld", t))
    if t == 0:
        stamp()
        LL = newlab("LT")
        A(f"s_cmp_eq_u32 s95, 0\ns_cbranch_scc1 {LL}")
        flag_store("s82", 14, True)
        w2_tr(8, 20, 15, 16)
        A(f"{LL}:")
    if t == 16: A("s_waitcnt lgkmcnt(0)")
    if t == 28:
        red_write(0)
    if t == 32:
        A("s_waitcnt lgkmcnt(0)\ns_barrier"); fin = red_final(0)
    sl = HB + (t % NS3) * 4
    order = (0, 1) if ks < 27 else (1, 0)
    for n_, a in enumerate(order):
        acc = ACC3 + 32 * ps + 16 * a
        cin = "0" if ks == 0 else f"v[{acc}:{acc+15}]"
        A(f"v_mfma_f32_32x32x16_bf16 v[{acc}:{acc+15}], a[{8*ks+4*a}:{8*ks+4*a+3}], v[{sl}:{sl+3}], {cin}")
        if n_ == 0 and cnt3[0] < 56:
            if cnt3[0] == 24:
                A(f"buffer_load_dword v6, v249, {R4(WS)}, 0 offen sc1"); q3.append(("fl", 0))
            if cnt3[0] == 28:
                Lok = newlab("FCOK")
                w3(("fl", 0))
                A(f"v_cmp_ne_u32 vcc, {sTAG}, v6\ns_cbranch_vccz {Lok}")
                poll(249, 6)
                A(f"{Lok}:")
            q3.append(("ld", cnt3[0])); load3()
        for _ in range(4):
            if fin:
                e = fin.pop(0); A(e)
                if e.startswith("buffer_store"): q3.append(("st", 0))
stamp()
A("s_barrier")
red_write(1)
A("s_waitcnt lgkmcnt(0)\ns_barrier")
for e in red_final(1): A(e)
if DIAG:
    stamp()
    A("s_waitcnt vmcnt(0)")
    stamp()
    A(f"v_accvgpr_write_b32 a{224+nstamp[0]}, {sFAST}"); nstamp[0] += 1
    A(f"s_lshl_b32 s76, s2, 2\ns_add_u32 s76, s76, {sWAVE}\ns_lshl_b32 s76, s76, 7\ns_add_u32 s76, s76, {DIAGBASE}")
    for i in range(nstamp[0]):
        A(f"v_accvgpr_read_b32 v2, a{224+i}\nbuffer_store_dword v2, off, {R4(WS)}, s76 offset:{4*i}")
A("K_END:\ns_endpgm")

kn = NAME + "_kernel"
body = A.finalize()
out = [f"; {NAME}: persistent single launch (generated by gen/gen6.py)",
       "; phases: kv^T + LN(x) stats -> Toeplitz-MFMA long conv + gate + residual -> LN(h)@W1 + SiLU -> @W2 + residual; tagged flag hand-offs in d_ws",
       f"; @launch grid=(256,1,1) block=(256,1,1) lds={LDS_TOTAL}",
       '.amdgcn_target "amdgcn-amd-amdhsa--gfx950"', ".text",
       f".globl {kn}\n.p2align 8\n.type {kn},@function\n{kn}:",
       body,
       ".fill 256, 4, 0xbf800000",
       '.section .rodata,"a"\n.p2align 6',
       f".amdhsa_kernel {kn}\n  .amdhsa_next_free_vgpr 512\n  .amdhsa_next_free_sgpr 102\n  .amdhsa_accum_offset 256\n"
       "  .amdhsa_group_segment_fixed_size 0\n  .amdhsa_kernarg_size 96\n  .amdhsa_user_sgpr_count 2\n"
       "  .amdhsa_user_sgpr_kernarg_segment_ptr 1\n  .amdhsa_system_sgpr_workgroup_id_x 1\n.end_amdhsa_kernel\n"]
path = sys.argv[1] if len(sys.argv) > 1 else f"p6.s"
open(path, "w").write("\n".join(out))
print("wrote", path, "stamps", nstamp[0])
```

```python
import sys, os
sys.path.insert(0, os.path.dirname(os.path.abspath(__file__)))
from asmlib import Asm

NAME = "sequential_preLN__ssm_conv_h3__dense_activation_silu__prompt"
KVR = 0x000000
XT  = 0x200000
XS  = 0x400000
FL  = 0x480000
EPOCH = FL
FG = FL + 0x4000
GL = FL + 0x10000
oINFO, oFA, oFB, oFC, oHST = 0, 128, 256, 1024, 2048
HT  = 0x500000
H1F = 0xC00000
WS_SIZE = 0x1400000
env = lambda k, d: int(os.environ.get(k, d))
DIAG = env("DIAG", "0"); NOFAST = env("NOFAST", "0"); CODEPF = env("CODEPF", "0")
TIMER = "s_memrealtime" if os.environ.get("RT") else "s_memtime"
DIAGBASE = 0x1300000
POLL_LIMIT = 50000
W1LATE = env("W1LATE", "1")
MAP47 = env("MAP47", "1")
FCG = FL + 0x40000; HSTG = FL + 0x24000
TLBW = env("TLBW", "0")

WS, SQ, SK_, SV, SSH, SKN, SSD, SW1, SW2, SOUT = 28, 32, 36, 40, 44, 48, 52, 56, 60, 64
def R4(b): return f"s[{b}:{b+3}]"
sGL = "s3"
sWAVE, sX, sJ, sTAG, sCHL, sPAR, sCH = "s4", "s5", "s6", "s7", "s8", "s9", "s10"
sMT, sFG, sFT, sSM, sDN, sDT, sST = "s11", "s12", "s13", "s14", "s15", "s16", "s17"
sW2C, sW2W, sROT, sRES, sFAST, sINFO = "s18", "s19", "s20", "s21", "s26", "s27"

KC = 0; CHS = 16640; CPS = 4160
KV = 33280; KVS = 4608
XSL = 42496
RED = 58880
WW = 75264; R1 = 10; WWS = R1 * 2048
W3W = 131072
CSL = 131072
RES3B = 147456
LDS_TOTAL = 163840

A = Asm()
nstamp = [0]
def stamp():
    if DIAG:
        i = nstamp[0]; nstamp[0] += 1
        assert i < 31
        A(f"{TIMER} s[100:101]\ns_waitcnt lgkmcnt(0)\nv_accvgpr_write_b32 a{224+i}, s100")
def srd(d, lo, nbytes):
    A(f"s_mov_b32 s{d}, s{lo}\ns_mov_b32 s{d+1}, s{lo+1}\ns_mov_b32 s{d+2}, {hex(nbytes)}\ns_mov_b32 s{d+3}, 0x00020000")
lab = [0]
def newlab(p="L"):
    lab[0] += 1
    return f"{p}{lab[0]}"
def rowstats_pack(vsum, vsq, t0, inv_n="0x3b000000"):
    A(f"""
    v_mul_f32 v{vsum}, {inv_n}, v{vsum}
    v_mul_f32 v{vsq}, {inv_n}, v{vsq}
    v_fma_f32 v{vsq}, -v{vsum}, v{vsum}, v{vsq}
    v_max_f32 v{vsq}, 0, v{vsq}
    v_cvt_pk_bf16_f32 v{t0}, v{vsq}, v{vsq}
    v_lshlrev_b32 v{vsq}, 16, v{t0}
    v_add_f32 v{vsq}, 0x3727c5ac, v{vsq}
    v_cvt_pk_bf16_f32 v{t0}, v{vsq}, v{vsq}
    v_lshlrev_b32 v{vsq}, 16, v{t0}
    v_sqrt_f32 v{vsq}, v{vsq}
    v_cvt_pk_bf16_f32 v{t0}, v{vsum}, v{vsq}
    """)
def poll(voff, vtmp):
    L = newlab("POLL"); D = newlab("PDONE")
    A(f"""
    s_mov_b32 s96, 0
    {L}:
    buffer_load_dword v{vtmp}, v{voff}, {R4(WS)}, 0 offen sc1
    s_waitcnt vmcnt(0)
    v_cmp_ne_u32 vcc, {sTAG}, v{vtmp}
    s_cbranch_vccz {D}
    s_add_u32 s96, s96, 1
    s_cmp_lt_u32 s96, {POLL_LIMIT}
    s_cbranch_scc1 {L}
    {D}:
    """)
def flag_store(soff, vtmp, local):
    A(f"v_mov_b32 v{vtmp}, {sTAG}\ns_mov_b64 exec, 1")
    if local:
        L1 = newlab("FS"); L2 = newlab("FS")
        A(f"""
        s_cmp_eq_u32 {sFAST}, 0
        s_cbranch_scc1 {L1}
        buffer_store_dword v{vtmp}, off, {R4(WS)}, {soff}
        s_branch {L2}
        {L1}:
        buffer_store_dword v{vtmp}, off, {R4(WS)}, {soff} sc1
        {L2}:
        """)
    else:
        A(f"buffer_store_dword v{vtmp}, off, {R4(WS)}, {soff} sc1")
    A("s_mov_b64 exec, -1")
def only_wave(w):
    L = newlab("NW"); A(f"s_cmp_lg_u32 {sWAVE}, {w}\ns_cbranch_scc1 {L}"); return L
def info_load(va, vd):
    A(f"v_and_b32 v{va}, 31, v1\nv_lshlrev_b32 v{va}, 2, v{va}\nbuffer_load_dword v{vd}, v{va}, {R4(WS)}, {sGL} offen sc1")
def info_eval(vd):
    if NOFAST:
        A(f"s_mov_b32 {sFAST}, 0"); return
    A(f"v_cmp_ne_u32 vcc, {sINFO}, v{vd}\ns_cmp_eq_u64 vcc, 0\ns_cselect_b32 {sFAST}, 1, 0")
ROT3 = env("ROT3", "1")
sW2E = "s22"
sR3 = "s23"
sKR = "s24"
sKL = "s25"
w2n = [0]
def w2_dma(m0base=None):
    L = []
    if m0base is not None: L.append(f"s_mov_b32 m0, {m0base}")
    L.append(f"buffer_load_dwordx4 v2, {R4(SW2)}, {sW2C} offen lds")
    w2n[0] += 1
    if w2n[0] == 28:
        L.append(f"s_add_u32 m0, m0, 1024\ns_lshl_b32 {sW2C}, {sKR}, 14\ns_add_u32 {sW2E}, {sW2C}, {14*16384}\ns_lshl_b32 s97, {sR3}, 15\ns_add_u32 {sW2C}, {sW2C}, s97")
    else:
        L.append(f"s_add_u32 {sW2C}, {sW2C}, 8192\ns_add_u32 m0, m0, 1024")
        if w2n[0] % 4 == 0: L.append(f"s_cmp_eq_u32 {sW2C}, {sW2E}\ns_cselect_b32 s97, {14*16384}, 0\ns_sub_u32 {sW2C}, {sW2C}, s97")
    return "\n".join(L)
def w2_tr(nk, k0, b0, b1, off0=0):
    for t in range(nk):
        for a, b in ((0, b0), (1, b1)):
            r = 8 * (k0 + t) + 4 * a
            A(f"ds_read_b64_tr_b16 a[{r}:{r+1}], v{b} offset:{off0+2048*t}")
            A(f"ds_read_b64_tr_b16 a[{r+2}:{r+3}], v{b} offset:{off0+2048*t+1024}")
def pf_rot(seg, i0_expr, n, va, vt, vd):
    A(f"""
    v_min_u32 v{va}, {n-1}, v1
    s_lshl_b32 s97, {sR3}, 5
    s_add_u32 s97, s97, {i0_expr}
    v_add_u32 v{va}, s97, v{va}
    v_subrev_u32 v{vt}, 224, v{va}
    v_min_u32 v{va}, v{va}, v{vt}
    v_lshlrev_b32 v{va}, 10, v{va}
    s_and_b32 s97, {sX}, 1
    s_xor_b32 s97, s97, {seg}
    s_mul_i32 s97, s97, {896*1024}
    s_and_b32 s94, {sJ}, 3
    s_mul_i32 s94, s94, {224*1024}
    s_add_u32 s97, s97, s94
    s_lshl_b32 s94, {sDN}, 7
    s_add_u32 s97, s97, s94
    buffer_load_dword v{vd}, v{va}, {R4(SW2)}, s97 offen sc1
    """)
def pf(srd_, soff, va, vd): return f"buffer_load_dword v{vd}, v{va}, {R4(srd_)}, {soff} offen sc1"

A("K_START:\ns_cmp_ge_u32 s2, 256\ns_cbranch_scc1 K_END")
A(f"""
s_load_dwordx16 s[4:19], s[0:1], 0
s_load_dwordx8 s[20:27], s[0:1], 64
""")
stamp()
A(f"""
s_and_b32 s68, s2, 7
s_lshr_b32 s69, s2, 3
v_and_b32 v182, 15, v0
v_bfe_u32 v183, v0, 4, 2
v_bfe_u32 v184, v0, 6, 1
v_lshrrev_b32 v185, 7, v0
s_lshl_b32 s71, s69, 6
s_lshl_b32 s72, s68, 7
v_lshlrev_b32 v186, 3, v183
v_lshl_add_u32 v186, v185, 5, v186
v_add_u32 v186, s71, v186        ; row0
v_lshlrev_b32 v187, 2, v182
v_lshl_add_u32 v187, v184, 6, v187
v_add_u32 v187, s72, v187        ; ch*2
v_lshl_add_u32 v188, v186, 10, v187
v_add_u32 v189, 4096, v188
v_subrev_u32 v190, 3072, v188
v_lshlrev_b32 v191, 2, v187
s_mov_b32 s{SK_+2}, 0x200000
s_mov_b32 s{SK_+3}, 0x00020000
s_mov_b32 s{SV+2}, 0x200000
s_mov_b32 s{SV+3}, 0x00020000
s_lshl_b32 s73, s68, 6
s_lshl_b32 s74, s69, 1
s_add_u32 s73, s73, s74           ; c0 = 64x + 2j
s_lshl_b32 s75, s73, 12
v_lshlrev_b32 v3, 4, v0
v_add_u32 v3, s75, v3
v_add_u32 v4, 4096, v3
s_waitcnt lgkmcnt(0)
s_mov_b32 s{SK_}, s6
s_mov_b32 s{SK_+1}, s7
s_mov_b32 s{SV}, s8
s_mov_b32 s{SV+1}, s9
""")
for j in range(3): A(f"buffer_load_dword v{64+j}, v190, {R4(SK_)}, 0 offen offset:{1024*j}")
for j in range(4): A(f"buffer_load_dword v{67+j}, v188, {R4(SK_)}, 0 offen offset:{1024*j}")
for j in range(4): A(f"buffer_load_dword v{71+j}, v189, {R4(SK_)}, 0 offen offset:{1024*j}")
srd(SSH, 10, 4096); srd(WS, 26, WS_SIZE)
A(f"buffer_load_dwordx4 v[92:95], v191, {R4(SSH)}, 0 offen")
A(f"s_mov_b32 s76, {EPOCH}\nbuffer_load_dword v200, off, {R4(WS)}, s76")
for j in range(4): A(f"buffer_load_dword v{75+j}, v188, {R4(SV)}, 0 offen offset:{1024*j}")
for j in range(4): A(f"buffer_load_dword v{79+j}, v189, {R4(SV)}, 0 offen offset:{1024*j}")
srd(SQ, 4, 0x200000)
for j in range(4): A(f"buffer_load_dword v{83+j}, v188, {R4(SQ)}, 0 offen offset:{1024*j}")
for j in range(4): A(f"buffer_load_dword v{87+j}, v189, {R4(SQ)}, 0 offen offset:{1024*j}")
A(f"""
v_lshrrev_b32 v192, 5, v0
s_lshl_b32 s76, s2, 3
v_add_u32 v192, s76, v192
v_and_b32 v193, 31, v0
v_lshlrev_b32 v194, 4, v193
v_lshl_add_u32 v194, v192, 10, v194
buffer_load_dwordx4 v[96:99], v194, {R4(SQ)}, 0 offen
buffer_load_dwordx4 v[100:103], v194, {R4(SQ)}, 0 offen offset:512
""")
srd(SKN, 12, 0x200000)
A(f"""
buffer_load_dwordx4 v[16:19], v3, {R4(SKN)}, 0 offen
buffer_load_dwordx2 v[20:21], v3, {R4(SKN)}, 0 offen offset:16
buffer_load_dwordx4 v[28:31], v4, {R4(SKN)}, 0 offen
buffer_load_dwordx2 v[32:33], v4, {R4(SKN)}, 0 offen offset:16
v_and_b32 v1, 63, v0
v_lshrrev_b32 v2, 6, v0
v_bfe_u32 v5, v1, 2, 1
v_lshlrev_b32 v5, 12, v5
v_readfirstlane_b32 s70, v2
v_add_u32 v5, s75, v5
buffer_load_dwordx2 v[48:49], v5, {R4(SKN)}, 0 offen
s_lshl_b32 {sGL}, s68, 12
s_add_u32 {sGL}, {sGL}, {GL}
v_and_b32 v6, 15, v1
v_lshlrev_b32 v6, 7, v6
buffer_load_dword v208, v6, {R4(WS)}, {sGL} offen sc1
""")
srd(SSD, 14, 1024)
A(f"""
s_lshr_b32 s77, s70, 1
s_add_u32 s77, s77, s73
s_lshl_b32 s77, s77, 1
buffer_load_ushort v50, off, {R4(SSD)}, s77
""")
srd(SW1, 18, 512*1792*2); srd(SW2, 20, 512*1792*2); srd(SOUT, 22, 0x200000)
A(f"""
s_getreg_b32 s74, hwreg(HW_REG_XCC_ID, 0, 4)
s_mov_b32 {sWAVE}, s70
s_mov_b32 {sX}, s68
s_mov_b32 {sJ}, s69
s_lshr_b32 {sCHL}, s70, 1
s_and_b32 {sPAR}, s70, 1
s_add_u32 {sCH}, s73, {sCHL}
""")
if MAP47:
    A(f"""
    s_lshr_b32 s76, s68, 1
    s_lshl_b32 s76, s76, 2            ; 4p
    s_and_b32 s77, s69, 3
    s_add_u32 {sMT}, s76, s77         ; mt = 4p + (j&3)
    s_and_b32 s78, s68, 1
    s_mul_i32 {sFG}, s78, 7
    s_lshr_b32 s79, s69, 2
    s_add_u32 {sFG}, {sFG}, s79       ; fg = 7(x&1) + (j>>2)
    s_lshl_b32 s78, s78, 1
    s_add_u32 s76, s76, s78
    s_lshr_b32 s78, s77, 1
    s_add_u32 s76, s76, s78
    s_and_b32 s77, s77, 1
    s_add_u32 s77, s77, 14
    s_cmp_ge_u32 s69, 28
    s_cselect_b32 {sMT}, s76, {sMT}
    s_cselect_b32 {sFG}, s77, {sFG}
    """)
else:
    A(f"""
    s_lshl_b32 {sMT}, s68, 1
    s_and_b32 s76, s69, 1
    s_add_u32 {sMT}, {sMT}, s76
    s_lshr_b32 {sFG}, s69, 1
    """)
A(f"""
s_lshl_b32 {sFT}, {sFG}, 2
s_add_u32 {sFT}, {sFT}, s70
s_lshl_b32 {sSM}, s68, 1
s_bfe_u32 s76, s69, 0x10001
s_add_u32 {sSM}, {sSM}, s76       ; mt3
s_lshr_b32 {sDN}, s69, 2
s_lshl_b32 {sDT}, {sDN}, 1
s_add_u32 {sDT}, {sDT}, {sCHL}
s_lshl_b32 {sST}, {sSM}, 2
s_and_b32 s76, s69, 1
s_add_u32 {sST}, {sST}, s76
s_mov_b32 {sFAST}, 0
s_and_b32 s76, s68, 1
s_mul_i32 {sKL}, s76, 56
s_sub_u32 {sKR}, 56, {sKL}
s_mul_i32 s76, {sWAVE}, 14
s_add_u32 {sKL}, {sKL}, s76
s_add_u32 {sKR}, {sKR}, s76
s_min_u32 {sR3}, {sDN}, 6
s_lshl_b32 {sW2C}, {sKL}, 14
s_add_u32 {sW2E}, {sW2C}, {14*16384}
s_lshl_b32 s76, {sR3}, 15
s_add_u32 {sW2C}, {sW2C}, s76
v_lshrrev_b32 v5, 3, v1
v_and_b32 v6, 7, v1
v_bfe_u32 v7, v1, 4, 1
v_lshlrev_b32 v7, 2, v7
v_xor_b32 v6, v6, v7
v_lshlrev_b32 v2, 4, v6
v_lshl_add_u32 v2, v5, 10, v2
s_lshl_b32 s76, {sDN}, 7
v_add_u32 v2, s76, v2
v_lshlrev_b32 v195, 11, v187
v_lshlrev_b32 v196, 1, v186
v_sub_u32 v197, v195, v196
v_add_u32 v197, {KVR + 4080}, v197
v_add_u32 v198, v195, v196
v_add_u32 v198, {XT}, v198
s_mul_i32 {sW2W}, {sWAVE}, {WWS}
s_add_u32 {sW2W}, {sW2W}, {WW}
v_bfe_u32 v5, v1, 2, 2
v_and_b32 v6, 3, v1
v_bfe_u32 v7, v1, 4, 1
v_lshrrev_b32 v8, 5, v1
v_lshlrev_b32 v9, 2, v8
v_add_u32 v9, v9, v5
v_lshlrev_b32 v9, 7, v9
v_lshl_add_u32 v9, v7, 5, v9
v_lshl_add_u32 v9, v6, 3, v9
v_lshrrev_b32 v10, 1, v5
v_xor_b32 v10, {sCHL}, v10
v_lshl_add_u32 v3, v10, 6, v9
v_xor_b32 v4, 64, v3
v_lshlrev_b32 v51, 4, v0
v_add_u32 v51, {KC + 32}, v51
v_mov_b32 v52, 0
v_mov_b32 v53, 0
v_mov_b32 v54, 0
v_mov_b32 v55, 0
v_lshrrev_b32 v5, 5, v1
v_mul_u32_u24 v5, {KVS}, v5
v_and_b32 v6, 31, v1
v_lshl_add_u32 v5, v6, 4, v5
v_add_u32 v5, {KV + 4096}, v5
ds_write_b128 v5, v[52:55]
s_mov_b32 s76, 4096
s_mov_b32 s77, 0x05040100
s_mov_b32 s78, 0x07060302
""")
stamp()
A(f"""
s_waitcnt vmcnt(25)
v_readfirstlane_b32 {sTAG}, v200
s_lshl_b32 s79, {sJ}, 2
s_add_u32 s79, s79, {sGL}
""")
stamp()
A(f"""
v_lshlrev_b32 v142, 16, v92
v_lshlrev_b32 v143, 16, v94
s_add_u32 {sTAG}, {sTAG}, 1
s_lshl_b32 {sINFO}, {sTAG}, 4
s_or_b32 {sINFO}, {sINFO}, s74
v_mov_b32 v5, {sINFO}
s_mov_b64 exec, 1
buffer_store_dword v5, off, {R4(WS)}, s79
s_mov_b64 exec, -1
v_and_b32 v144, 0xffff0000, v92
v_and_b32 v145, 0xffff0000, v94
v_lshlrev_b32 v146, 16, v93
v_lshlrev_b32 v147, 16, v95
v_and_b32 v148, 0xffff0000, v93
v_and_b32 v149, 0xffff0000, v95
""")
for r in range(11): A(f"v_lshlrev_b32 v{104+2*r}, 16, v{64+r}\nv_and_b32 v{105+2*r}, 0xffff0000, v{64+r}")
for r in range(8):
    R = 150 + 2 * r
    A(f"v_pk_mul_f32 v[{R}:{R+1}], v[{104+2*(r+3)}:{105+2*(r+3)}], v[142:143]")
for j in range(1, 4):
    for r in range(8):
        R = 150 + 2 * r; K = 104 + 2 * (r + 3 - j)
        A(f"v_pk_fma_f32 v[{R}:{R+1}], v[{K}:{K+1}], v[{142+2*j}:{143+2*j}], v[{R}:{R+1}]")
A("s_waitcnt vmcnt(18)")
for r in range(8): A(f"v_lshlrev_b32 v{126+2*r}, 16, v{75+r}\nv_and_b32 v{127+2*r}, 0xffff0000, v{75+r}")
for r in range(8):
    R = 150 + 2 * r
    A(f"v_pk_mul_f32 v[{R}:{R+1}], v[{R}:{R+1}], v[{126+2*r}:{127+2*r}]")
for i in range(4):
    A(f"v_cvt_pk_bf16_f32 v{166+i}, v{150+2*(7-2*i)}, v{150+2*(6-2*i)}")
    A(f"v_cvt_pk_bf16_f32 v{170+i}, v{151+2*(7-2*i)}, v{151+2*(6-2*i)}")
A(f"buffer_store_dwordx4 v[166:169], v197, {R4(WS)}, 0 offen sc1\nbuffer_store_dwordx4 v[170:173], v197, {R4(WS)}, s76 offen sc1")
A("s_waitcnt vmcnt(12)")
for i in range(4):
    A(f"v_perm_b32 v{174+i}, v{84+2*i}, v{83+2*i}, s77")
    A(f"v_perm_b32 v{178+i}, v{84+2*i}, v{83+2*i}, s78")
A(f"buffer_store_dwordx4 v[174:177], v198, {R4(WS)}, 0 offen sc1\nbuffer_store_dwordx4 v[178:181], v198, {R4(WS)}, s76 offen sc1")
A(f"""
s_waitcnt vmcnt(12)
v_mov_b32 v104, 0
v_mov_b32 v105, 0
v_mov_b32 v106, 0
v_mov_b32 v107, 0
v_mov_b32 v110, 0x3f803f80
""")
for i in range(8): A(f"v_dot2c_f32_bf16 v{104+2*(i&1)}, v{96+i}, v110\nv_dot2c_f32_bf16 v{105+2*(i&1)}, v{96+i}, v{96+i}")
A("v_add_f32 v104, v104, v106\nv_add_f32 v105, v105, v107")
for pat in ["quad_perm:[1,0,3,2]", "quad_perm:[2,3,0,1]", "row_half_mirror", "row_mirror"]:
    A(f"v_add_f32_dpp v104, v104, v104 {pat} row_mask:0xf bank_mask:0xf")
    A(f"v_add_f32_dpp v105, v105, v105 {pat} row_mask:0xf bank_mask:0xf")
A("""
v_mov_b32 v107, v104
v_mov_b32 v108, v105
v_permlane16_swap_b32 v104, v107
v_permlane16_swap_b32 v105, v108
v_add_f32 v104, v104, v107
v_add_f32 v105, v105, v108
""")
rowstats_pack(104, 105, 108)
A(f"""
v_mov_b32 v109, {sTAG}
v_lshlrev_b32 v107, 3, v192
s_mov_b32 s82, {XS}
s_mov_b32 exec_lo, 1
s_mov_b32 exec_hi, 1
buffer_store_dwordx2 v[108:109], v107, {R4(WS)}, s82 offen sc1
s_mov_b64 exec, -1
""")
info_load(201, 202)
L1 = newlab("T1"); LD = newlab("TD")
A(f"""
s_mul_i32 s79, s2, 7168
v_min_u32 v204, 55, v1
v_lshlrev_b32 v204, 7, v204
s_cmp_eq_u32 {sWAVE}, 1
s_cbranch_scc1 {L1}
s_cmp_eq_u32 {sWAVE}, 2
s_cbranch_scc0 {LD}
buffer_load_dword v205, {"v201" if W1LATE else "v204"}, {R4(WS) if W1LATE else R4(SW1)}, {sGL if W1LATE else "s79"} offen sc1
s_branch {LD}
{L1}:
buffer_load_dword v205, v204, {R4(SW2)}, s79 offen sc1
{LD}:
""")
stamp()
def wait_role(n0):
    La = newlab("WR"); Lb = newlab("WR")
    A(f"s_sub_u32 s97, {sWAVE}, 1\ns_cmp_lt_u32 s97, 2\ns_cbranch_scc0 {La}\ns_waitcnt vmcnt({n0+1})\ns_branch {Lb}\n{La}:\ns_waitcnt vmcnt({n0})\n{Lb}:")
wait_role(7)
for c, (D, E, O) in enumerate([(16, 24, 40), (28, 36, 56)]):
    for w in range(4): A(f"v_alignbit_b32 v{O+w}, v{D+w+1}, v{D+w}, 16")
    for w in range(4): A(f"v_alignbit_b32 v{O+4+w}, v{D+w+2}, v{D+w+1}, 16")
    for w in range(4): A(f"v_mov_b32 v{E+w}, v{D+w+1}")
    base = c * CHS
    A(f"ds_write_b128 v51, v[{O}:{O+3}] offset:{base}")
    A(f"ds_write_b128 v51, v[{O+4}:{O+7}] offset:{base + 2*CPS}")
    A(f"ds_write_b128 v51, v[{D+2}:{D+5}] offset:{base + 3*CPS}")
    A(f"ds_write_b128 v51, v[{E}:{E+3}] offset:{base + CPS}")
A(f"""
v_and_b32 v6, 3, v1
v_sub_u32 v7, 3, v6
v_lshlrev_b32 v7, 4, v7
v_lshlrev_b64 v[54:55], v7, v[48:49]
v_bfe_u32 v7, v1, 2, 1
v_mul_u32_u24 v7, {CHS}, v7
v_mul_u32_u24 v6, {CPS}, v6
v_add3_u32 v6, v6, v7, {KC}
v_mov_b32 v8, 0
v_mov_b32 v9, 0
v_mov_b32 v10, 0
v_mov_b32 v11, 0
s_mov_b64 exec, 0xff
ds_write_b128 v6, v[8:11]
ds_write_b128 v6, v[52:55] offset:16
s_mov_b64 exec, -1
v_lshlrev_b32 v15, 16, v50
""")
ACC = 64; AB = 96; BB = 160; GR = 16; MR = 48; RRa = 232; XR = 224
A(f"""
s_mul_i32 s79, {sCHL}, {KVS}
v_and_b32 v11, 15, v1
v_lshrrev_b32 v12, 4, v1
v_lshlrev_b32 v13, 4, v11
v_lshl_add_u32 v13, v12, 2, v13
s_lshl_b32 s80, {sPAR}, 10
v_add_u32 v13, s80, v13          ; s0
v_and_b32 v6, 3, v11
v_mul_u32_u24 v6, {CPS}, v6
v_lshrrev_b32 v7, 2, v11
v_lshl_add_u32 v6, v7, 3, v6
v_lshl_add_u32 v6, v12, 4, v6
s_mul_i32 s83, {sCHL}, {CHS}
s_lshl_b32 s84, {sPAR}, 6
s_add_u32 s83, s83, s84
s_add_u32 s83, s83, {KC}
v_add_u32 v6, s83, v6            ; vAfrag
v_lshlrev_b32 v7, 4, v12
v_lshlrev_b32 v8, 5, v11
v_sub_u32 v7, v7, v8
s_add_u32 s83, s79, s84
s_add_u32 s83, s83, {KV + 480}
v_add_u32 v7, s83, v7            ; vBfrag
v_lshlrev_b32 v14, 1, v13        ; s0*2
s_lshl_b32 s85, {sCH}, 12
s_add_u32 s85, s85, {XT}
s_add_u32 s80, {sGL}, {oFA}
s_lshl_b32 s81, {sJ}, 2
s_add_u32 s81, s81, s80
""")
wait_role(0)
info_eval(202)
A("s_waitcnt lgkmcnt(0)")
stamp()
A("s_barrier")
stamp()
LW0 = newlab("W0"); LJ = newlab("AJ")
A(f"""
s_cmp_eq_u32 {sWAVE}, 0
s_cbranch_scc1 {LW0}
s_branch {LJ}
{LW0}:
""")
flag_store("s81", 8, True)
A(f"v_and_b32 v5, 31, v1\nv_lshlrev_b32 v5, 2, v5\nv_add_u32 v5, s80, v5")
poll(5, 8)
A(f"""
s_lshl_b32 s83, {sCH}, 12
s_add_u32 s83, s83, {KVR}
s_mov_b32 m0, {KV}
v_lshlrev_b32 v5, 4, v1
s_add_u32 s84, s83, 4096
buffer_load_dwordx4 v5, {R4(WS)}, s83 offen sc1 lds
buffer_load_dwordx4 v5, {R4(WS)}, s83 offen offset:1024 sc1 lds
buffer_load_dwordx4 v5, {R4(WS)}, s83 offen offset:2048 sc1 lds
buffer_load_dwordx4 v5, {R4(WS)}, s83 offen offset:3072 sc1 lds
s_mov_b32 m0, {KV + KVS}
s_nop 0
buffer_load_dwordx4 v5, {R4(WS)}, s84 offen sc1 lds
buffer_load_dwordx4 v5, {R4(WS)}, s84 offen offset:1024 sc1 lds
buffer_load_dwordx4 v5, {R4(WS)}, s84 offen offset:2048 sc1 lds
buffer_load_dwordx4 v5, {R4(WS)}, s84 offen offset:3072 sc1 lds
""")
pf_rot(0, 0, 64, 5, 8, 252); pf_rot(0, 64, 64, 5, 8, 252); pf_rot(0, 128, 32, 5, 8, 252)
A(f"""
""")
if TLBW:
    A(f"""
    v_min_u32 v5, 29, v1
    v_lshlrev_b32 v5, 19, v5
    s_lshl_b32 s84, {sJ}, 7
    s_add_u32 s83, s84, {HT}
    buffer_load_dword v253, v5, {R4(WS)}, s83 offen sc1
    v_and_b32 v5, 3, v1
    v_lshlrev_b32 v5, 19, v5
    buffer_load_dword v254, v5, {R4(SOUT)}, s84 offen sc1
    """)
A(f"""
{LJ}:
""")
stamp()
def creadsA(j, buf):
    L = []
    for U in range(8):
        a = AB + buf * 32 + 4 * U
        L.append(f"ds_read_b64 v[{a}:{a+1}], v6 offset:{512*U + 128*j}")
        L.append(f"ds_read_b64 v[{a+2}:{a+3}], v6 offset:{512*U + 128*j + 8}")
    return L
def creadsB(j, buf):
    return [f"ds_read_b128 v[{BB+buf*32+4*U}:{BB+buf*32+4*U+3}], v7 offset:{3584 - 512*U + 128*j}" for U in range(8)]
def xs_loads():
    A(f"v_lshlrev_b32 v5, 3, v13\ns_mov_b32 s87, {XS}\ns_mov_b32 s88, {XS+4096}")
    for t in range(4):
        so = "s87" if t < 2 else "s88"
        A(f"buffer_load_dwordx4 v[{GR+8*t}:{GR+8*t+3}], v5, {R4(WS)}, {so} offen offset:{2048*(t&1)} sc1")
        A(f"buffer_load_dwordx4 v[{GR+8*t+4}:{GR+8*t+7}], v5, {R4(WS)}, {so} offen offset:{2048*(t&1)+16} sc1")
def gather(first):
    return (f"s_mov_b32 m0, s86\n" if first else "") + f"buffer_load_dword v14, {R4(SQ)}, s85 offen lds\ns_add_u32 s85, s85, 65536\ns_add_u32 m0, m0, 256"
for r in creadsA(0, 0): A(r)
LW = only_wave(0)
A(f"s_waitcnt vmcnt({3 + 2*TLBW})\n{LW}:\ns_barrier")
stamp()
for r in creadsB(0, 0): A(r)
pairs = [(U, W) for U in range(8) for W in range(8) if U + W <= 7]
first = set()
for j in range(4):
    buf = j & 1
    A("s_waitcnt lgkmcnt(0)")
    nxt = []
    if j < 3:
        a_, b_ = creadsA(j + 1, buf ^ 1), creadsB(j + 1, buf ^ 1)
        for U in range(8): nxt += [a_[2*U], a_[2*U+1], b_[U]]
    vm = {}
    fill = []
    if j == 0:
        A(f"""
        s_lshl_b32 s83, {sWAVE}, 12
        s_add_u32 s84, s83, {XS}
        s_add_u32 s83, s83, {XSL}
        s_mov_b32 m0, s83
        v_lshlrev_b32 v5, 4, v1
        """)
        for t in range(4): vm[1 + 2 * t] = f"buffer_load_dwordx2 v[{XR+2*t}:{XR+2*t+1}], v14, {R4(WS)}, s85 offen offset:{512*t} sc1"
        for c in range(4): vm[20 + 3 * c] = f"buffer_load_dwordx4 v5, {R4(WS)}, s84 offen offset:{1024*c} sc1 lds"
        vm[33] = f"v_and_b32 v250, 31, v1\nv_lshlrev_b32 v250, 2, v250\nbuffer_load_dword v251, v250, {R4(WS)}, {sGL} offen sc1"
    if W1LATE and j == env("W1G", "2"):
        vm[35] = f"s_mul_i32 s87, s2, 7168\ns_mul_i32 s88, {sWAVE}, 1792\ns_add_u32 s87, s87, s88\nv_min_u32 v254, 13, v1\nv_lshlrev_b32 v254, 7, v254\n" + pf(SW1, "s87", 254, 253)
    if j in (1, 2):
        for i in range(7): vm[2 + 5 * i] = w2_dma(m0base=sW2W if (j == 1 and i == 0) else None)
    if j == 3:
        for i in range(6): vm[1 + 3 * i] = w2_dma()
        A(f"s_waitcnt vmcnt({14 + W1LATE})\ns_barrier")
        info_eval(251)
        A(f"v_lshlrev_b32 v5, 3, v13\nv_add_u32 v5, {XSL}, v5\ns_add_u32 s83, s79, {KV + 4088 - 1536}\nv_sub_u32 v10, s83, v14")
        for t in range(4):
            nxt.append(f"ds_read_b128 v[{GR+8*t}:{GR+8*t+3}], v5 offset:{2048*t}")
            nxt.append(f"ds_read_b128 v[{GR+8*t+4}:{GR+8*t+7}], v5 offset:{2048*t+16}")
        for t in range(4): nxt.append(f"ds_read_b64 v[{112+2*t}:{113+2*t}], v10 offset:{1536-512*t}")
    for idx, (U, W) in enumerate(pairs):
        acc = ACC + 4 * (U + W)
        a = AB + buf * 32 + 4 * U; b = BB + buf * 32 + 4 * W
        cin = f"v[{acc}:{acc+3}]" if acc in first else "0"
        first.add(acc)
        A(f"v_mfma_f32_16x16x32_bf16 v[{acc}:{acc+3}], v[{a}:{a+3}], v[{b}:{b+3}], {cin}")
        if nxt and idx >= (2 if j < 3 else 0): A(nxt.pop(0))
        if idx in vm: A(vm[idx])
        if j == 3 and idx == 17:
            Lok = newlab("XSOK"); Lre = newlab("XSRE")
            tags = [GR + 2 * i + 1 for i in range(16)]
            A(f"s_waitcnt lgkmcnt(0)\ns_mov_b32 s96, 0\n{Lre}:")
            A(f"v_min3_u32 v8, v{tags[0]}, v{tags[1]}, v{tags[2]}\nv_max3_u32 v9, v{tags[0]}, v{tags[1]}, v{tags[2]}")
            for i in range(3, 15, 2):
                A(f"v_min3_u32 v8, v8, v{tags[i]}, v{tags[i+1]}\nv_max3_u32 v9, v9, v{tags[i]}, v{tags[i+1]}")
            A(f"""
            v_min_u32 v8, v8, v{tags[15]}
            v_max_u32 v9, v9, v{tags[15]}
            v_xor_b32 v8, {sTAG}, v8
            v_xor_b32 v9, {sTAG}, v9
            v_or_b32 v8, v8, v9
            v_cmp_ne_u32 vcc, 0, v8
            s_cbranch_vccz {Lok}
            s_add_u32 s96, s96, 1
            s_cmp_ge_u32 s96, {POLL_LIMIT}
            s_cbranch_scc1 {Lok}
            """)
            xs_loads()
            A(f"s_waitcnt vmcnt(0)\ns_branch {Lre}\n{Lok}:")
            for i in range(16):
                fill.append(f"v_and_b32 v{RRa+i}, 0xffff0000, v{GR+2*i}")
                fill.append(f"v_lshlrev_b32 v{MR+i}, 16, v{GR+2*i}")
                fill.append(f"v_rcp_f32 v{RRa+i}, v{RRa+i}")
        for _ in range(3):
            if fill: A(fill.pop(0))
    assert not nxt and not fill, (j, len(nxt), len(fill))
    if j < 3: stamp()
stamp()
A(f"""
v_lshlrev_b32 v8, 4, v1
s_lshl_b32 s83, {sWAVE}, 12
s_add_u32 s83, s83, {RED}
v_add_u32 v9, s83, v8
s_xor_b32 s84, {sWAVE}, 1
s_lshl_b32 s84, s84, 12
s_add_u32 s84, s84, {RED}
v_add_u32 v8, s84, v8
s_cmp_eq_u32 {sPAR}, 0
s_cbranch_scc1 C_P0
""")
for j in range(4): A(f"ds_write_b128 v9, v[{ACC+4*j}:{ACC+4*j+3}] offset:{1024*j}")
A("s_nop 1")
for j in range(8): A(f"v_mov_b64 v[{ACC+2*j}:{ACC+2*j+1}], v[{ACC+16+2*j}:{ACC+16+2*j+1}]")
A("s_branch C_PJ\nC_P0:\ns_nop 7")
for j in range(4): A(f"ds_write_b128 v9, v[{ACC+16+4*j}:{ACC+16+4*j+3}] offset:{1024*j}")
A("C_PJ:")
PR = 160; T = 120; OUTR = 128; Q = 136; XF = 176
A(f"""
s_and_b32 s83, {sCH}, 2
v_and_b32 v5, 3, v11
v_xor_b32 v5, s83, v5
v_lshlrev_b32 v5, 5, v5
v_lshl_add_u32 v5, v12, 3, v5
v_lshrrev_b32 v9, 2, v11
v_lshl_add_u32 v5, v9, 16, v5
s_lshl_b32 s83, {sCH}, 7
s_lshl_b32 s84, {sPAR}, 20
s_add_u32 s83, s83, s84
s_add_u32 s83, s83, {HT}
v_add_u32 v5, s83, v5
s_mov_b32 s88, 0
s_mov_b32 s89, {4*65536}
s_mov_b32 s90, {8*65536}
s_mov_b32 s91, {12*65536}
s_waitcnt lgkmcnt(0)
s_barrier
""")
for j in range(4): A(f"ds_read_b128 v[{PR+4*j}:{PR+4*j+3}], v8 offset:{1024*j}")
for j in range(4):
    acc = ACC + 4 * j; kv = 112 + 2 * j; x = XR + 2 * j; m = MR + 4 * j; rs = RRa + 4 * j; X = XF + 4 * j; q = Q + 4 * j
    A(f"""
    v_and_b32 v{T}, 0xffff0000, v{kv+1}
    v_lshlrev_b32 v{T+1}, 16, v{kv+1}
    v_and_b32 v{T+2}, 0xffff0000, v{kv}
    v_lshlrev_b32 v{T+3}, 16, v{kv}
    v_lshlrev_b32 v{X}, 16, v{x}
    v_and_b32 v{X+1}, 0xffff0000, v{x}
    v_lshlrev_b32 v{X+2}, 16, v{x+1}
    v_and_b32 v{X+3}, 0xffff0000, v{x+1}
    v_pk_fma_f32 v[{acc}:{acc+1}], v[{T}:{T+1}], v[14:15], v[{acc}:{acc+1}] op_sel:[0,1,0] op_sel_hi:[1,1,1]
    v_pk_fma_f32 v[{acc+2}:{acc+3}], v[{T+2}:{T+3}], v[14:15], v[{acc+2}:{acc+3}] op_sel:[0,1,0] op_sel_hi:[1,1,1]
    v_pk_add_f32 v[{q}:{q+1}], v[{X}:{X+1}], v[{m}:{m+1}] neg_lo:[0,1] neg_hi:[0,1]
    v_pk_add_f32 v[{q+2}:{q+3}], v[{X+2}:{X+3}], v[{m+2}:{m+3}] neg_lo:[0,1] neg_hi:[0,1]
    v_pk_mul_f32 v[{q}:{q+1}], v[{q}:{q+1}], v[{rs}:{rs+1}]
    v_pk_mul_f32 v[{q+2}:{q+3}], v[{q+2}:{q+3}], v[{rs+2}:{rs+3}]
    """)
stamp()
for j in range(4):
    acc = ACC + 4 * j; P = PR + 4 * j; X = XF + 4 * j; q = Q + 4 * j
    A(f"""
    s_waitcnt lgkmcnt({3-j})
    v_pk_add_f32 v[{acc}:{acc+1}], v[{acc}:{acc+1}], v[{P}:{P+1}]
    v_pk_add_f32 v[{acc+2}:{acc+3}], v[{acc+2}:{acc+3}], v[{P+2}:{P+3}]
    v_pk_fma_f32 v[{q}:{q+1}], v[{q}:{q+1}], v[{acc}:{acc+1}], v[{X}:{X+1}]
    v_pk_fma_f32 v[{q+2}:{q+3}], v[{q+2}:{q+3}], v[{acc+2}:{acc+3}], v[{X+2}:{X+3}]
    v_cvt_pk_bf16_f32 v{OUTR+2*j}, v{q}, v{q+1}
    v_cvt_pk_bf16_f32 v{OUTR+2*j+1}, v{q+2}, v{q+3}
    buffer_store_dwordx2 v[{OUTR+2*j}:{OUTR+2*j+1}], v5, {R4(WS)}, s{88+j} offen sc1
    """)
stamp()
A(f"v_add_u32 v12, {sW2W}, v3\nv_add_u32 v13, {sW2W}, v4\ns_waitcnt vmcnt(4)")
w2_tr(R1, 0, 12, 13)
A(f"""
s_add_u32 s76, {sGL}, {oFB}
s_lshl_b32 s77, {sJ}, 2
s_add_u32 s77, s77, s76
s_lshl_b32 s78, {sWAVE}, 13
s_add_u32 s78, s78, {W3W}
v_add_u32 v12, s78, v3
v_add_u32 v13, s78, v4
v_lshrrev_b32 v5, 2, v1
v_mul_u32_u24 v5, 3584, v5
v_and_b32 v6, 3, v1
v_lshl_add_u32 v5, v6, 4, v5
s_lshl_b32 s79, {sFT}, 6
v_add_u32 v5, s79, v5
s_and_b32 {sROT}, {sFG}, 3
s_lshl_b32 s79, {sROT}, 3
s_lshl_b32 s80, {sWAVE}, 15
v_bfe_u32 v14, v1, 2, 2
v_bfe_u32 v7, v1, 4, 1
v_lshrrev_b32 v8, 5, v1
v_lshlrev_b32 v9, 3, v8
v_add_u32 v9, v9, v14
v_lshlrev_b32 v9, 6, v9
v_lshl_add_u32 v9, v7, 5, v9
v_lshl_add_u32 v9, v6, 3, v9
v_add_u32 v9, s80, v9
v_add_u32 v14, s80, v3
v_add_u32 v15, s80, v4
v_mov_b32 v10, 0
v_mov_b32 v11, 0x3f803f80
v_mov_b32 v20, 0
v_mov_b32 v21, 0
v_mov_b32 v22, 0
s_waitcnt vmcnt(0) lgkmcnt(0)
s_barrier
""")
stamp()
L = only_wave(0)
flag_store("s77", 6, True)
A(f"{L}:\ns_cmp_ge_u32 {sFG}, 14\ns_cbranch_scc1 B_STATS\ns_mov_b32 m0, s80")
WF = 128
for i in range(32):
    A(f"""
    s_mul_i32 s81, s79, 57344
    buffer_load_dwordx4 v5, {R4(SW1)}, s81 offen lds
    s_add_u32 s79, s79, 1
    s_and_b32 s79, s79, 31
    s_add_u32 m0, m0, 1024
    """)
for i in range(8): A(w2_dma(m0base="s78" if i == 0 else None))
def dots(lo, hi):
    for i in range(lo, hi): A(f"v_dot2c_f32_bf16 v{[10,20,21,22][i%4]}, v{WF+i}, v11")
for q in range(4):
    A(f"s_waitcnt vmcnt({32 - 8*q})")
    for i in range(8 * q, 8 * q + 8):
        r = WF + 4 * i
        A(f"ds_read_b64_tr_b16 v[{r}:{r+1}], v9 offset:{1024*i}")
        A(f"ds_read_b64_tr_b16 v[{r+2}:{r+3}], v9 offset:{1024*i+256}")
    if q > 0:
        A("s_waitcnt lgkmcnt(15)")
        dots(32 * (q - 1), 32 * q)
A("s_waitcnt vmcnt(0)")
w2_tr(4, R1, 12, 13)
A("s_waitcnt lgkmcnt(15)")
dots(96, 128)
A(f"""
v_add_f32 v10, v10, v20
v_add_f32 v21, v21, v22
v_add_f32 v10, v10, v21
v_mov_b32 v20, v10
s_nop 1
v_permlane32_swap_b32 v10, v20
v_add_f32 v10, v10, v20
""")
for i in range(64): A(f"v_accvgpr_write_b32 a{160+i}, v{192+i}")
A(f"""
s_branch B_JOIN
B_STATS:
""")
L = only_wave(1)
A(f"""
s_cmp_lg_u32 {sJ}, 31
s_cbranch_scc1 {L}
v_and_b32 v5, 31, v1
v_lshlrev_b32 v5, 2, v5
v_add_u32 v5, s76, v5
""")
poll(5, 6)
A(f"""
v_lshlrev_b32 v5, 7, v1
s_lshl_b32 s79, {sX}, 2
s_add_u32 s79, s79, {FG}
v_mov_b32 v6, {sTAG}
buffer_store_dword v6, v5, {R4(WS)}, s79 offen sc1
{L}:
B_JOIN:
""")
stamp()
L = only_wave(0)
A(f"""
v_and_b32 v5, 7, v1
v_lshlrev_b32 v5, 2, v5
s_and_b32 s79, s2, 63
s_lshl_b32 s79, s79, 7
s_add_u32 s79, s79, {FG}
v_add_u32 v5, s79, v5
""")
poll(5, 6)
A(f"s_cmp_lg_u32 s2, 255\ns_cbranch_scc1 {L}\ns_mov_b32 s79, {EPOCH}")
flag_store("s79", 6, False)
A(f"{L}:\ns_waitcnt lgkmcnt(0)\ns_barrier")
stamp()
A(f"s_cmp_ge_u32 {sFG}, 14\ns_cbranch_scc1 P2_STATS")
def pf_late(va, vd):
    A(f"s_mul_i32 s88, {sWAVE}, 56")
    pf_rot(1, "s88", 56, va, vd, vd)
def p3_setup():
    A(f"""
    v_lshlrev_b32 v247, 4, v1
    v_lshrrev_b32 v244, 2, v1
    v_and_b32 v245, 3, v1
    v_bfe_u32 v246, v244, 1, 1
    s_and_b32 s68, {sST}, 1
    v_xor_b32 v246, s68, v246
    v_lshlrev_b32 v246, 6, v246
    v_lshl_add_u32 v246, v245, 4, v246
    v_lshl_add_u32 v246, v244, 7, v246
    s_lshr_b32 s69, {sST}, 1
    s_lshl_b32 s70, s69, 16
    s_lshl_b32 s71, {sDT}, 12
    s_add_u32 s70, s70, s71
    s_lshl_b32 s71, {sPAR}, 11
    s_add_u32 s70, s70, s71
    s_add_u32 s70, s70, {HT}
    s_add_u32 s71, s70, {65536 - 1024}
    s_lshl_b32 {sRES}, {sWAVE}, 11
    s_add_u32 {sRES}, {sRES}, 155648
    s_mov_b32 m0, {sRES}
    s_nop 0
    buffer_load_dwordx4 v246, {R4(WS)}, s70 offen sc1 lds
    buffer_load_dwordx4 v246, {R4(WS)}, s71 offen offset:1024 sc1 lds
    s_mul_i32 s72, {sST}, 114688
    s_add_u32 s72, s72, {H1F}
    s_lshl_b32 s73, {sKL}, 10
    s_add_u32 s73, s73, s72
    s_add_u32 s75, s73, 14336
    s_lshl_b32 s88, {sR3}, 11
    s_add_u32 s73, s73, s88
    v_min_u32 v244, 6, v1
    v_lshlrev_b32 v245, 2, v244
    s_and_b32 s69, {sSM}, 3
    s_lshl_b32 s69, s69, 8
    s_mul_i32 s74, {sWAVE}, 28
    s_add_u32 s69, s69, s74
    s_add_u32 s69, s69, {sGL}
    s_add_u32 s69, s69, {oFC}
    v_add_u32 v248, s69, v245
    v_add_u32 v249, 128, v248
    v_lshlrev_b32 v245, 7, v244
    s_lshl_b32 s69, {sSM}, 14
    s_lshl_b32 s74, {sKR}, 6
    s_add_u32 s69, s69, s74
    s_add_u32 s69, s69, {FCG}
    v_add_u32 v251, s69, v245
    v_add_u32 v252, 8192, v251
    """)
ACC2 = 64; BF = 16; CS = 40; SR = 56; TT = 192; OO = 224
A(f"""
v_lshlrev_b32 v9, 4, v1
s_lshl_b32 s76, {sMT}, 17
s_add_u32 s76, s76, {HT}
s_lshl_b32 s77, {sWAVE}, 12
s_add_u32 s76, s76, s77
s_mov_b32 s80, {sROT}
""")
nph = [0]
def issue2():
    q = nph[0]; nph[0] += 1
    A(f"""
    s_lshl_b32 s79, s80, 14
    s_add_u32 s79, s79, s76
    s_mov_b32 m0, s77
    s_add_u32 s80, s80, 1
    s_and_b32 s80, s80, 3
    s_add_u32 s77, s77, 16384
    """)
    if q == 3: A("s_add_u32 s76, s76, 65536")
    return [f"buffer_load_dwordx4 v9, {R4(WS)}, s79 offen offset:{1024*c} sc1 lds" for c in range(4)]
PRE = env("PRE", "4")
for p in range(PRE):
    for l in issue2(): A(l)
A(f"""
v_bfe_u32 v12, v1, 2, 2           ; r
v_and_b32 v13, 3, v1
v_bfe_u32 v14, v1, 4, 1
v_lshrrev_b32 v15, 5, v1
v_lshlrev_b32 v11, 3, v15
v_add_u32 v11, v11, v12
v_lshlrev_b32 v11, 7, v11
v_lshl_add_u32 v11, v14, 5, v11
v_lshl_add_u32 v11, v13, 3, v11
v_lshrrev_b32 v13, 1, v12
v_lshl_add_u32 v5, v13, 6, v11
v_xor_b32 v6, 64, v5
v_add_u32 v7, 0x10000, v5
v_add_u32 v8, 0x10000, v6
v_and_b32 v12, 31, v1
v_lshlrev_b32 v11, 3, v12
s_and_b32 s89, {sMT}, 3
s_lshl_b32 s89, s89, 8
s_add_u32 s89, s89, {sGL}
s_add_u32 s89, s89, {oFC}
s_and_b32 s83, {sX}, 1
s_mul_i32 s83, s83, 28
s_sub_u32 s83, {sFT}, s83
s_lshl_b32 s83, s83, 2
s_add_u32 s89, s89, s83
s_lshl_b32 s82, {sMT}, 14
s_add_u32 s82, s82, {FCG}
s_lshl_b32 s83, {sFT}, 7
s_add_u32 s82, s82, s83
s_lshl_b32 s81, {sMT}, 10
s_add_u32 s81, s81, {HSTG}
v_lshlrev_b32 v12, 2, v12
v_add_u32 v12, s78, v12
ds_write_b32 v12, v10
v_lshlrev_b32 v0, 4, v15
v_add_u32 v0, s78, v0
s_lshl_b32 s83, {sFT}, 11
s_add_u32 s83, s83, {H1F}
s_mul_i32 s84, {sMT}, {4*114688}
s_add_u32 s83, s83, s84
s_add_u32 s84, s83, 114688
s_add_u32 s85, s83, {2*114688}
s_add_u32 s86, s83, {3*114688}
s_lshl_b32 s87, {sWAVE}, 14
s_waitcnt lgkmcnt(0)
""")
for g in range(4): A(f"ds_read_b128 v[{CS+4*g}:{CS+4*g+3}], v0 offset:{32*g}")
def trreads(t):
    h, ks = divmod(t, 32); L = []; buf = t % 3
    for j in range(2):
        b = BF + 8 * buf + 4 * j; v = 5 + 2 * h + j
        L.append(f"ds_read_b64_tr_b16 v[{b}:{b+1}], v{v} offset:{2048*ks}")
        L.append(f"ds_read_b64_tr_b16 v[{b+2}:{b+3}], v{v} offset:{2048*ks+512}")
    return L
HS = 240
def hs_loads(h):
    for j in range(2): A(f"buffer_load_dwordx2 v[{HS+2*j}:{HS+2*j+1}], v11, {R4(WS)}, s81 offen offset:{512*h+256*j} sc1")
def hs_check(h):
    Lok = newlab("HSOK"); Lre = newlab("HSRE")
    A(f"""
    s_mov_b32 s96, 0
    {Lre}:
    v_xor_b32 v12, {sTAG}, v{HS+1}
    v_xor_b32 v13, {sTAG}, v{HS+3}
    v_or_b32 v12, v12, v13
    v_cmp_ne_u32 vcc, 0, v12
    s_cbranch_vccz {Lok}
    s_add_u32 s96, s96, 1
    s_cmp_ge_u32 s96, {POLL_LIMIT}
    s_cbranch_scc1 {Lok}
    """)
    hs_loads(h)
    A(f"s_waitcnt vmcnt(0)\ns_branch {Lre}\n{Lok}:")
    for j in range(2):
        S = SR + 4 * j
        A(f"""
        v_and_b32 v{S+2}, 0xffff0000, v{HS+2*j}
        v_lshlrev_b32 v{S}, 16, v{HS+2*j}
        v_rcp_f32 v{S+1}, v{S+2}
        v_xor_b32 v{S}, 0x80000000, v{S}
        v_mul_f32 v{S+1}, 0xbfb8aa3b, v{S+1}
        """)
def epi_list(h, packed):
    L = []
    for j in range(2):
        S = SR + 4 * j; O = OO + 8 * j
        for hh in range(2):
            Tt = TT + 8 * ((2 * j + hh) % 4)
            a0 = ACC2 + 32 * h + 16 * j + 8 * hh
            if packed:
                for p in range(4): L.append(f"v_pk_fma_f32 v[{a0+2*p}:{a0+2*p+1}], v[{CS+8*hh+2*p}:{CS+8*hh+2*p+1}], v[{S}:{S+1}], v[{a0+2*p}:{a0+2*p+1}] op_sel_hi:[1,0,1]")
                for p in range(4): L.append(f"v_pk_mul_f32 v[{Tt+2*p}:{Tt+2*p+1}], v[{a0+2*p}:{a0+2*p+1}], v[{S}:{S+1}] op_sel:[0,1] op_sel_hi:[1,1]")
            else:
                for p in range(8): L.append(f"v_fmac_f32 v{a0+p}, v{CS+8*hh+p}, v{S}")
                for p in range(8): L.append(f"v_mul_f32 v{Tt+p}, v{a0+p}, v{S+1}")
            for p in range(8): L.append(f"v_exp_f32 v{Tt+p}, v{Tt+p}")
            if packed:
                for p in range(4): L.append(f"v_pk_fma_f32 v[{Tt+2*p}:{Tt+2*p+1}], v[{Tt+2*p}:{Tt+2*p+1}], v[{S+2}:{S+3}], v[{S+2}:{S+3}] op_sel_hi:[1,0,0]")
            else:
                for p in range(8): L.append(f"v_fma_f32 v{Tt+p}, v{Tt+p}, v{S+2}, v{S+2}")
            for p in range(8): L.append(f"v_rcp_f32 v{Tt+p}, v{Tt+p}")
            if packed:
                for p in range(4): L.append(f"v_pk_mul_f32 v[{Tt+2*p}:{Tt+2*p+1}], v[{Tt+2*p}:{Tt+2*p+1}], v[{a0+2*p}:{a0+2*p+1}]")
            else:
                for p in range(8): L.append(f"v_mul_f32 v{Tt+p}, v{Tt+p}, v{a0+p}")
            for p in range(4): L.append(f"v_cvt_pk_bf16_f32 v{O+4*hh+p}, v{Tt+2*p}, v{Tt+2*p+1}")
            L.append(f"buffer_store_dwordx4 v[{O+4*hh}:{O+4*hh+3}], v9, {R4(WS)}, s{83+2*h+j} offen offset:{1024*hh} sc1")
    return L
A(f"s_waitcnt vmcnt({4*(PRE-1)}) lgkmcnt(0)\ns_barrier")
stamp()
for r in trreads(0) + trreads(1): A(r)
vq = []
for p in range(1, PRE): vq += [("ph", p)] * 4
def V_(txt, tag):
    A(txt); vq.append(tag)
def vwait(tag):
    global vq
    idx = [i for i, t in enumerate(vq) if t == tag]
    if not idx: return
    n = len(vq) - 1 - max(idx)
    A(f"s_waitcnt vmcnt({n})"); vq = vq[max(idx) + 1:]
epi = []
EP_PER = env("EPPER", "4")
for t in range(64):
    h, ks = divmod(t, 32); q, c = divmod(t, 8)
    A(f"s_waitcnt lgkmcnt({4 if t < 63 else 0})")
    fill = []
    if c == 0 and nph[0] < 8:
        qq = nph[0]; fill += [(l, ("ph", qq)) for l in issue2()]
    if c == 6 and q < 7:
        vwait(("ph", q + 1)); A("s_barrier")
    if t == 26:
        hs_loads(0); vq += [("hs", 0)] * 2
    if t == 24: pf_late(12, 13); vq.append(("pf", 0))
    if t == 32: stamp()
    if t == 34:
        vwait(("hs", 0)); hs_check(0); epi = epi_list(0, env("EPK", "0"))
    if t == 39:
        pass
    if 40 <= t < 52: fill.append((w2_dma(m0base="s87" if t == 40 else None), ("w2", 0)))
    if t == 58: hs_loads(1); vq += [("hs", 1)] * 2
    nxt = trreads(t + 2) if t < 62 else []
    w = f"v[{WF+4*ks}:{WF+4*ks+3}]" if ks < 16 else f"a[{160+4*(ks-16)}:{163+4*(ks-16)}]"
    for j in range(2):
        b = BF + 8 * (t % 3) + 4 * j; acc = ACC2 + 32 * h + 16 * j
        cin = "0" if ks == 0 else f"v[{acc}:{acc+15}]"
        A(f"v_mfma_f32_32x32x16_bf16 v[{acc}:{acc+15}], {w}, v[{b}:{b+3}], {cin}")
        for _ in range(2):
            if nxt: A(nxt.pop(0))
        if fill:
            x_, tg = fill.pop(0); V_(x_, tg)
        for _ in range(EP_PER):
            if epi:
                e = epi.pop(0)
                if e.startswith("buffer_store"): V_(e, ("st", 0))
                else: A(e)
    while fill and c == 1:
        x_, tg = fill.pop(0); V_(x_, tg)
    if c == 0 and fill:
        carry = fill
        for x_, tg in carry: V_(x_, tg)
for e in epi:
    if e.startswith("buffer_store"): V_(e, ("st", 0))
    else: A(e)
stamp()
vwait(("st", 0))
flag_store("s89", 12, True); flag_store("s82", 12, False); vq += [("fl", 0)] * 2
vwait(("hs", 1)); hs_check(1)
A(f"v_add_u32 v12, s87, v3\nv_add_u32 v13, s87, v4\ns_barrier")
w2_tr(6, 14, 12, 13)
stamp()
A(f"s_add_u32 s87, s87, 65536")
p3_setup()
el = epi_list(1, 1)
nd = 0
for i, e in enumerate(el):
    A(e)
    if i % 8 == 3 and nd < 16:
        A(w2_dma(m0base="s87" if nd == 0 else None)); nd += 1
    if i == 108: A(f"buffer_load_dword v250, v248, {R4(WS)}, 0 offen sc1\nbuffer_load_dword v253, v251, {R4(WS)}, 0 offen sc1"); nd_at = nd; st_after = sum(1 for x in el[i+1:] if x.startswith("buffer_store"))
assert nd == 16
stamp()
Lok = newlab("FCA")
A(f"""
s_add_u32 s82, s82, 8192
s_add_u32 s89, s89, 128
v_add_u32 v15, s87, v3
v_add_u32 v16, s87, v4
s_mov_b32 s95, 1
s_waitcnt vmcnt({16 - nd_at + st_after})
v_xor_b32 v250, {sTAG}, v250
v_xor_b32 v253, {sTAG}, v253
v_or_b32 v250, v250, v253
v_cmp_ne_u32 vcc, 0, v250
s_cbranch_vccz P3_START
""")
poll(248, 250)
poll(251, 250)
A("s_branch P3_START")
A("P2_STATS:")
w2n[0] = 2 * R1
nstamp[0] = 17
A(f"""
s_sub_u32 s76, {sFG}, 14
v_and_b32 v5, 7, v0
v_lshrrev_b32 v6, 3, v0
v_bfe_u32 v7, v6, 1, 1
v_lshlrev_b32 v7, 2, v7
v_xor_b32 v7, v7, v5
v_lshlrev_b32 v7, 4, v7
v_lshl_add_u32 v7, v6, 7, v7
s_lshl_b32 s79, {sMT}, 1
s_add_u32 s79, s79, s76
s_lshl_b32 s79, s79, 16
s_add_u32 s79, s79, {HT}
""")
for it in range(16):
    A(f"buffer_load_dwordx4 v[{64+4*it}:{67+4*it}], v7, {R4(WS)}, s79 offen sc1\ns_add_u32 s79, s79, 4096")
for i in range(16): A(f"v_mov_b32 v{32+i}, 0")
for it in range(16):
    A(f"s_waitcnt vmcnt({15-it})")
    for d in range(4):
        r = 64 + 4 * it + d; t = 20 + 2 * (d & 1)
        A(f"""
        v_lshlrev_b32 v{t}, 16, v{r}
        v_and_b32 v{t+1}, 0xffff0000, v{r}
        v_pk_add_f32 v[{32+2*d}:{33+2*d}], v[{32+2*d}:{33+2*d}], v[{t}:{t+1}]
        v_pk_fma_f32 v[{40+2*d}:{41+2*d}], v[{t}:{t+1}], v[{t}:{t+1}], v[{40+2*d}:{41+2*d}]
        """)
stamp()
for i in range(16): A(f"v_add_f32_dpp v{32+i}, v{32+i}, v{32+i} row_ror:8 row_mask:0xf bank_mask:0xf")
for i in range(16): A(f"v_mov_b32 v{48+i}, v{32+i}")
for i in range(16): A(f"v_permlane16_swap_b32 v{32+i}, v{48+i}")
for i in range(16): A(f"v_add_f32 v{32+i}, v{32+i}, v{48+i}")
for i in range(16): A(f"v_mov_b32 v{48+i}, v{32+i}")
for i in range(16): A(f"v_permlane32_swap_b32 v{32+i}, v{48+i}")
for i in range(16): A(f"v_add_f32 v{32+i}, v{32+i}, v{48+i}")
SRED = 131072
A(f"""
v_lshlrev_b32 v8, 6, v5
s_lshl_b32 s79, {sWAVE}, 9
s_add_u32 s79, s79, {SRED}
v_add_u32 v8, s79, v8
s_mov_b64 exec, 0xff
ds_write_b128 v8, v[32:35]
ds_write_b128 v8, v[36:39] offset:16
ds_write_b128 v8, v[40:43] offset:32
ds_write_b128 v8, v[44:47] offset:48
s_mov_b64 exec, -1
s_waitcnt lgkmcnt(0)
s_barrier
""")
L = only_wave(0)
A(f"""
v_lshrrev_b32 v8, 3, v1
v_lshlrev_b32 v8, 6, v8
v_and_b32 v9, 7, v1
v_lshl_add_u32 v8, v9, 2, v8
v_add_u32 v8, {SRED}, v8
""")
for w in range(4): A(f"ds_read_b32 v{20+w}, v8 offset:{512*w}\nds_read_b32 v{24+w}, v8 offset:{512*w+32}")
A("""
s_waitcnt lgkmcnt(0)
v_add_f32 v20, v20, v21
v_add_f32 v22, v22, v23
v_add_f32 v24, v24, v25
v_add_f32 v26, v26, v27
v_add_f32 v20, v20, v22
v_add_f32 v24, v24, v26
""")
rowstats_pack(20, 24, 28)
A(f"""
v_mov_b32 v29, {sTAG}
v_lshlrev_b32 v8, 3, v1
s_lshl_b32 s79, {sMT}, 10
s_lshl_b32 s80, s76, 9
s_add_u32 s79, s79, s80
s_add_u32 s79, s79, {HSTG}
buffer_store_dwordx2 v[28:29], v8, {R4(WS)}, s79 offen sc1
{L}:
s_barrier
""")
stamp()
pf_late(20, 21)
A(f"s_lshl_b32 s87, {sWAVE}, 15\nv_add_u32 v12, s87, v3\nv_add_u32 v13, s87, v4")
for i in range(32): A(w2_dma(m0base="s87" if i == 0 else None))
A("s_waitcnt vmcnt(0)")
w2_tr(16, R1, 12, 13)
A("s_waitcnt lgkmcnt(0)")
for i in range(4): A(w2_dma(m0base="s87" if i == 0 else None))
A("s_waitcnt vmcnt(0)")
w2_tr(2, R1 + 16, 12, 13)
A("s_mov_b32 s95, 0")
p3_setup()
poll(248, 250)
poll(251, 250)
A("P3_START:\ns_waitcnt lgkmcnt(0)")
nstamp[0] = 21
stamp()
ACC3 = 64; HB = 128; NS3 = 24; AH3 = env("AH3", "14")
RD3 = 131072
stamp()
cnt3 = [0]
def load3():
    t = cnt3[0]; cnt3[0] += 1
    sl = HB + (t % NS3) * 4
    A(f"buffer_load_dwordx4 v[{sl}:{sl+3}], v247, {R4(WS)}, s73 offen offset:{1024*(t%2)} sc1")
    if t % 14 == 13:
        nk = [sKR, sKL, sKR, sKL][t // 14]
        if t == 27: A(f"s_add_u32 s72, s72, {2*114688}")
        A(f"s_lshl_b32 s73, {nk}, 10\ns_add_u32 s73, s73, s72\ns_add_u32 s75, s73, 14336\ns_lshl_b32 s88, {sR3}, 11\ns_add_u32 s73, s73, s88")
    elif t % 2 == 1: A("s_add_u32 s73, s73, 2048\ns_cmp_eq_u32 s73, s75\ns_cselect_b32 s88, 14336, 0\ns_sub_u32 s73, s73, s88")
for ks in range(AH3): load3()
A(f"""
v_bfe_u32 v5, v1, 2, 2
v_and_b32 v6, 3, v1
v_bfe_u32 v7, v1, 4, 1
v_lshrrev_b32 v8, 5, v1
v_lshlrev_b32 v9, 2, v8
v_add_u32 v9, v9, v5
v_lshlrev_b32 v9, 6, v9
v_lshl_add_u32 v9, v7, 5, v9
v_lshl_add_u32 v9, v6, 3, v9
v_add_u32 v9, {sRES}, v9
v_and_b32 v5, 31, v1
v_lshlrev_b32 v5, 10, v5
v_lshl_add_u32 v5, v8, 4, v5
s_lshl_b32 s77, {sST}, 15
s_lshl_b32 s78, {sDT}, 6
s_add_u32 s77, s77, s78
s_lshl_b32 s78, {sPAR}, 5
s_add_u32 s77, s77, s78
s_add_u32 s78, s77, 65536
s_mul_i32 s76, {sWAVE}, 6144
s_add_u32 s76, s76, {RD3}
v_add_u32 v10, s76, v247
""")
for j in range(1, 4):
    A(f"s_xor_b32 s76, {sWAVE}, {j}\ns_mul_i32 s76, s76, 6144\ns_add_u32 s76, s76, {RD3 + (j-1)*2048}\nv_add_u32 v{10+j}, s76, v247")
A("s_barrier")
def red_write(ps):
    base = ACC3 + 32 * ps
    L0 = newlab("RP"); L1 = newlab("RP")
    A(f"s_cmp_eq_u32 {sPAR}, 0\ns_cbranch_scc0 {L0}")
    for par in range(2):
        for j in (3, 2, 1):
            a, e = j >> 1, j & 1
            r = base + 16 * a + 8 * (par ^ e)
            A(f"ds_write_b128 v{10+j}, v[{r}:{r+3}] offset:{24576*0}\nds_write_b128 v{10+j}, v[{r+4}:{r+7}] offset:1024")
        r = base + 8 * par
        for p in range(4): A(f"v_mov_b64 v[{48+2*p}:{49+2*p}], v[{r+2*p}:{r+2*p+1}]")
        if par == 0: A(f"s_branch {L1}\n{L0}:\ns_nop 7\ns_nop 3")
    A(f"{L1}:")
def red_final(ps):
    L = []
    for j in range(3):
        for g in range(2): L.append(f"ds_read_b128 v[{24+8*j+4*g}:{27+8*j+4*g}], v10 offset:{2048*j+1024*g}")
    for g in range(2): L.append(f"ds_read_b64_tr_b16 v[{20+2*g}:{21+2*g}], v9 offset:{1024*ps+512*g}")
    L.append("s_waitcnt lgkmcnt(0)")
    for g in range(2):
        L += [f"v_lshlrev_b32 v{56+4*g}, 16, v{20+2*g}", f"v_and_b32 v{57+4*g}, 0xffff0000, v{20+2*g}", f"v_lshlrev_b32 v{58+4*g}, 16, v{21+2*g}", f"v_and_b32 v{59+4*g}, 0xffff0000, v{21+2*g}"]
    for p in range(8): L.append(f"v_add_f32 v{48+p}, v{48+p}, v{56+p}")
    for p in range(8): L.append(f"v_add_f32 v{24+p}, v{24+p}, v{32+p}")
    for p in range(8): L.append(f"v_add_f32 v{48+p}, v{48+p}, v{40+p}")
    for p in range(8): L.append(f"v_add_f32 v{48+p}, v{48+p}, v{24+p}")
    for p in range(4): L.append(f"v_cvt_pk_bf16_f32 v{56+p}, v{48+2*p}, v{49+2*p}")
    L += ["v_permlane32_swap_b32 v56, v58", "v_permlane32_swap_b32 v57, v59",
          f"buffer_store_dwordx4 v[56:59], v5, {R4(SOUT)}, {'s77' if ps == 0 else 's78'} offen"]
    return L
fin = []
q3 = [("ld", i) for i in range(AH3)]
def w3(tag):
    global q3
    idx = [i for i, x in enumerate(q3) if x == tag]
    if not idx: return
    A(f"s_waitcnt vmcnt({len(q3) - 1 - idx[-1]})"); q3 = q3[idx[-1] + 1:]
for t in range(56):
    ps, ks = divmod(t, 28)
    w3(("ld", t))
    if t == 0:
        stamp()
        LL = newlab("LT")
        A(f"s_cmp_eq_u32 s95, 0\ns_cbranch_scc1 {LL}")
        flag_store("s89", 14, True); flag_store("s82", 14, False)
        w2_tr(8, 20, 15, 16)
        A(f"{LL}:")
    if t == 16: A("s_waitcnt lgkmcnt(0)")
    if t == 28:
        red_write(0)
    if t == 32:
        A("s_waitcnt lgkmcnt(0)\ns_barrier"); fin = red_final(0)
    sl = HB + (t % NS3) * 4
    order = (0, 1) if ks < 27 else (1, 0)
    for n_, a in enumerate(order):
        acc = ACC3 + 32 * ps + 16 * a
        cin = "0" if ks == 0 else f"v[{acc}:{acc+15}]"
        A(f"v_mfma_f32_32x32x16_bf16 v[{acc}:{acc+15}], a[{8*ks+4*a}:{8*ks+4*a+3}], v[{sl}:{sl+3}], {cin}")
        if n_ == 0 and cnt3[0] < 56:
            for at, va, vd in ((28, 249, 6), (42, 252, 7)):
                if cnt3[0] == at - 4:
                    A(f"buffer_load_dword v{vd}, v{va}, {R4(WS)}, 0 offen sc1"); q3.append(("fl", at))
                if cnt3[0] == at:
                    Lok = newlab("FCOK")
                    w3(("fl", at))
                    A(f"v_cmp_ne_u32 vcc, {sTAG}, v{vd}\ns_cbranch_vccz {Lok}")
                    poll(va, vd)
                    A(f"{Lok}:")
            q3.append(("ld", cnt3[0])); load3()
        for _ in range(4):
            if fin:
                e = fin.pop(0); A(e)
                if e.startswith("buffer_store"): q3.append(("st", 0))
stamp()
A("s_barrier")
red_write(1)
A("s_waitcnt lgkmcnt(0)\ns_barrier")
for e in red_final(1): A(e)
if DIAG:
    stamp()
    A("s_waitcnt vmcnt(0)")
    stamp()
    A(f"v_accvgpr_write_b32 a{224+nstamp[0]}, {sFAST}"); nstamp[0] += 1
    A(f"s_lshl_b32 s76, s2, 2\ns_add_u32 s76, s76, {sWAVE}\ns_lshl_b32 s76, s76, 7\ns_add_u32 s76, s76, {DIAGBASE}")
    for i in range(nstamp[0]):
        A(f"v_accvgpr_read_b32 v2, a{224+i}\nbuffer_store_dword v2, off, {R4(WS)}, s76 offset:{4*i}")
A("K_END:\ns_endpgm")

kn = NAME + "_kernel"
body = A.finalize()
out = [f"; {NAME}: persistent single launch (generated by gen/gen8.py)",
       "; phases: kv^T + LN(x) stats -> Toeplitz-MFMA long conv + gate + residual -> LN(h)@W1 + SiLU -> @W2 + residual; tagged flag hand-offs in d_ws",
       f"; @launch grid=(256,1,1) block=(256,1,1) lds={LDS_TOTAL}",
       '.amdgcn_target "amdgcn-amd-amdhsa--gfx950"', ".text",
       f".globl {kn}\n.p2align 8\n.type {kn},@function\n{kn}:",
       body,
       ".fill 256, 4, 0xbf800000",
       '.section .rodata,"a"\n.p2align 6',
       f".amdhsa_kernel {kn}\n  .amdhsa_next_free_vgpr 512\n  .amdhsa_next_free_sgpr 102\n  .amdhsa_accum_offset 256\n"
       "  .amdhsa_group_segment_fixed_size 0\n  .amdhsa_kernarg_size 96\n  .amdhsa_user_sgpr_count 2\n"
       "  .amdhsa_user_sgpr_kernarg_segment_ptr 1\n  .amdhsa_system_sgpr_workgroup_id_x 1\n.end_amdhsa_kernel\n"]
path = sys.argv[1] if len(sys.argv) > 1 else f"p8.s"
open(path, "w").write("\n".join(out))
print("wrote", path, "stamps", nstamp[0])
```

```python
import sys, os
sys.path.insert(0, os.path.dirname(os.path.abspath(__file__)))
from asmlib import Asm

NAME = "sequential_preLN__ssm_conv_h3__dense_activation_silu__prompt"
KVR = 0x000000
XT  = 0x200000
XS  = 0x400000
FL  = 0x480000
EPOCH = FL
FG = FL + 0x4000
GL = FL + 0x10000
oINFO, oFA, oFB, oFC, oHST = 0, 128, 256, 1024, 2048
HT  = 0x500000
H1F = 0xC00000
WS_SIZE = 0x1400000
env = lambda k, d: int(os.environ.get(k, d))
DIAG = env("DIAG", "0"); NOFAST = env("NOFAST", "0"); CODEPF = env("CODEPF", "0")
TIMER = "s_memrealtime" if os.environ.get("RT") else "s_memtime"
DIAGBASE = 0x1300000
POLL_LIMIT = 50000
W1LATE = env("W1LATE", "1")
MAP47 = env("MAP47", "1")
FCG = FL + 0x40000; HSTG = FL + 0x24000
TLBW = env("TLBW", "0")

WS, SQ, SK_, SV, SSH, SKN, SSD, SW1, SW2, SOUT = 28, 32, 36, 40, 44, 48, 52, 56, 60, 64
def R4(b): return f"s[{b}:{b+3}]"
sGL = "s3"
sWAVE, sX, sJ, sTAG, sCHL, sPAR, sCH = "s4", "s5", "s6", "s7", "s8", "s9", "s10"
sMT, sFG, sFT, sSM, sDN, sDT, sST = "s11", "s12", "s13", "s14", "s15", "s16", "s17"
sW2C, sW2W, sROT, sRES, sFAST, sINFO = "s18", "s19", "s20", "s21", "s26", "s27"

KC = 0; CHS = 16640; CPS = 4160
KV = 33280; KVS = 4608
XSL = 42496
RED = 58880
WW = 75264; R1 = 10; WWS = R1 * 2048
W3W = 131072
CSL = 131072
RES3B = 147456
LDS_TOTAL = 163840

A = Asm()
nstamp = [0]
def stamp():
    if DIAG:
        i = nstamp[0]; nstamp[0] += 1
        assert i < 31
        A(f"{TIMER} s[100:101]\ns_waitcnt lgkmcnt(0)\nv_accvgpr_write_b32 a{224+i}, s100")
def srd(d, lo, nbytes):
    A(f"s_mov_b32 s{d}, s{lo}\ns_mov_b32 s{d+1}, s{lo+1}\ns_mov_b32 s{d+2}, {hex(nbytes)}\ns_mov_b32 s{d+3}, 0x00020000")
lab = [0]
def newlab(p="L"):
    lab[0] += 1
    return f"{p}{lab[0]}"
def rowstats_pack(vsum, vsq, t0, inv_n="0x3b000000"):
    A(f"""
    v_mul_f32 v{vsum}, {inv_n}, v{vsum}
    v_mul_f32 v{vsq}, {inv_n}, v{vsq}
    v_fma_f32 v{vsq}, -v{vsum}, v{vsum}, v{vsq}
    v_max_f32 v{vsq}, 0, v{vsq}
    v_cvt_pk_bf16_f32 v{t0}, v{vsq}, v{vsq}
    v_lshlrev_b32 v{vsq}, 16, v{t0}
    v_add_f32 v{vsq}, 0x3727c5ac, v{vsq}
    v_cvt_pk_bf16_f32 v{t0}, v{vsq}, v{vsq}
    v_lshlrev_b32 v{vsq}, 16, v{t0}
    v_sqrt_f32 v{vsq}, v{vsq}
    v_cvt_pk_bf16_f32 v{t0}, v{vsum}, v{vsq}
    """)
def poll(voff, vtmp):
    L = newlab("POLL"); D = newlab("PDONE")
    A(f"""
    s_mov_b32 s96, 0
    {L}:
    buffer_load_dword v{vtmp}, v{voff}, {R4(WS)}, 0 offen sc1
    s_waitcnt vmcnt(0)
    v_cmp_ne_u32 vcc, {sTAG}, v{vtmp}
    s_cbranch_vccz {D}
    s_add_u32 s96, s96, 1
    s_cmp_lt_u32 s96, {POLL_LIMIT}
    s_cbranch_scc1 {L}
    {D}:
    """)
def flag_store(soff, vtmp, local):
    A(f"v_mov_b32 v{vtmp}, {sTAG}\ns_mov_b64 exec, 1")
    if local:
        L1 = newlab("FS"); L2 = newlab("FS")
        A(f"""
        s_cmp_eq_u32 {sFAST}, 0
        s_cbranch_scc1 {L1}
        buffer_store_dword v{vtmp}, off, {R4(WS)}, {soff}
        s_branch {L2}
        {L1}:
        buffer_store_dword v{vtmp}, off, {R4(WS)}, {soff} sc1
        {L2}:
        """)
    else:
        A(f"buffer_store_dword v{vtmp}, off, {R4(WS)}, {soff} sc1")
    A("s_mov_b64 exec, -1")
def only_wave(w):
    L = newlab("NW"); A(f"s_cmp_lg_u32 {sWAVE}, {w}\ns_cbranch_scc1 {L}"); return L
def info_load(va, vd):
    A(f"v_and_b32 v{va}, 31, v1\nv_lshlrev_b32 v{va}, 2, v{va}\nbuffer_load_dword v{vd}, v{va}, {R4(WS)}, {sGL} offen sc1")
def info_eval(vd):
    if NOFAST:
        A(f"s_mov_b32 {sFAST}, 0"); return
    A(f"v_cmp_ne_u32 vcc, {sINFO}, v{vd}\ns_cmp_eq_u64 vcc, 0\ns_cselect_b32 {sFAST}, 1, 0")
ROT3 = env("ROT3", "1")
sW2E = "s22"
sR3 = "s23"
sKR = "s24"
sKL = "s25"
w2n = [0]
def w2_dma(m0base=None):
    L = []
    if m0base is not None: L.append(f"s_mov_b32 m0, {m0base}")
    L.append(f"buffer_load_dwordx4 v2, {R4(SW2)}, {sW2C} offen lds")
    w2n[0] += 1
    if w2n[0] == 28:
        L.append(f"s_add_u32 m0, m0, 1024\ns_lshl_b32 {sW2C}, {sKR}, 14\ns_add_u32 {sW2E}, {sW2C}, {14*16384}\ns_lshl_b32 s97, {sR3}, 15\ns_add_u32 {sW2C}, {sW2C}, s97")
    else:
        L.append(f"s_add_u32 {sW2C}, {sW2C}, 8192\ns_add_u32 m0, m0, 1024")
        if w2n[0] % 4 == 0: L.append(f"s_cmp_eq_u32 {sW2C}, {sW2E}\ns_cselect_b32 s97, {14*16384}, 0\ns_sub_u32 {sW2C}, {sW2C}, s97")
    return "\n".join(L)
def w2_tr(nk, k0, b0, b1, off0=0):
    for t in range(nk):
        for a, b in ((0, b0), (1, b1)):
            r = 8 * (k0 + t) + 4 * a
            A(f"ds_read_b64_tr_b16 a[{r}:{r+1}], v{b} offset:{off0+2048*t}")
            A(f"ds_read_b64_tr_b16 a[{r+2}:{r+3}], v{b} offset:{off0+2048*t+1024}")
def pf_rot(seg, i0_expr, n, va, vt, vd):
    A(f"""
    v_min_u32 v{va}, {n-1}, v1
    s_lshl_b32 s97, {sR3}, 5
    s_add_u32 s97, s97, {i0_expr}
    v_add_u32 v{va}, s97, v{va}
    v_subrev_u32 v{vt}, 224, v{va}
    v_min_u32 v{va}, v{va}, v{vt}
    v_lshlrev_b32 v{va}, 10, v{va}
    s_and_b32 s97, {sX}, 1
    s_xor_b32 s97, s97, {seg}
    s_mul_i32 s97, s97, {896*1024}
    s_and_b32 s94, {sJ}, 3
    s_mul_i32 s94, s94, {224*1024}
    s_add_u32 s97, s97, s94
    s_lshl_b32 s94, {sDN}, 7
    s_add_u32 s97, s97, s94
    buffer_load_dword v{vd}, v{va}, {R4(SW2)}, s97 offen sc1
    """)
def pf(srd_, soff, va, vd): return f"buffer_load_dword v{vd}, v{va}, {R4(srd_)}, {soff} offen sc1"

A("K_START:\ns_cmp_ge_u32 s2, 256\ns_cbranch_scc1 K_END")
A(f"""
s_load_dwordx16 s[4:19], s[0:1], 0
s_load_dwordx8 s[20:27], s[0:1], 64
""")
stamp()
A(f"""
s_and_b32 s68, s2, 7
s_lshr_b32 s69, s2, 3
v_and_b32 v182, 15, v0
v_bfe_u32 v183, v0, 4, 2
v_bfe_u32 v184, v0, 6, 1
v_lshrrev_b32 v185, 7, v0
s_lshl_b32 s71, s69, 6
s_lshl_b32 s72, s68, 7
v_lshlrev_b32 v186, 3, v183
v_lshl_add_u32 v186, v185, 5, v186
v_add_u32 v186, s71, v186        ; row0
v_lshlrev_b32 v187, 2, v182
v_lshl_add_u32 v187, v184, 6, v187
v_add_u32 v187, s72, v187        ; ch*2
v_lshl_add_u32 v188, v186, 10, v187
v_add_u32 v189, 4096, v188
v_subrev_u32 v190, 3072, v188
v_lshlrev_b32 v191, 2, v187
s_mov_b32 s{SK_+2}, 0x200000
s_mov_b32 s{SK_+3}, 0x00020000
s_mov_b32 s{SV+2}, 0x200000
s_mov_b32 s{SV+3}, 0x00020000
s_lshl_b32 s73, s68, 6
s_lshl_b32 s74, s69, 1
s_add_u32 s73, s73, s74           ; c0 = 64x + 2j
s_lshl_b32 s75, s73, 12
v_lshlrev_b32 v3, 4, v0
v_add_u32 v3, s75, v3
v_add_u32 v4, 4096, v3
s_waitcnt lgkmcnt(0)
s_mov_b32 s{SK_}, s6
s_mov_b32 s{SK_+1}, s7
s_mov_b32 s{SV}, s8
s_mov_b32 s{SV+1}, s9
""")
for j in range(3): A(f"buffer_load_dword v{64+j}, v190, {R4(SK_)}, 0 offen offset:{1024*j}")
for j in range(4): A(f"buffer_load_dword v{67+j}, v188, {R4(SK_)}, 0 offen offset:{1024*j}")
for j in range(4): A(f"buffer_load_dword v{71+j}, v189, {R4(SK_)}, 0 offen offset:{1024*j}")
srd(SSH, 10, 4096); srd(WS, 26, WS_SIZE)
A(f"buffer_load_dwordx4 v[92:95], v191, {R4(SSH)}, 0 offen")
A(f"s_mov_b32 s76, {EPOCH}\nbuffer_load_dword v200, off, {R4(WS)}, s76")
for j in range(4): A(f"buffer_load_dword v{75+j}, v188, {R4(SV)}, 0 offen offset:{1024*j}")
for j in range(4): A(f"buffer_load_dword v{79+j}, v189, {R4(SV)}, 0 offen offset:{1024*j}")
srd(SQ, 4, 0x200000)
for j in range(4): A(f"buffer_load_dword v{83+j}, v188, {R4(SQ)}, 0 offen offset:{1024*j}")
for j in range(4): A(f"buffer_load_dword v{87+j}, v189, {R4(SQ)}, 0 offen offset:{1024*j}")
A(f"""
v_lshrrev_b32 v192, 5, v0
s_lshl_b32 s76, s2, 3
v_add_u32 v192, s76, v192
v_and_b32 v193, 31, v0
v_lshlrev_b32 v194, 4, v193
v_lshl_add_u32 v194, v192, 10, v194
buffer_load_dwordx4 v[96:99], v194, {R4(SQ)}, 0 offen
buffer_load_dwordx4 v[100:103], v194, {R4(SQ)}, 0 offen offset:512
""")
srd(SKN, 12, 0x200000)
A(f"""
buffer_load_dwordx4 v[16:19], v3, {R4(SKN)}, 0 offen
buffer_load_dwordx2 v[20:21], v3, {R4(SKN)}, 0 offen offset:16
buffer_load_dwordx4 v[28:31], v4, {R4(SKN)}, 0 offen
buffer_load_dwordx2 v[32:33], v4, {R4(SKN)}, 0 offen offset:16
v_and_b32 v1, 63, v0
v_lshrrev_b32 v2, 6, v0
v_bfe_u32 v5, v1, 2, 1
v_lshlrev_b32 v5, 12, v5
v_readfirstlane_b32 s70, v2
v_add_u32 v5, s75, v5
buffer_load_dwordx2 v[48:49], v5, {R4(SKN)}, 0 offen
s_lshl_b32 {sGL}, s68, 12
s_add_u32 {sGL}, {sGL}, {GL}
v_and_b32 v6, 15, v1
v_lshlrev_b32 v6, 7, v6
buffer_load_dword v208, v6, {R4(WS)}, {sGL} offen sc1
""")
srd(SSD, 14, 1024)
A(f"""
s_lshr_b32 s77, s70, 1
s_add_u32 s77, s77, s73
s_lshl_b32 s77, s77, 1
buffer_load_ushort v50, off, {R4(SSD)}, s77
""")
srd(SW1, 18, 512*1792*2); srd(SW2, 20, 512*1792*2); srd(SOUT, 22, 0x200000)
A(f"""
s_getreg_b32 s74, hwreg(HW_REG_XCC_ID, 0, 4)
s_mov_b32 {sWAVE}, s70
s_mov_b32 {sX}, s68
s_mov_b32 {sJ}, s69
s_lshr_b32 {sCHL}, s70, 1
s_and_b32 {sPAR}, s70, 1
s_add_u32 {sCH}, s73, {sCHL}
""")
if MAP47:
    A(f"""
    s_lshr_b32 s76, s68, 1
    s_lshl_b32 s76, s76, 2            ; 4p
    s_and_b32 s77, s69, 3
    s_add_u32 {sMT}, s76, s77         ; mt = 4p + (j&3)
    s_and_b32 s78, s68, 1
    s_mul_i32 {sFG}, s78, 7
    s_lshr_b32 s79, s69, 2
    s_add_u32 {sFG}, {sFG}, s79       ; fg = 7(x&1) + (j>>2)
    s_lshl_b32 s78, s78, 1
    s_add_u32 s76, s76, s78
    s_lshr_b32 s78, s77, 1
    s_add_u32 s76, s76, s78
    s_and_b32 s77, s77, 1
    s_add_u32 s77, s77, 14
    s_cmp_ge_u32 s69, 28
    s_cselect_b32 {sMT}, s76, {sMT}
    s_cselect_b32 {sFG}, s77, {sFG}
    """)
else:
    A(f"""
    s_lshl_b32 {sMT}, s68, 1
    s_and_b32 s76, s69, 1
    s_add_u32 {sMT}, {sMT}, s76
    s_lshr_b32 {sFG}, s69, 1
    """)
A(f"""
s_lshl_b32 {sFT}, {sFG}, 2
s_add_u32 {sFT}, {sFT}, s70
s_lshl_b32 {sSM}, s68, 1
s_bfe_u32 s76, s69, 0x10001
s_add_u32 {sSM}, {sSM}, s76       ; mt3
s_lshr_b32 {sDN}, s69, 2
s_lshl_b32 {sDT}, {sDN}, 1
s_add_u32 {sDT}, {sDT}, {sCHL}
s_lshl_b32 {sST}, {sSM}, 2
s_and_b32 s76, s69, 1
s_add_u32 {sST}, {sST}, s76
s_mov_b32 {sFAST}, 0
s_and_b32 s76, s68, 1
s_mul_i32 {sKL}, s76, 56
s_sub_u32 {sKR}, 56, {sKL}
s_mul_i32 s76, {sWAVE}, 14
s_add_u32 {sKL}, {sKL}, s76
s_add_u32 {sKR}, {sKR}, s76
s_min_u32 {sR3}, {sDN}, 6
s_lshl_b32 {sW2C}, {sKL}, 14
s_add_u32 {sW2E}, {sW2C}, {14*16384}
s_lshl_b32 s76, {sR3}, 15
s_add_u32 {sW2C}, {sW2C}, s76
v_lshrrev_b32 v5, 3, v1
v_and_b32 v6, 7, v1
v_bfe_u32 v7, v1, 4, 1
v_lshlrev_b32 v7, 2, v7
v_xor_b32 v6, v6, v7
v_lshlrev_b32 v2, 4, v6
v_lshl_add_u32 v2, v5, 10, v2
s_lshl_b32 s76, {sDN}, 7
v_add_u32 v2, s76, v2
v_lshlrev_b32 v195, 11, v187
v_lshlrev_b32 v196, 1, v186
v_sub_u32 v197, v195, v196
v_add_u32 v197, {KVR + 4080}, v197
v_add_u32 v198, v195, v196
v_add_u32 v198, {XT}, v198
s_mul_i32 {sW2W}, {sWAVE}, {WWS}
s_add_u32 {sW2W}, {sW2W}, {WW}
v_bfe_u32 v5, v1, 2, 2
v_and_b32 v6, 3, v1
v_bfe_u32 v7, v1, 4, 1
v_lshrrev_b32 v8, 5, v1
v_lshlrev_b32 v9, 2, v8
v_add_u32 v9, v9, v5
v_lshlrev_b32 v9, 7, v9
v_lshl_add_u32 v9, v7, 5, v9
v_lshl_add_u32 v9, v6, 3, v9
v_lshrrev_b32 v10, 1, v5
v_xor_b32 v10, {sCHL}, v10
v_lshl_add_u32 v3, v10, 6, v9
v_xor_b32 v4, 64, v3
v_lshlrev_b32 v51, 4, v0
v_add_u32 v51, {KC + 32}, v51
v_mov_b32 v52, 0
v_mov_b32 v53, 0
v_mov_b32 v54, 0
v_mov_b32 v55, 0
v_lshrrev_b32 v5, 5, v1
v_mul_u32_u24 v5, {KVS}, v5
v_and_b32 v6, 31, v1
v_lshl_add_u32 v5, v6, 4, v5
v_add_u32 v5, {KV + 4096}, v5
ds_write_b128 v5, v[52:55]
s_mov_b32 s76, 4096
s_mov_b32 s77, 0x05040100
s_mov_b32 s78, 0x07060302
""")
stamp()
A(f"""
s_waitcnt vmcnt(25)
v_readfirstlane_b32 {sTAG}, v200
s_lshl_b32 s79, {sJ}, 2
s_add_u32 s79, s79, {sGL}
""")
stamp()
A(f"""
v_lshlrev_b32 v142, 16, v92
v_lshlrev_b32 v143, 16, v94
s_add_u32 {sTAG}, {sTAG}, 1
s_lshl_b32 {sINFO}, {sTAG}, 4
s_or_b32 {sINFO}, {sINFO}, s74
v_mov_b32 v5, {sINFO}
s_mov_b64 exec, 1
buffer_store_dword v5, off, {R4(WS)}, s79
s_mov_b64 exec, -1
v_and_b32 v144, 0xffff0000, v92
v_and_b32 v145, 0xffff0000, v94
v_lshlrev_b32 v146, 16, v93
v_lshlrev_b32 v147, 16, v95
v_and_b32 v148, 0xffff0000, v93
v_and_b32 v149, 0xffff0000, v95
""")
for r in range(11): A(f"v_lshlrev_b32 v{104+2*r}, 16, v{64+r}\nv_and_b32 v{105+2*r}, 0xffff0000, v{64+r}")
for r in range(8):
    R = 150 + 2 * r
    A(f"v_pk_mul_f32 v[{R}:{R+1}], v[{104+2*(r+3)}:{105+2*(r+3)}], v[142:143]")
for j in range(1, 4):
    for r in range(8):
        R = 150 + 2 * r; K = 104 + 2 * (r + 3 - j)
        A(f"v_pk_fma_f32 v[{R}:{R+1}], v[{K}:{K+1}], v[{142+2*j}:{143+2*j}], v[{R}:{R+1}]")
A("s_waitcnt vmcnt(18)")
for r in range(8): A(f"v_lshlrev_b32 v{126+2*r}, 16, v{75+r}\nv_and_b32 v{127+2*r}, 0xffff0000, v{75+r}")
for r in range(8):
    R = 150 + 2 * r
    A(f"v_pk_mul_f32 v[{R}:{R+1}], v[{R}:{R+1}], v[{126+2*r}:{127+2*r}]")
for i in range(4):
    A(f"v_cvt_pk_bf16_f32 v{166+i}, v{150+2*(7-2*i)}, v{150+2*(6-2*i)}")
    A(f"v_cvt_pk_bf16_f32 v{170+i}, v{151+2*(7-2*i)}, v{151+2*(6-2*i)}")
A(f"buffer_store_dwordx4 v[166:169], v197, {R4(WS)}, 0 offen sc1\nbuffer_store_dwordx4 v[170:173], v197, {R4(WS)}, s76 offen sc1")
A("s_waitcnt vmcnt(12)")
for i in range(4):
    A(f"v_perm_b32 v{174+i}, v{84+2*i}, v{83+2*i}, s77")
    A(f"v_perm_b32 v{178+i}, v{84+2*i}, v{83+2*i}, s78")
A(f"buffer_store_dwordx4 v[174:177], v198, {R4(WS)}, 0 offen sc1\nbuffer_store_dwordx4 v[178:181], v198, {R4(WS)}, s76 offen sc1")
A(f"""
s_waitcnt vmcnt(12)
v_mov_b32 v104, 0
v_mov_b32 v105, 0
v_mov_b32 v106, 0
v_mov_b32 v107, 0
v_mov_b32 v110, 0x3f803f80
""")
for i in range(8): A(f"v_dot2c_f32_bf16 v{104+2*(i&1)}, v{96+i}, v110\nv_dot2c_f32_bf16 v{105+2*(i&1)}, v{96+i}, v{96+i}")
A("v_add_f32 v104, v104, v106\nv_add_f32 v105, v105, v107")
for pat in ["quad_perm:[1,0,3,2]", "quad_perm:[2,3,0,1]", "row_half_mirror", "row_mirror"]:
    A(f"v_add_f32_dpp v104, v104, v104 {pat} row_mask:0xf bank_mask:0xf")
    A(f"v_add_f32_dpp v105, v105, v105 {pat} row_mask:0xf bank_mask:0xf")
A("""
v_mov_b32 v107, v104
v_mov_b32 v108, v105
v_permlane16_swap_b32 v104, v107
v_permlane16_swap_b32 v105, v108
v_add_f32 v104, v104, v107
v_add_f32 v105, v105, v108
""")
rowstats_pack(104, 105, 108)
A(f"""
v_mov_b32 v109, {sTAG}
v_lshlrev_b32 v107, 3, v192
s_mov_b32 s82, {XS}
s_mov_b32 exec_lo, 1
s_mov_b32 exec_hi, 1
buffer_store_dwordx2 v[108:109], v107, {R4(WS)}, s82 offen sc1
s_mov_b64 exec, -1
""")
info_load(201, 202)
L1 = newlab("T1"); LD = newlab("TD")
A(f"""
s_mul_i32 s79, s2, 7168
v_min_u32 v204, 55, v1
v_lshlrev_b32 v204, 7, v204
s_cmp_eq_u32 {sWAVE}, 1
s_cbranch_scc1 {L1}
s_cmp_eq_u32 {sWAVE}, 2
s_cbranch_scc0 {LD}
buffer_load_dword v205, {"v201" if W1LATE else "v204"}, {R4(WS) if W1LATE else R4(SW1)}, {sGL if W1LATE else "s79"} offen sc1
s_branch {LD}
{L1}:
buffer_load_dword v205, v204, {R4(SW2)}, s79 offen sc1
{LD}:
""")
stamp()
def wait_role(n0):
    La = newlab("WR"); Lb = newlab("WR")
    A(f"s_sub_u32 s97, {sWAVE}, 1\ns_cmp_lt_u32 s97, 2\ns_cbranch_scc0 {La}\ns_waitcnt vmcnt({n0+1})\ns_branch {Lb}\n{La}:\ns_waitcnt vmcnt({n0})\n{Lb}:")
wait_role(7)
for c, (D, E, O) in enumerate([(16, 24, 40), (28, 36, 56)]):
    for w in range(4): A(f"v_alignbit_b32 v{O+w}, v{D+w+1}, v{D+w}, 16")
    for w in range(4): A(f"v_alignbit_b32 v{O+4+w}, v{D+w+2}, v{D+w+1}, 16")
    for w in range(4): A(f"v_mov_b32 v{E+w}, v{D+w+1}")
    base = c * CHS
    A(f"ds_write_b128 v51, v[{O}:{O+3}] offset:{base}")
    A(f"ds_write_b128 v51, v[{O+4}:{O+7}] offset:{base + 2*CPS}")
    A(f"ds_write_b128 v51, v[{D+2}:{D+5}] offset:{base + 3*CPS}")
    A(f"ds_write_b128 v51, v[{E}:{E+3}] offset:{base + CPS}")
A(f"""
v_and_b32 v6, 3, v1
v_sub_u32 v7, 3, v6
v_lshlrev_b32 v7, 4, v7
v_lshlrev_b64 v[54:55], v7, v[48:49]
v_bfe_u32 v7, v1, 2, 1
v_mul_u32_u24 v7, {CHS}, v7
v_mul_u32_u24 v6, {CPS}, v6
v_add3_u32 v6, v6, v7, {KC}
v_mov_b32 v8, 0
v_mov_b32 v9, 0
v_mov_b32 v10, 0
v_mov_b32 v11, 0
s_mov_b64 exec, 0xff
ds_write_b128 v6, v[8:11]
ds_write_b128 v6, v[52:55] offset:16
s_mov_b64 exec, -1
v_lshlrev_b32 v15, 16, v50
""")
ACC = 64; AB = 96; BB = 160; GR = 16; MR = 48; RRa = 232; XR = 224
A(f"""
s_mul_i32 s79, {sCHL}, {KVS}
v_and_b32 v11, 15, v1
v_lshrrev_b32 v12, 4, v1
v_lshlrev_b32 v13, 4, v11
v_lshl_add_u32 v13, v12, 2, v13
s_lshl_b32 s80, {sPAR}, 10
v_add_u32 v13, s80, v13          ; s0
v_and_b32 v6, 3, v11
v_mul_u32_u24 v6, {CPS}, v6
v_lshrrev_b32 v7, 2, v11
v_lshl_add_u32 v6, v7, 3, v6
v_lshl_add_u32 v6, v12, 4, v6
s_mul_i32 s83, {sCHL}, {CHS}
s_lshl_b32 s84, {sPAR}, 6
s_add_u32 s83, s83, s84
s_add_u32 s83, s83, {KC}
v_add_u32 v6, s83, v6            ; vAfrag
v_lshlrev_b32 v7, 4, v12
v_lshlrev_b32 v8, 5, v11
v_sub_u32 v7, v7, v8
s_add_u32 s83, s79, s84
s_add_u32 s83, s83, {KV + 480}
v_add_u32 v7, s83, v7            ; vBfrag
v_lshlrev_b32 v14, 1, v13        ; s0*2
s_lshl_b32 s85, {sCH}, 12
s_add_u32 s85, s85, {XT}
s_add_u32 s80, {sGL}, {oFA}
s_lshl_b32 s81, {sJ}, 2
s_add_u32 s81, s81, s80
""")
wait_role(0)
info_eval(202)
A("s_waitcnt lgkmcnt(0)")
stamp()
A("s_barrier")
stamp()
LW0 = newlab("W0"); LJ = newlab("AJ")
A(f"""
s_cmp_eq_u32 {sWAVE}, 0
s_cbranch_scc1 {LW0}
s_branch {LJ}
{LW0}:
""")
flag_store("s81", 8, True)
A(f"v_and_b32 v5, 31, v1\nv_lshlrev_b32 v5, 2, v5\nv_add_u32 v5, s80, v5")
poll(5, 8)
A(f"""
s_lshl_b32 s83, {sCH}, 12
s_add_u32 s83, s83, {KVR}
s_mov_b32 m0, {KV}
v_lshlrev_b32 v5, 4, v1
s_add_u32 s84, s83, 4096
buffer_load_dwordx4 v5, {R4(WS)}, s83 offen sc1 lds
buffer_load_dwordx4 v5, {R4(WS)}, s83 offen offset:1024 sc1 lds
buffer_load_dwordx4 v5, {R4(WS)}, s83 offen offset:2048 sc1 lds
buffer_load_dwordx4 v5, {R4(WS)}, s83 offen offset:3072 sc1 lds
s_mov_b32 m0, {KV + KVS}
s_nop 0
buffer_load_dwordx4 v5, {R4(WS)}, s84 offen sc1 lds
buffer_load_dwordx4 v5, {R4(WS)}, s84 offen offset:1024 sc1 lds
buffer_load_dwordx4 v5, {R4(WS)}, s84 offen offset:2048 sc1 lds
buffer_load_dwordx4 v5, {R4(WS)}, s84 offen offset:3072 sc1 lds
""")
pf_rot(0, 0, 64, 5, 8, 252); pf_rot(0, 64, 64, 5, 8, 252); pf_rot(0, 128, 32, 5, 8, 252)
A(f"""
""")
if TLBW:
    A(f"""
    v_min_u32 v5, 29, v1
    v_lshlrev_b32 v5, 19, v5
    s_lshl_b32 s84, {sJ}, 7
    s_add_u32 s83, s84, {HT}
    buffer_load_dword v253, v5, {R4(WS)}, s83 offen sc1
    v_and_b32 v5, 3, v1
    v_lshlrev_b32 v5, 19, v5
    buffer_load_dword v254, v5, {R4(SOUT)}, s84 offen sc1
    """)
A(f"""
{LJ}:
""")
stamp()
def creadsA(j, buf):
    L = []
    for U in range(8):
        a = AB + buf * 32 + 4 * U
        L.append(f"ds_read_b64 v[{a}:{a+1}], v6 offset:{512*U + 128*j}")
        L.append(f"ds_read_b64 v[{a+2}:{a+3}], v6 offset:{512*U + 128*j + 8}")
    return L
def creadsB(j, buf):
    return [f"ds_read_b128 v[{BB+buf*32+4*U}:{BB+buf*32+4*U+3}], v7 offset:{3584 - 512*U + 128*j}" for U in range(8)]
def xs_loads():
    A(f"v_lshlrev_b32 v5, 3, v13\ns_mov_b32 s87, {XS}\ns_mov_b32 s88, {XS+4096}")
    for t in range(4):
        so = "s87" if t < 2 else "s88"
        A(f"buffer_load_dwordx4 v[{GR+8*t}:{GR+8*t+3}], v5, {R4(WS)}, {so} offen offset:{2048*(t&1)} sc1")
        A(f"buffer_load_dwordx4 v[{GR+8*t+4}:{GR+8*t+7}], v5, {R4(WS)}, {so} offen offset:{2048*(t&1)+16} sc1")
def gather(first):
    return (f"s_mov_b32 m0, s86\n" if first else "") + f"buffer_load_dword v14, {R4(SQ)}, s85 offen lds\ns_add_u32 s85, s85, 65536\ns_add_u32 m0, m0, 256"
for r in creadsA(0, 0): A(r)
LW = only_wave(0)
A(f"s_waitcnt vmcnt({3 + 2*TLBW})\n{LW}:\ns_barrier")
stamp()
for r in creadsB(0, 0): A(r)
pairs = [(U, W) for U in range(8) for W in range(8) if U + W <= 7]
first = set()
for j in range(4):
    buf = j & 1
    A("s_waitcnt lgkmcnt(0)")
    nxt = []
    if j < 3:
        a_, b_ = creadsA(j + 1, buf ^ 1), creadsB(j + 1, buf ^ 1)
        for U in range(8): nxt += [a_[2*U], a_[2*U+1], b_[U]]
    vm = {}
    fill = []
    if j == 0:
        A(f"""
        s_lshl_b32 s83, {sWAVE}, 12
        s_add_u32 s84, s83, {XS}
        s_add_u32 s83, s83, {XSL}
        s_mov_b32 m0, s83
        v_lshlrev_b32 v5, 4, v1
        """)
        for t in range(4): vm[1 + 2 * t] = f"buffer_load_dwordx2 v[{XR+2*t}:{XR+2*t+1}], v14, {R4(WS)}, s85 offen offset:{512*t} sc1"
        for c in range(4): vm[20 + 3 * c] = f"buffer_load_dwordx4 v5, {R4(WS)}, s84 offen offset:{1024*c} sc1 lds"
        vm[33] = f"v_and_b32 v250, 31, v1\nv_lshlrev_b32 v250, 2, v250\nbuffer_load_dword v251, v250, {R4(WS)}, {sGL} offen sc1"
    if W1LATE and j == env("W1G", "2"):
        vm[35] = f"s_mul_i32 s87, s2, 7168\ns_mul_i32 s88, {sWAVE}, 1792\ns_add_u32 s87, s87, s88\nv_min_u32 v254, 13, v1\nv_lshlrev_b32 v254, 7, v254\n" + pf(SW1, "s87", 254, 253)
    if j in (1, 2):
        for i in range(7): vm[2 + 5 * i] = w2_dma(m0base=sW2W if (j == 1 and i == 0) else None)
    if j == 3:
        for i in range(6): vm[1 + 3 * i] = w2_dma()
        A(f"s_waitcnt vmcnt({14 + W1LATE})\ns_barrier")
        info_eval(251)
        A(f"v_lshlrev_b32 v5, 3, v13\nv_add_u32 v5, {XSL}, v5\ns_add_u32 s83, s79, {KV + 4088 - 1536}\nv_sub_u32 v10, s83, v14")
        for t in range(4):
            nxt.append(f"ds_read_b128 v[{GR+8*t}:{GR+8*t+3}], v5 offset:{2048*t}")
            nxt.append(f"ds_read_b128 v[{GR+8*t+4}:{GR+8*t+7}], v5 offset:{2048*t+16}")
        for t in range(4): nxt.append(f"ds_read_b64 v[{112+2*t}:{113+2*t}], v10 offset:{1536-512*t}")
    for idx, (U, W) in enumerate(pairs):
        acc = ACC + 4 * (U + W)
        a = AB + buf * 32 + 4 * U; b = BB + buf * 32 + 4 * W
        cin = f"v[{acc}:{acc+3}]" if acc in first else "0"
        first.add(acc)
        A(f"v_mfma_f32_16x16x32_bf16 v[{acc}:{acc+3}], v[{a}:{a+3}], v[{b}:{b+3}], {cin}")
        if nxt and idx >= (2 if j < 3 else 0): A(nxt.pop(0))
        if idx in vm: A(vm[idx])
        if j == 3 and idx == 17:
            Lok = newlab("XSOK"); Lre = newlab("XSRE")
            tags = [GR + 2 * i + 1 for i in range(16)]
            A(f"s_waitcnt lgkmcnt(0)\ns_mov_b32 s96, 0\n{Lre}:")
            A(f"v_min3_u32 v8, v{tags[0]}, v{tags[1]}, v{tags[2]}\nv_max3_u32 v9, v{tags[0]}, v{tags[1]}, v{tags[2]}")
            for i in range(3, 15, 2):
                A(f"v_min3_u32 v8, v8, v{tags[i]}, v{tags[i+1]}\nv_max3_u32 v9, v9, v{tags[i]}, v{tags[i+1]}")
            A(f"""
            v_min_u32 v8, v8, v{tags[15]}
            v_max_u32 v9, v9, v{tags[15]}
            v_xor_b32 v8, {sTAG}, v8
            v_xor_b32 v9, {sTAG}, v9
            v_or_b32 v8, v8, v9
            v_cmp_ne_u32 vcc, 0, v8
            s_cbranch_vccz {Lok}
            s_add_u32 s96, s96, 1
            s_cmp_ge_u32 s96, {POLL_LIMIT}
            s_cbranch_scc1 {Lok}
            """)
            xs_loads()
            A(f"s_waitcnt vmcnt(0)\ns_branch {Lre}\n{Lok}:")
            for i in range(16):
                fill.append(f"v_and_b32 v{RRa+i}, 0xffff0000, v{GR+2*i}")
                fill.append(f"v_lshlrev_b32 v{MR+i}, 16, v{GR+2*i}")
                fill.append(f"v_rcp_f32 v{RRa+i}, v{RRa+i}")
        for _ in range(3):
            if fill: A(fill.pop(0))
    assert not nxt and not fill, (j, len(nxt), len(fill))
    if j < 3: stamp()
stamp()
A(f"""
v_lshlrev_b32 v8, 4, v1
s_lshl_b32 s83, {sWAVE}, 12
s_add_u32 s83, s83, {RED}
v_add_u32 v9, s83, v8
s_xor_b32 s84, {sWAVE}, 1
s_lshl_b32 s84, s84, 12
s_add_u32 s84, s84, {RED}
v_add_u32 v8, s84, v8
s_cmp_eq_u32 {sPAR}, 0
s_cbranch_scc1 C_P0
""")
for j in range(4): A(f"ds_write_b128 v9, v[{ACC+4*j}:{ACC+4*j+3}] offset:{1024*j}")
A("s_nop 1")
for j in range(8): A(f"v_mov_b64 v[{ACC+2*j}:{ACC+2*j+1}], v[{ACC+16+2*j}:{ACC+16+2*j+1}]")
A("s_branch C_PJ\nC_P0:\ns_nop 7")
for j in range(4): A(f"ds_write_b128 v9, v[{ACC+16+4*j}:{ACC+16+4*j+3}] offset:{1024*j}")
A("C_PJ:")
PR = 160; T = 120; OUTR = 128; Q = 136; XF = 176
A(f"""
s_and_b32 s83, {sCH}, 2
v_and_b32 v5, 3, v11
v_xor_b32 v5, s83, v5
v_lshlrev_b32 v5, 5, v5
v_lshl_add_u32 v5, v12, 3, v5
v_lshrrev_b32 v9, 2, v11
v_lshl_add_u32 v5, v9, 16, v5
s_lshl_b32 s83, {sCH}, 7
s_lshl_b32 s84, {sPAR}, 20
s_add_u32 s83, s83, s84
s_add_u32 s83, s83, {HT}
v_add_u32 v5, s83, v5
s_mov_b32 s88, 0
s_mov_b32 s89, {4*65536}
s_mov_b32 s90, {8*65536}
s_mov_b32 s91, {12*65536}
s_waitcnt lgkmcnt(0)
s_barrier
""")
for j in range(4): A(f"ds_read_b128 v[{PR+4*j}:{PR+4*j+3}], v8 offset:{1024*j}")
for j in range(4):
    acc = ACC + 4 * j; kv = 112 + 2 * j; x = XR + 2 * j; m = MR + 4 * j; rs = RRa + 4 * j; X = XF + 4 * j; q = Q + 4 * j
    A(f"""
    v_and_b32 v{T}, 0xffff0000, v{kv+1}
    v_lshlrev_b32 v{T+1}, 16, v{kv+1}
    v_and_b32 v{T+2}, 0xffff0000, v{kv}
    v_lshlrev_b32 v{T+3}, 16, v{kv}
    v_lshlrev_b32 v{X}, 16, v{x}
    v_and_b32 v{X+1}, 0xffff0000, v{x}
    v_lshlrev_b32 v{X+2}, 16, v{x+1}
    v_and_b32 v{X+3}, 0xffff0000, v{x+1}
    v_pk_fma_f32 v[{acc}:{acc+1}], v[{T}:{T+1}], v[14:15], v[{acc}:{acc+1}] op_sel:[0,1,0] op_sel_hi:[1,1,1]
    v_pk_fma_f32 v[{acc+2}:{acc+3}], v[{T+2}:{T+3}], v[14:15], v[{acc+2}:{acc+3}] op_sel:[0,1,0] op_sel_hi:[1,1,1]
    v_pk_add_f32 v[{q}:{q+1}], v[{X}:{X+1}], v[{m}:{m+1}] neg_lo:[0,1] neg_hi:[0,1]
    v_pk_add_f32 v[{q+2}:{q+3}], v[{X+2}:{X+3}], v[{m+2}:{m+3}] neg_lo:[0,1] neg_hi:[0,1]
    v_pk_mul_f32 v[{q}:{q+1}], v[{q}:{q+1}], v[{rs}:{rs+1}]
    v_pk_mul_f32 v[{q+2}:{q+3}], v[{q+2}:{q+3}], v[{rs+2}:{rs+3}]
    """)
stamp()
for j in range(4):
    acc = ACC + 4 * j; P = PR + 4 * j; X = XF + 4 * j; q = Q + 4 * j
    A(f"""
    s_waitcnt lgkmcnt({3-j})
    v_pk_add_f32 v[{acc}:{acc+1}], v[{acc}:{acc+1}], v[{P}:{P+1}]
    v_pk_add_f32 v[{acc+2}:{acc+3}], v[{acc+2}:{acc+3}], v[{P+2}:{P+3}]
    v_pk_fma_f32 v[{q}:{q+1}], v[{q}:{q+1}], v[{acc}:{acc+1}], v[{X}:{X+1}]
    v_pk_fma_f32 v[{q+2}:{q+3}], v[{q+2}:{q+3}], v[{acc+2}:{acc+3}], v[{X+2}:{X+3}]
    v_cvt_pk_bf16_f32 v{OUTR+2*j}, v{q}, v{q+1}
    v_cvt_pk_bf16_f32 v{OUTR+2*j+1}, v{q+2}, v{q+3}
    buffer_store_dwordx2 v[{OUTR+2*j}:{OUTR+2*j+1}], v5, {R4(WS)}, s{88+j} offen sc1
    """)
stamp()
A(f"v_add_u32 v12, {sW2W}, v3\nv_add_u32 v13, {sW2W}, v4\ns_waitcnt vmcnt(4)")
w2_tr(R1, 0, 12, 13)
A(f"""
s_add_u32 s76, {sGL}, {oFB}
s_lshl_b32 s77, {sJ}, 2
s_add_u32 s77, s77, s76
s_lshl_b32 s78, {sWAVE}, 13
s_add_u32 s78, s78, {W3W}
v_add_u32 v12, s78, v3
v_add_u32 v13, s78, v4
v_lshrrev_b32 v5, 2, v1
v_mul_u32_u24 v5, 3584, v5
v_and_b32 v6, 3, v1
v_lshl_add_u32 v5, v6, 4, v5
s_lshl_b32 s79, {sFT}, 6
v_add_u32 v5, s79, v5
s_and_b32 {sROT}, {sFG}, 3
s_lshl_b32 s79, {sROT}, 3
s_lshl_b32 s80, {sWAVE}, 15
v_bfe_u32 v14, v1, 2, 2
v_bfe_u32 v7, v1, 4, 1
v_lshrrev_b32 v8, 5, v1
v_lshlrev_b32 v9, 3, v8
v_add_u32 v9, v9, v14
v_lshlrev_b32 v9, 6, v9
v_lshl_add_u32 v9, v7, 5, v9
v_lshl_add_u32 v9, v6, 3, v9
v_add_u32 v9, s80, v9
v_add_u32 v14, s80, v3
v_add_u32 v15, s80, v4
v_mov_b32 v10, 0
v_mov_b32 v11, 0x3f803f80
v_mov_b32 v20, 0
v_mov_b32 v21, 0
v_mov_b32 v22, 0
s_waitcnt vmcnt(0) lgkmcnt(0)
s_barrier
""")
stamp()
L = only_wave(0)
flag_store("s77", 6, True)
A(f"{L}:\ns_cmp_ge_u32 {sFG}, 14\ns_cbranch_scc1 B_STATS\ns_mov_b32 m0, s80")
WF = 128
for i in range(32):
    A(f"""
    s_mul_i32 s81, s79, 57344
    buffer_load_dwordx4 v5, {R4(SW1)}, s81 offen lds
    s_add_u32 s79, s79, 1
    s_and_b32 s79, s79, 31
    s_add_u32 m0, m0, 1024
    """)
for i in range(8): A(w2_dma(m0base="s78" if i == 0 else None))
def dots(lo, hi):
    for i in range(lo, hi): A(f"v_dot2c_f32_bf16 v{[10,20,21,22][i%4]}, v{WF+i}, v11")
for q in range(4):
    A(f"s_waitcnt vmcnt({32 - 8*q})")
    for i in range(8 * q, 8 * q + 8):
        r = WF + 4 * i
        A(f"ds_read_b64_tr_b16 v[{r}:{r+1}], v9 offset:{1024*i}")
        A(f"ds_read_b64_tr_b16 v[{r+2}:{r+3}], v9 offset:{1024*i+256}")
    if q > 0:
        A("s_waitcnt lgkmcnt(15)")
        dots(32 * (q - 1), 32 * q)
A("s_waitcnt vmcnt(0)")
w2_tr(4, R1, 12, 13)
A("s_waitcnt lgkmcnt(15)")
dots(96, 128)
A(f"""
v_add_f32 v10, v10, v20
v_add_f32 v21, v21, v22
v_add_f32 v10, v10, v21
v_mov_b32 v20, v10
s_nop 1
v_permlane32_swap_b32 v10, v20
v_add_f32 v10, v10, v20
""")
for i in range(64): A(f"v_accvgpr_write_b32 a{160+i}, v{192+i}")
A(f"""
s_branch B_JOIN
B_STATS:
""")
L = only_wave(1)
A(f"""
s_cmp_lg_u32 {sJ}, 31
s_cbranch_scc1 {L}
v_and_b32 v5, 31, v1
v_lshlrev_b32 v5, 2, v5
v_add_u32 v5, s76, v5
""")
poll(5, 6)
A(f"""
v_lshlrev_b32 v5, 7, v1
s_lshl_b32 s79, {sX}, 2
s_add_u32 s79, s79, {FG}
v_mov_b32 v6, {sTAG}
buffer_store_dword v6, v5, {R4(WS)}, s79 offen sc1
{L}:
B_JOIN:
""")
stamp()
L = only_wave(0)
A(f"""
v_and_b32 v5, 7, v1
v_lshlrev_b32 v5, 2, v5
s_and_b32 s79, s2, 63
s_lshl_b32 s79, s79, 7
s_add_u32 s79, s79, {FG}
v_add_u32 v5, s79, v5
""")
poll(5, 6)
A(f"s_cmp_lg_u32 s2, 255\ns_cbranch_scc1 {L}\ns_mov_b32 s79, {EPOCH}")
flag_store("s79", 6, False)
A(f"{L}:\ns_waitcnt lgkmcnt(0)\ns_barrier")
stamp()
A(f"s_cmp_ge_u32 {sFG}, 14\ns_cbranch_scc1 P2_STATS")
def pf_late(va, vd):
    A(f"s_mul_i32 s88, {sWAVE}, 56")
    pf_rot(1, "s88", 56, va, vd, vd)
def p3_setup():
    A(f"""
    v_lshlrev_b32 v247, 4, v1
    v_lshrrev_b32 v244, 2, v1
    v_and_b32 v245, 3, v1
    v_bfe_u32 v246, v244, 1, 1
    s_and_b32 s68, {sST}, 1
    v_xor_b32 v246, s68, v246
    v_lshlrev_b32 v246, 6, v246
    v_lshl_add_u32 v246, v245, 4, v246
    v_lshl_add_u32 v246, v244, 7, v246
    s_lshr_b32 s69, {sST}, 1
    s_lshl_b32 s70, s69, 16
    s_lshl_b32 s71, {sDT}, 12
    s_add_u32 s70, s70, s71
    s_lshl_b32 s71, {sPAR}, 11
    s_add_u32 s70, s70, s71
    s_add_u32 s70, s70, {HT}
    s_add_u32 s71, s70, {65536 - 1024}
    s_lshl_b32 {sRES}, {sWAVE}, 11
    s_add_u32 {sRES}, {sRES}, 155648
    s_mov_b32 m0, {sRES}
    s_nop 0
    buffer_load_dwordx4 v246, {R4(WS)}, s70 offen sc1 lds
    buffer_load_dwordx4 v246, {R4(WS)}, s71 offen offset:1024 sc1 lds
    s_mul_i32 s72, {sST}, 114688
    s_add_u32 s72, s72, {H1F}
    s_lshl_b32 s73, {sKL}, 10
    s_add_u32 s73, s73, s72
    s_add_u32 s75, s73, 14336
    s_lshl_b32 s88, {sR3}, 11
    s_add_u32 s73, s73, s88
    v_min_u32 v244, 6, v1
    v_lshlrev_b32 v245, 2, v244
    s_and_b32 s69, {sSM}, 3
    s_lshl_b32 s69, s69, 8
    s_mul_i32 s74, {sWAVE}, 28
    s_add_u32 s69, s69, s74
    s_add_u32 s69, s69, {sGL}
    s_add_u32 s69, s69, {oFC}
    v_add_u32 v248, s69, v245
    v_add_u32 v249, 128, v248
    v_lshlrev_b32 v245, 7, v244
    s_lshl_b32 s69, {sSM}, 14
    s_lshl_b32 s74, {sKR}, 6
    s_add_u32 s69, s69, s74
    s_add_u32 s69, s69, {FCG}
    v_add_u32 v251, s69, v245
    v_add_u32 v252, 8192, v251
    """)
ACC2 = 64; BF = 16; CS = 40; SR = 56; TT = 192; OO = 224
A(f"""
v_lshlrev_b32 v9, 4, v1
s_lshl_b32 s76, {sMT}, 17
s_add_u32 s76, s76, {HT}
s_lshl_b32 s77, {sWAVE}, 12
s_add_u32 s76, s76, s77
s_mov_b32 s80, {sROT}
""")
nph = [0]
def issue2():
    q = nph[0]; nph[0] += 1
    A(f"""
    s_lshl_b32 s79, s80, 14
    s_add_u32 s79, s79, s76
    s_mov_b32 m0, s77
    s_add_u32 s80, s80, 1
    s_and_b32 s80, s80, 3
    s_add_u32 s77, s77, 16384
    """)
    if q == 3: A("s_add_u32 s76, s76, 65536")
    return [f"buffer_load_dwordx4 v9, {R4(WS)}, s79 offen offset:{1024*c} sc1 lds" for c in range(4)]
PRE = env("PRE", "4")
for p in range(PRE):
    for l in issue2(): A(l)
A(f"""
v_bfe_u32 v12, v1, 2, 2           ; r
v_and_b32 v13, 3, v1
v_bfe_u32 v14, v1, 4, 1
v_lshrrev_b32 v15, 5, v1
v_lshlrev_b32 v11, 3, v15
v_add_u32 v11, v11, v12
v_lshlrev_b32 v11, 7, v11
v_lshl_add_u32 v11, v14, 5, v11
v_lshl_add_u32 v11, v13, 3, v11
v_lshrrev_b32 v13, 1, v12
v_lshl_add_u32 v5, v13, 6, v11
v_xor_b32 v6, 64, v5
v_add_u32 v7, 0x10000, v5
v_add_u32 v8, 0x10000, v6
v_and_b32 v12, 31, v1
v_lshlrev_b32 v11, 3, v12
s_and_b32 s89, {sMT}, 3
s_lshl_b32 s89, s89, 8
s_add_u32 s89, s89, {sGL}
s_add_u32 s89, s89, {oFC}
s_and_b32 s83, {sX}, 1
s_mul_i32 s83, s83, 28
s_sub_u32 s83, {sFT}, s83
s_lshl_b32 s83, s83, 2
s_add_u32 s89, s89, s83
s_lshl_b32 s82, {sMT}, 14
s_add_u32 s82, s82, {FCG}
s_lshl_b32 s83, {sFT}, 7
s_add_u32 s82, s82, s83
s_lshl_b32 s81, {sMT}, 10
s_add_u32 s81, s81, {HSTG}
v_lshlrev_b32 v12, 2, v12
v_add_u32 v12, s78, v12
ds_write_b32 v12, v10
v_lshlrev_b32 v0, 4, v15
v_add_u32 v0, s78, v0
s_lshl_b32 s83, {sFT}, 11
s_add_u32 s83, s83, {H1F}
s_mul_i32 s84, {sMT}, {4*114688}
s_add_u32 s83, s83, s84
s_add_u32 s84, s83, 114688
s_add_u32 s85, s83, {2*114688}
s_add_u32 s86, s83, {3*114688}
s_lshl_b32 s87, {sWAVE}, 14
s_waitcnt lgkmcnt(0)
""")
for g in range(4): A(f"ds_read_b128 v[{CS+4*g}:{CS+4*g+3}], v0 offset:{32*g}")
def trreads(t):
    h, ks = divmod(t, 32); L = []; buf = t % 3
    for j in range(2):
        b = BF + 8 * buf + 4 * j; v = 5 + 2 * h + j
        L.append(f"ds_read_b64_tr_b16 v[{b}:{b+1}], v{v} offset:{2048*ks}")
        L.append(f"ds_read_b64_tr_b16 v[{b+2}:{b+3}], v{v} offset:{2048*ks+512}")
    return L
HS = 240
def hs_loads(h):
    for j in range(2): A(f"buffer_load_dwordx2 v[{HS+2*j}:{HS+2*j+1}], v11, {R4(WS)}, s81 offen offset:{512*h+256*j} sc1")
def hs_check(h):
    Lok = newlab("HSOK"); Lre = newlab("HSRE")
    A(f"""
    s_mov_b32 s96, 0
    {Lre}:
    v_xor_b32 v12, {sTAG}, v{HS+1}
    v_xor_b32 v13, {sTAG}, v{HS+3}
    v_or_b32 v12, v12, v13
    v_cmp_ne_u32 vcc, 0, v12
    s_cbranch_vccz {Lok}
    s_add_u32 s96, s96, 1
    s_cmp_ge_u32 s96, {POLL_LIMIT}
    s_cbranch_scc1 {Lok}
    """)
    hs_loads(h)
    A(f"s_waitcnt vmcnt(0)\ns_branch {Lre}\n{Lok}:")
    for j in range(2):
        S = SR + 4 * j
        A(f"""
        v_and_b32 v{S+2}, 0xffff0000, v{HS+2*j}
        v_lshlrev_b32 v{S}, 16, v{HS+2*j}
        v_rcp_f32 v{S+1}, v{S+2}
        v_xor_b32 v{S}, 0x80000000, v{S}
        v_mul_f32 v{S+1}, 0xbfb8aa3b, v{S+1}
        """)
def epi_list(h, packed):
    L = []
    for j in range(2):
        S = SR + 4 * j; O = OO + 8 * j
        for hh in range(2):
            Tt = TT + 8 * ((2 * j + hh) % 4)
            a0 = ACC2 + 32 * h + 16 * j + 8 * hh
            if packed:
                for p in range(4): L.append(f"v_pk_fma_f32 v[{a0+2*p}:{a0+2*p+1}], v[{CS+8*hh+2*p}:{CS+8*hh+2*p+1}], v[{S}:{S+1}], v[{a0+2*p}:{a0+2*p+1}] op_sel_hi:[1,0,1]")
                for p in range(4): L.append(f"v_pk_mul_f32 v[{Tt+2*p}:{Tt+2*p+1}], v[{a0+2*p}:{a0+2*p+1}], v[{S}:{S+1}] op_sel:[0,1] op_sel_hi:[1,1]")
            else:
                for p in range(8): L.append(f"v_fmac_f32 v{a0+p}, v{CS+8*hh+p}, v{S}")
                for p in range(8): L.append(f"v_mul_f32 v{Tt+p}, v{a0+p}, v{S+1}")
            for p in range(8): L.append(f"v_exp_f32 v{Tt+p}, v{Tt+p}")
            if packed:
                for p in range(4): L.append(f"v_pk_fma_f32 v[{Tt+2*p}:{Tt+2*p+1}], v[{Tt+2*p}:{Tt+2*p+1}], v[{S+2}:{S+3}], v[{S+2}:{S+3}] op_sel_hi:[1,0,0]")
            else:
                for p in range(8): L.append(f"v_fma_f32 v{Tt+p}, v{Tt+p}, v{S+2}, v{S+2}")
            for p in range(8): L.append(f"v_rcp_f32 v{Tt+p}, v{Tt+p}")
            if packed:
                for p in range(4): L.append(f"v_pk_mul_f32 v[{Tt+2*p}:{Tt+2*p+1}], v[{Tt+2*p}:{Tt+2*p+1}], v[{a0+2*p}:{a0+2*p+1}]")
            else:
                for p in range(8): L.append(f"v_mul_f32 v{Tt+p}, v{Tt+p}, v{a0+p}")
            for p in range(4): L.append(f"v_cvt_pk_bf16_f32 v{O+4*hh+p}, v{Tt+2*p}, v{Tt+2*p+1}")
            L.append(f"buffer_store_dwordx4 v[{O+4*hh}:{O+4*hh+3}], v9, {R4(WS)}, s{83+2*h+j} offen offset:{1024*hh} sc1")
    return L
A(f"s_waitcnt vmcnt({4*(PRE-1)}) lgkmcnt(0)\ns_barrier")
stamp()
for r in trreads(0) + trreads(1): A(r)
vq = []
for p in range(1, PRE): vq += [("ph", p)] * 4
def V_(txt, tag):
    A(txt); vq.append(tag)
def vwait(tag):
    global vq
    idx = [i for i, t in enumerate(vq) if t == tag]
    if not idx: return
    n = len(vq) - 1 - max(idx)
    A(f"s_waitcnt vmcnt({n})"); vq = vq[max(idx) + 1:]
epi = []
EP_PER = env("EPPER", "4")
for t in range(64):
    h, ks = divmod(t, 32); q, c = divmod(t, 8)
    A(f"s_waitcnt lgkmcnt({4 if t < 63 else 0})")
    fill = []
    if c == 0 and nph[0] < 8:
        qq = nph[0]; fill += [(l, ("ph", qq)) for l in issue2()]
    if c == 6 and q < 7:
        vwait(("ph", q + 1)); A("s_barrier")
    if t == 26:
        hs_loads(0); vq += [("hs", 0)] * 2
    if t == 24: pf_late(12, 13); vq.append(("pf", 0))
    if t == 32: stamp()
    if t == 34:
        vwait(("hs", 0)); hs_check(0); epi = epi_list(0, env("EPK", "0"))
    if t == 39:
        pass
    if 40 <= t < 52: fill.append((w2_dma(m0base="s87" if t == 40 else None), ("w2", 0)))
    if t == 58: hs_loads(1); vq += [("hs", 1)] * 2
    nxt = trreads(t + 2) if t < 62 else []
    w = f"v[{WF+4*ks}:{WF+4*ks+3}]" if ks < 16 else f"a[{160+4*(ks-16)}:{163+4*(ks-16)}]"
    for j in range(2):
        b = BF + 8 * (t % 3) + 4 * j; acc = ACC2 + 32 * h + 16 * j
        cin = "0" if ks == 0 else f"v[{acc}:{acc+15}]"
        A(f"v_mfma_f32_32x32x16_bf16 v[{acc}:{acc+15}], {w}, v[{b}:{b+3}], {cin}")
        for _ in range(2):
            if nxt: A(nxt.pop(0))
        if fill:
            x_, tg = fill.pop(0); V_(x_, tg)
        for _ in range(EP_PER):
            if epi:
                e = epi.pop(0)
                if e.startswith("buffer_store"): V_(e, ("st", 0))
                else: A(e)
    while fill and c == 1:
        x_, tg = fill.pop(0); V_(x_, tg)
    if c == 0 and fill:
        carry = fill
        for x_, tg in carry: V_(x_, tg)
for e in epi:
    if e.startswith("buffer_store"): V_(e, ("st", 0))
    else: A(e)
stamp()
vwait(("st", 0))
flag_store("s89", 12, True); flag_store("s82", 12, False); vq += [("fl", 0)] * 2
vwait(("hs", 1)); hs_check(1)
A(f"v_add_u32 v12, s87, v3\nv_add_u32 v13, s87, v4\ns_barrier")
w2_tr(6, 14, 12, 13)
stamp()
A(f"s_add_u32 s87, s87, 65536")
p3_setup()
el = epi_list(1, 1)
nd = 0
for i, e in enumerate(el):
    A(e)
    if i % 8 == 3 and nd < 16:
        A(w2_dma(m0base="s87" if nd == 0 else None)); nd += 1
    if i == 108: A(f"buffer_load_dword v250, v248, {R4(WS)}, 0 offen sc1\nbuffer_load_dword v253, v251, {R4(WS)}, 0 offen sc1"); nd_at = nd; st_after = sum(1 for x in el[i+1:] if x.startswith("buffer_store"))
assert nd == 16
stamp()
Lok = newlab("FCA")
A(f"""
s_add_u32 s82, s82, 8192
s_add_u32 s89, s89, 128
v_add_u32 v15, s87, v3
v_add_u32 v16, s87, v4
s_mov_b32 s95, 1
s_waitcnt vmcnt({16 - nd_at + st_after})
v_xor_b32 v250, {sTAG}, v250
v_xor_b32 v253, {sTAG}, v253
v_or_b32 v250, v250, v253
v_cmp_ne_u32 vcc, 0, v250
s_cbranch_vccz P3_START
""")
poll(248, 250)
poll(251, 250)
A("s_branch P3_START")
A("P2_STATS:")
w2n[0] = 2 * R1
nstamp[0] = 17
A(f"""
s_sub_u32 s76, {sFG}, 14
v_and_b32 v5, 7, v0
v_lshrrev_b32 v6, 3, v0
v_bfe_u32 v7, v6, 1, 1
v_lshlrev_b32 v7, 2, v7
v_xor_b32 v7, v7, v5
v_lshlrev_b32 v7, 4, v7
v_lshl_add_u32 v7, v6, 7, v7
s_lshl_b32 s79, {sMT}, 1
s_add_u32 s79, s79, s76
s_lshl_b32 s79, s79, 16
s_add_u32 s79, s79, {HT}
""")
for it in range(16):
    A(f"buffer_load_dwordx4 v[{64+4*it}:{67+4*it}], v7, {R4(WS)}, s79 offen sc1\ns_add_u32 s79, s79, 4096")
for i in range(16): A(f"v_mov_b32 v{32+i}, 0")
for it in range(16):
    A(f"s_waitcnt vmcnt({15-it})")
    for d in range(4):
        r = 64 + 4 * it + d; t = 20 + 2 * (d & 1)
        A(f"""
        v_lshlrev_b32 v{t}, 16, v{r}
        v_and_b32 v{t+1}, 0xffff0000, v{r}
        v_pk_add_f32 v[{32+2*d}:{33+2*d}], v[{32+2*d}:{33+2*d}], v[{t}:{t+1}]
        v_pk_fma_f32 v[{40+2*d}:{41+2*d}], v[{t}:{t+1}], v[{t}:{t+1}], v[{40+2*d}:{41+2*d}]
        """)
stamp()
for i in range(16): A(f"v_add_f32_dpp v{32+i}, v{32+i}, v{32+i} row_ror:8 row_mask:0xf bank_mask:0xf")
for i in range(16): A(f"v_mov_b32 v{48+i}, v{32+i}")
for i in range(16): A(f"v_permlane16_swap_b32 v{32+i}, v{48+i}")
for i in range(16): A(f"v_add_f32 v{32+i}, v{32+i}, v{48+i}")
for i in range(16): A(f"v_mov_b32 v{48+i}, v{32+i}")
for i in range(16): A(f"v_permlane32_swap_b32 v{32+i}, v{48+i}")
for i in range(16): A(f"v_add_f32 v{32+i}, v{32+i}, v{48+i}")
SRED = 131072
A(f"""
v_lshlrev_b32 v8, 6, v5
s_lshl_b32 s79, {sWAVE}, 9
s_add_u32 s79, s79, {SRED}
v_add_u32 v8, s79, v8
s_mov_b64 exec, 0xff
ds_write_b128 v8, v[32:35]
ds_write_b128 v8, v[36:39] offset:16
ds_write_b128 v8, v[40:43] offset:32
ds_write_b128 v8, v[44:47] offset:48
s_mov_b64 exec, -1
s_waitcnt lgkmcnt(0)
s_barrier
""")
L = only_wave(0)
A(f"""
v_lshrrev_b32 v8, 3, v1
v_lshlrev_b32 v8, 6, v8
v_and_b32 v9, 7, v1
v_lshl_add_u32 v8, v9, 2, v8
v_add_u32 v8, {SRED}, v8
""")
for w in range(4): A(f"ds_read_b32 v{20+w}, v8 offset:{512*w}\nds_read_b32 v{24+w}, v8 offset:{512*w+32}")
A("""
s_waitcnt lgkmcnt(0)
v_add_f32 v20, v20, v21
v_add_f32 v22, v22, v23
v_add_f32 v24, v24, v25
v_add_f32 v26, v26, v27
v_add_f32 v20, v20, v22
v_add_f32 v24, v24, v26
""")
rowstats_pack(20, 24, 28)
A(f"""
v_mov_b32 v29, {sTAG}
v_lshlrev_b32 v8, 3, v1
s_lshl_b32 s79, {sMT}, 10
s_lshl_b32 s80, s76, 9
s_add_u32 s79, s79, s80
s_add_u32 s79, s79, {HSTG}
buffer_store_dwordx2 v[28:29], v8, {R4(WS)}, s79 offen sc1
{L}:
s_barrier
""")
stamp()
pf_late(20, 21)
A(f"s_lshl_b32 s87, {sWAVE}, 15\nv_add_u32 v12, s87, v3\nv_add_u32 v13, s87, v4")
for i in range(32): A(w2_dma(m0base="s87" if i == 0 else None))
A("s_waitcnt vmcnt(0)")
w2_tr(16, R1, 12, 13)
A("s_waitcnt lgkmcnt(0)")
for i in range(4): A(w2_dma(m0base="s87" if i == 0 else None))
A("s_waitcnt vmcnt(0)")
w2_tr(2, R1 + 16, 12, 13)
A("s_mov_b32 s95, 0")
p3_setup()
poll(248, 250)
poll(251, 250)
A("P3_START:\ns_waitcnt lgkmcnt(0)")
nstamp[0] = 21
stamp()
ACC3 = 64; HB = 128; NS3 = 24; AH3 = env("AH3", "14")
RD3 = 131072
stamp()
cnt3 = [0]
def load3():
    t = cnt3[0]; cnt3[0] += 1
    sl = HB + (t % NS3) * 4
    A(f"buffer_load_dwordx4 v[{sl}:{sl+3}], v247, {R4(WS)}, s73 offen offset:{1024*(t%2)} sc1")
    if t % 14 == 13:
        nk = [sKR, sKL, sKR, sKL][t // 14]
        if t == 27: A(f"s_add_u32 s72, s72, {2*114688}")
        A(f"s_lshl_b32 s73, {nk}, 10\ns_add_u32 s73, s73, s72\ns_add_u32 s75, s73, 14336\ns_lshl_b32 s88, {sR3}, 11\ns_add_u32 s73, s73, s88")
    elif t % 2 == 1: A("s_add_u32 s73, s73, 2048\ns_cmp_eq_u32 s73, s75\ns_cselect_b32 s88, 14336, 0\ns_sub_u32 s73, s73, s88")
for ks in range(AH3): load3()
A(f"""
v_bfe_u32 v5, v1, 2, 2
v_and_b32 v6, 3, v1
v_bfe_u32 v7, v1, 4, 1
v_lshrrev_b32 v8, 5, v1
v_lshlrev_b32 v9, 2, v8
v_add_u32 v9, v9, v5
v_lshlrev_b32 v9, 6, v9
v_lshl_add_u32 v9, v7, 5, v9
v_lshl_add_u32 v9, v6, 3, v9
v_add_u32 v9, {sRES}, v9
v_and_b32 v5, 31, v1
v_lshlrev_b32 v5, 10, v5
v_lshl_add_u32 v5, v8, 4, v5
s_lshl_b32 s77, {sST}, 15
s_lshl_b32 s78, {sDT}, 6
s_add_u32 s77, s77, s78
s_lshl_b32 s78, {sPAR}, 5
s_add_u32 s77, s77, s78
s_add_u32 s78, s77, 65536
s_mul_i32 s76, {sWAVE}, 6144
s_add_u32 s76, s76, {RD3}
v_add_u32 v10, s76, v247
""")
for j in range(1, 4):
    A(f"s_xor_b32 s76, {sWAVE}, {j}\ns_mul_i32 s76, s76, 6144\ns_add_u32 s76, s76, {RD3 + (j-1)*2048}\nv_add_u32 v{10+j}, s76, v247")
A("s_barrier")
def red_write(ps):
    base = ACC3 + 32 * ps
    L0 = newlab("RP"); L1 = newlab("RP")
    A(f"s_cmp_eq_u32 {sPAR}, 0\ns_cbranch_scc0 {L0}")
    for par in range(2):
        for j in (3, 2, 1):
            a, e = j >> 1, j & 1
            r = base + 16 * a + 8 * (par ^ e)
            A(f"ds_write_b128 v{10+j}, v[{r}:{r+3}] offset:{24576*0}\nds_write_b128 v{10+j}, v[{r+4}:{r+7}] offset:1024")
        r = base + 8 * par
        for p in range(4): A(f"v_mov_b64 v[{48+2*p}:{49+2*p}], v[{r+2*p}:{r+2*p+1}]")
        if par == 0: A(f"s_branch {L1}\n{L0}:\ns_nop 7\ns_nop 3")
    A(f"{L1}:")
def red_final(ps):
    L = []
    for j in range(3):
        for g in range(2): L.append(f"ds_read_b128 v[{24+8*j+4*g}:{27+8*j+4*g}], v10 offset:{2048*j+1024*g}")
    for g in range(2): L.append(f"ds_read_b64_tr_b16 v[{20+2*g}:{21+2*g}], v9 offset:{1024*ps+512*g}")
    L.append("s_waitcnt lgkmcnt(0)")
    for g in range(2):
        L += [f"v_lshlrev_b32 v{56+4*g}, 16, v{20+2*g}", f"v_and_b32 v{57+4*g}, 0xffff0000, v{20+2*g}", f"v_lshlrev_b32 v{58+4*g}, 16, v{21+2*g}", f"v_and_b32 v{59+4*g}, 0xffff0000, v{21+2*g}"]
    for p in range(8): L.append(f"v_add_f32 v{48+p}, v{48+p}, v{56+p}")
    for p in range(8): L.append(f"v_add_f32 v{24+p}, v{24+p}, v{32+p}")
    for p in range(8): L.append(f"v_add_f32 v{48+p}, v{48+p}, v{40+p}")
    for p in range(8): L.append(f"v_add_f32 v{48+p}, v{48+p}, v{24+p}")
    for p in range(4): L.append(f"v_cvt_pk_bf16_f32 v{56+p}, v{48+2*p}, v{49+2*p}")
    L += ["v_permlane32_swap_b32 v56, v58", "v_permlane32_swap_b32 v57, v59",
          f"buffer_store_dwordx4 v[56:59], v5, {R4(SOUT)}, {'s77' if ps == 0 else 's78'} offen"]
    return L
fin = []
q3 = [("ld", i) for i in range(AH3)]
def w3(tag):
    global q3
    idx = [i for i, x in enumerate(q3) if x == tag]
    if not idx: return
    A(f"s_waitcnt vmcnt({len(q3) - 1 - idx[-1]})"); q3 = q3[idx[-1] + 1:]
for t in range(56):
    ps, ks = divmod(t, 28)
    w3(("ld", t))
    if t == 0:
        stamp()
        LL = newlab("LT")
        A(f"s_cmp_eq_u32 s95, 0\ns_cbranch_scc1 {LL}")
        flag_store("s89", 14, True); flag_store("s82", 14, False)
        w2_tr(8, 20, 15, 16)
        A(f"{LL}:")
    if t == 16: A("s_waitcnt lgkmcnt(0)")
    if t == 28:
        red_write(0)
    if t == 32:
        A("s_waitcnt lgkmcnt(0)\ns_barrier"); fin = red_final(0)
    sl = HB + (t % NS3) * 4
    order = (0, 1) if ks < 27 else (1, 0)
    for n_, a in enumerate(order):
        acc = ACC3 + 32 * ps + 16 * a
        cin = "0" if ks == 0 else f"v[{acc}:{acc+15}]"
        A(f"v_mfma_f32_32x32x16_bf16 v[{acc}:{acc+15}], a[{8*ks+4*a}:{8*ks+4*a+3}], v[{sl}:{sl+3}], {cin}")
        if n_ == 0 and cnt3[0] < 56:
            for at, va, vd in ((28, 249, 6), (42, 252, 7)):
                if cnt3[0] == at - 4:
                    A(f"buffer_load_dword v{vd}, v{va}, {R4(WS)}, 0 offen sc1"); q3.append(("fl", at))
                if cnt3[0] == at:
                    Lok = newlab("FCOK")
                    w3(("fl", at))
                    A(f"v_cmp_ne_u32 vcc, {sTAG}, v{vd}\ns_cbranch_vccz {Lok}")
                    poll(va, vd)
                    A(f"{Lok}:")
            q3.append(("ld", cnt3[0])); load3()
        for _ in range(4):
            if fin:
                e = fin.pop(0); A(e)
                if e.startswith("buffer_store"): q3.append(("st", 0))
stamp()
A("s_barrier")
red_write(1)
A("s_waitcnt lgkmcnt(0)\ns_barrier")
for e in red_final(1): A(e)
if DIAG:
    stamp()
    A("s_waitcnt vmcnt(0)")
    stamp()
    A(f"v_accvgpr_write_b32 a{224+nstamp[0]}, {sFAST}"); nstamp[0] += 1
    A(f"s_lshl_b32 s76, s2, 2\ns_add_u32 s76, s76, {sWAVE}\ns_lshl_b32 s76, s76, 7\ns_add_u32 s76, s76, {DIAGBASE}")
    for i in range(nstamp[0]):
        A(f"v_accvgpr_read_b32 v2, a{224+i}\nbuffer_store_dword v2, off, {R4(WS)}, s76 offset:{4*i}")
if DIAG and os.environ.get("DBGOUT"):
    sel = [1, 2, 3, 5, 6, 7, 11, 14, 15, 16, 17, 18, 19, 21, 23, 26]
    A(f"""
    s_cmp_lg_u32 s2, {int(os.environ.get("DBGOUT"))}
    s_cbranch_scc1 K_END
    s_cmp_lg_u32 {sWAVE}, 0
    s_cbranch_scc1 K_END
    s_load_dwordx2 s[68:69], s[0:1], 80
    s_waitcnt lgkmcnt(0)
    s_mov_b32 s70, 256
    s_mov_b32 s71, 0x00020000
    v_accvgpr_read_b32 v3, a224
    """)
    for i, k in enumerate(sel):
        A(f"v_accvgpr_read_b32 v2, a{224+k}\nv_sub_u32 v2, v2, v3\nbuffer_store_dword v2, off, s[68:71], 0 offset:{4*i}")
A("K_END:\ns_endpgm")

kn = NAME + "_kernel"
body = A.finalize()
out = [f"; {NAME}: persistent single launch (generated by gen/gen8.py)",
       "; phases: kv^T + LN(x) stats -> Toeplitz-MFMA long conv + gate + residual -> LN(h)@W1 + SiLU -> @W2 + residual; tagged flag hand-offs in d_ws",
       f"; @launch grid=(256,1,1) block=(256,1,1) lds={LDS_TOTAL}",
       '.amdgcn_target "amdgcn-amd-amdhsa--gfx950"', ".text",
       f".globl {kn}\n.p2align 8\n.type {kn},@function\n{kn}:",
       body,
       ".fill 256, 4, 0xbf800000",
       '.section .rodata,"a"\n.p2align 6',
       f".amdhsa_kernel {kn}\n  .amdhsa_next_free_vgpr 512\n  .amdhsa_next_free_sgpr 102\n  .amdhsa_accum_offset 256\n"
       "  .amdhsa_group_segment_fixed_size 0\n  .amdhsa_kernarg_size 96\n  .amdhsa_user_sgpr_count 2\n"
       "  .amdhsa_user_sgpr_kernarg_segment_ptr 1\n  .amdhsa_system_sgpr_workgroup_id_x 1\n.end_amdhsa_kernel\n"]
path = sys.argv[1] if len(sys.argv) > 1 else f"p8.s"
open(path, "w").write("\n".join(out))
print("wrote", path, "stamps", nstamp[0])
```

```python
import sys, os
sys.path.insert(0, os.path.dirname(os.path.abspath(__file__)))
from asmlib import Asm

NAME = "sequential_preLN__ssm_conv_h3__dense_activation_silu__prompt"
KVR = 0x000000
XT  = 0x200000
XS  = 0x400000
FL  = 0x480000
EPOCH = FL
FG = FL + 0x4000
GL = FL + 0x10000
oINFO, oFA, oFB, oFC, oHST = 0, 128, 256, 1024, 2048
HT  = 0x500000
H1F = 0xC00000
WS_SIZE = 0x1400000
env = lambda k, d: int(os.environ.get(k, d))
DIAG = env("DIAG", "0"); NOFAST = env("NOFAST", "0"); CODEPF = env("CODEPF", "0")
TIMER = "s_memrealtime" if os.environ.get("RT") else "s_memtime"
DIAGBASE = 0x1300000
POLL_LIMIT = 50000
W1LATE = env("W1LATE", "1")
TLBW = env("TLBW", "0")

WS, SQ, SK_, SV, SSH, SKN, SSD, SW1, SW2, SOUT = 28, 32, 36, 40, 44, 48, 52, 56, 60, 64
def R4(b): return f"s[{b}:{b+3}]"
sGL = "s3"
sWAVE, sX, sJ, sTAG, sCHL, sPAR, sCH = "s4", "s5", "s6", "s7", "s8", "s9", "s10"
sMT, sFG, sFT, sSM, sDN, sDT, sST = "s11", "s12", "s13", "s14", "s15", "s16", "s17"
sW2C, sW2W, sROT, sRES, sFAST, sINFO = "s18", "s19", "s20", "s21", "s26", "s27"

KC = 0; CHS = 16640; CPS = 4160
KV = 33280; KVS = 4608
XSL = 42496
RED = 58880
WW = 75264; R1 = 10; WWS = R1 * 2048
W3W = 131072
CSL = 131072
RES3B = 147456
LDS_TOTAL = 163840

A = Asm()
nstamp = [0]
def stamp():
    if DIAG:
        i = nstamp[0]; nstamp[0] += 1
        assert i < 31
        A(f"{TIMER} s[100:101]\ns_waitcnt lgkmcnt(0)\nv_accvgpr_write_b32 a{224+i}, s100")
def srd(d, lo, nbytes):
    A(f"s_mov_b32 s{d}, s{lo}\ns_mov_b32 s{d+1}, s{lo+1}\ns_mov_b32 s{d+2}, {hex(nbytes)}\ns_mov_b32 s{d+3}, 0x00020000")
lab = [0]
def newlab(p="L"):
    lab[0] += 1
    return f"{p}{lab[0]}"
def rowstats_pack(vsum, vsq, t0, inv_n="0x3b000000"):
    A(f"""
    v_mul_f32 v{vsum}, {inv_n}, v{vsum}
    v_mul_f32 v{vsq}, {inv_n}, v{vsq}
    v_fma_f32 v{vsq}, -v{vsum}, v{vsum}, v{vsq}
    v_max_f32 v{vsq}, 0, v{vsq}
    v_cvt_pk_bf16_f32 v{t0}, v{vsq}, v{vsq}
    v_lshlrev_b32 v{vsq}, 16, v{t0}
    v_add_f32 v{vsq}, 0x3727c5ac, v{vsq}
    v_cvt_pk_bf16_f32 v{t0}, v{vsq}, v{vsq}
    v_lshlrev_b32 v{vsq}, 16, v{t0}
    v_sqrt_f32 v{vsq}, v{vsq}
    v_cvt_pk_bf16_f32 v{t0}, v{vsum}, v{vsq}
    """)
def poll(voff, vtmp):
    L = newlab("POLL"); D = newlab("PDONE")
    A(f"""
    s_mov_b32 s96, 0
    {L}:
    buffer_load_dword v{vtmp}, v{voff}, {R4(WS)}, 0 offen sc1
    s_waitcnt vmcnt(0)
    v_cmp_ne_u32 vcc, {sTAG}, v{vtmp}
    s_cbranch_vccz {D}
    s_add_u32 s96, s96, 1
    s_cmp_lt_u32 s96, {POLL_LIMIT}
    s_cbranch_scc1 {L}
    {D}:
    """)
def flag_store(soff, vtmp, local):
    A(f"v_mov_b32 v{vtmp}, {sTAG}\ns_mov_b64 exec, 1")
    if local:
        L1 = newlab("FS"); L2 = newlab("FS")
        A(f"""
        s_cmp_eq_u32 {sFAST}, 0
        s_cbranch_scc1 {L1}
        buffer_store_dword v{vtmp}, off, {R4(WS)}, {soff}
        s_branch {L2}
        {L1}:
        buffer_store_dword v{vtmp}, off, {R4(WS)}, {soff} sc1
        {L2}:
        """)
    else:
        A(f"buffer_store_dword v{vtmp}, off, {R4(WS)}, {soff} sc1")
    A("s_mov_b64 exec, -1")
def only_wave(w):
    L = newlab("NW"); A(f"s_cmp_lg_u32 {sWAVE}, {w}\ns_cbranch_scc1 {L}"); return L
def info_load(va, vd):
    A(f"v_and_b32 v{va}, 31, v1\nv_lshlrev_b32 v{va}, 2, v{va}\nbuffer_load_dword v{vd}, v{va}, {R4(WS)}, {sGL} offen sc1")
def info_eval(vd):
    if NOFAST:
        A(f"s_mov_b32 {sFAST}, 0"); return
    A(f"v_cmp_ne_u32 vcc, {sINFO}, v{vd}\ns_cmp_eq_u64 vcc, 0\ns_cselect_b32 {sFAST}, 1, 0")
ROT3 = env("ROT3", "1")
sW2E = "s22"
sR3 = "s23"
def w2_dma(m0base=None):
    L = []
    if m0base is not None: L.append(f"s_mov_b32 m0, {m0base}")
    L.append(f"buffer_load_dwordx4 v2, {R4(SW2)}, {sW2C} offen lds")
    L.append(f"s_add_u32 {sW2C}, {sW2C}, 8192\ns_add_u32 m0, m0, 1024")
    if ROT3: L.append(f"s_cmp_eq_u32 {sW2C}, {sW2E}\ns_cselect_b32 s97, {448*1024}, 0\ns_sub_u32 {sW2C}, {sW2C}, s97")
    return "\n".join(L)
def w2_tr(nk, k0, b0, b1, off0=0):
    for t in range(nk):
        for a, b in ((0, b0), (1, b1)):
            r = 8 * (k0 + t) + 4 * a
            A(f"ds_read_b64_tr_b16 a[{r}:{r+1}], v{b} offset:{off0+2048*t}")
            A(f"ds_read_b64_tr_b16 a[{r+2}:{r+3}], v{b} offset:{off0+2048*t+1024}")
def pf_rot(i0_expr, n, va, vt, vd):
    A(f"""
    v_min_u32 v{va}, {n-1}, v1
    s_lshl_b32 s97, {sR3}, 6
    s_add_u32 s97, s97, {i0_expr}
    v_add_u32 v{va}, s97, v{va}
    v_subrev_u32 v{vt}, 448, v{va}
    v_min_u32 v{va}, v{va}, v{vt}
    v_lshlrev_b32 v{va}, 10, v{va}
    s_and_b32 s97, {sJ}, 3
    s_mul_i32 s97, s97, {448*1024}
    s_lshl_b32 s94, {sDN}, 7
    s_add_u32 s97, s97, s94
    buffer_load_dword v{vd}, v{va}, {R4(SW2)}, s97 offen sc1
    """)
def pf(srd_, soff, va, vd): return f"buffer_load_dword v{vd}, v{va}, {R4(srd_)}, {soff} offen sc1"

A("K_START:\ns_cmp_ge_u32 s2, 256\ns_cbranch_scc1 K_END")
A(f"""
s_load_dwordx16 s[4:19], s[0:1], 0
s_load_dwordx8 s[20:27], s[0:1], 64
""")
stamp()
A(f"""
s_and_b32 s68, s2, 7
s_lshr_b32 s69, s2, 3
v_and_b32 v182, 15, v0
v_bfe_u32 v183, v0, 4, 2
v_bfe_u32 v184, v0, 6, 1
v_lshrrev_b32 v185, 7, v0
s_lshl_b32 s71, s69, 6
s_lshl_b32 s72, s68, 7
v_lshlrev_b32 v186, 3, v183
v_lshl_add_u32 v186, v185, 5, v186
v_add_u32 v186, s71, v186        ; row0
v_lshlrev_b32 v187, 2, v182
v_lshl_add_u32 v187, v184, 6, v187
v_add_u32 v187, s72, v187        ; ch*2
v_lshl_add_u32 v188, v186, 10, v187
v_add_u32 v189, 4096, v188
v_subrev_u32 v190, 3072, v188
v_lshlrev_b32 v191, 2, v187
s_mov_b32 s{SK_+2}, 0x200000
s_mov_b32 s{SK_+3}, 0x00020000
s_mov_b32 s{SV+2}, 0x200000
s_mov_b32 s{SV+3}, 0x00020000
s_lshl_b32 s73, s68, 6
s_lshl_b32 s74, s69, 1
s_add_u32 s73, s73, s74           ; c0 = 64x + 2j
s_lshl_b32 s75, s73, 12
v_lshlrev_b32 v3, 4, v0
v_add_u32 v3, s75, v3
v_add_u32 v4, 4096, v3
s_waitcnt lgkmcnt(0)
s_mov_b32 s{SK_}, s6
s_mov_b32 s{SK_+1}, s7
s_mov_b32 s{SV}, s8
s_mov_b32 s{SV+1}, s9
""")
for j in range(3): A(f"buffer_load_dword v{64+j}, v190, {R4(SK_)}, 0 offen offset:{1024*j}")
for j in range(4): A(f"buffer_load_dword v{67+j}, v188, {R4(SK_)}, 0 offen offset:{1024*j}")
for j in range(4): A(f"buffer_load_dword v{71+j}, v189, {R4(SK_)}, 0 offen offset:{1024*j}")
srd(SSH, 10, 4096); srd(WS, 26, WS_SIZE)
A(f"buffer_load_dwordx4 v[92:95], v191, {R4(SSH)}, 0 offen")
A(f"s_mov_b32 s76, {EPOCH}\nbuffer_load_dword v200, off, {R4(WS)}, s76")
for j in range(4): A(f"buffer_load_dword v{75+j}, v188, {R4(SV)}, 0 offen offset:{1024*j}")
for j in range(4): A(f"buffer_load_dword v{79+j}, v189, {R4(SV)}, 0 offen offset:{1024*j}")
srd(SQ, 4, 0x200000)
for j in range(4): A(f"buffer_load_dword v{83+j}, v188, {R4(SQ)}, 0 offen offset:{1024*j}")
for j in range(4): A(f"buffer_load_dword v{87+j}, v189, {R4(SQ)}, 0 offen offset:{1024*j}")
A(f"""
v_lshrrev_b32 v192, 5, v0
s_lshl_b32 s76, s2, 3
v_add_u32 v192, s76, v192
v_and_b32 v193, 31, v0
v_lshlrev_b32 v194, 4, v193
v_lshl_add_u32 v194, v192, 10, v194
buffer_load_dwordx4 v[96:99], v194, {R4(SQ)}, 0 offen
buffer_load_dwordx4 v[100:103], v194, {R4(SQ)}, 0 offen offset:512
""")
srd(SKN, 12, 0x200000)
A(f"""
buffer_load_dwordx4 v[16:19], v3, {R4(SKN)}, 0 offen
buffer_load_dwordx2 v[20:21], v3, {R4(SKN)}, 0 offen offset:16
buffer_load_dwordx4 v[28:31], v4, {R4(SKN)}, 0 offen
buffer_load_dwordx2 v[32:33], v4, {R4(SKN)}, 0 offen offset:16
v_and_b32 v1, 63, v0
v_lshrrev_b32 v2, 6, v0
v_bfe_u32 v5, v1, 2, 1
v_lshlrev_b32 v5, 12, v5
v_readfirstlane_b32 s70, v2
v_add_u32 v5, s75, v5
buffer_load_dwordx2 v[48:49], v5, {R4(SKN)}, 0 offen
s_lshl_b32 {sGL}, s68, 12
s_add_u32 {sGL}, {sGL}, {GL}
v_and_b32 v6, 15, v1
v_lshlrev_b32 v6, 7, v6
buffer_load_dword v208, v6, {R4(WS)}, {sGL} offen sc1
""")
srd(SSD, 14, 1024)
A(f"""
s_lshr_b32 s77, s70, 1
s_add_u32 s77, s77, s73
s_lshl_b32 s77, s77, 1
buffer_load_ushort v50, off, {R4(SSD)}, s77
""")
srd(SW1, 18, 512*1792*2); srd(SW2, 20, 512*1792*2); srd(SOUT, 22, 0x200000)
A(f"""
s_getreg_b32 s74, hwreg(HW_REG_XCC_ID, 0, 4)
s_mov_b32 {sWAVE}, s70
s_mov_b32 {sX}, s68
s_mov_b32 {sJ}, s69
s_lshr_b32 {sCHL}, s70, 1
s_and_b32 {sPAR}, s70, 1
s_add_u32 {sCH}, s73, {sCHL}
s_lshl_b32 {sMT}, s68, 1
s_and_b32 s76, s69, 1
s_add_u32 {sMT}, {sMT}, s76
s_lshr_b32 {sFG}, s69, 1
s_lshl_b32 {sFT}, {sFG}, 2
s_add_u32 {sFT}, {sFT}, s70
s_lshl_b32 {sSM}, s68, 1
s_bfe_u32 s76, s69, 0x10001
s_add_u32 {sSM}, {sSM}, s76       ; mt3
s_lshr_b32 {sDN}, s69, 2
s_lshl_b32 {sDT}, {sDN}, 1
s_add_u32 {sDT}, {sDT}, {sCHL}
s_lshl_b32 {sST}, {sSM}, 2
s_and_b32 s76, s69, 1
s_add_u32 {sST}, {sST}, s76
s_mov_b32 {sFAST}, 0
s_mul_i32 {sW2C}, {sWAVE}, {448*1024}
s_add_u32 {sW2E}, {sW2C}, {448*1024}
s_min_u32 {sR3}, {sDN}, {6 if ROT3 else 0}
s_lshl_b32 s76, {sR3}, 16
s_add_u32 {sW2C}, {sW2C}, s76
v_lshrrev_b32 v5, 3, v1
v_and_b32 v6, 7, v1
v_bfe_u32 v7, v1, 4, 1
v_lshlrev_b32 v7, 2, v7
v_xor_b32 v6, v6, v7
v_lshlrev_b32 v2, 4, v6
v_lshl_add_u32 v2, v5, 10, v2
s_lshl_b32 s76, {sDN}, 7
v_add_u32 v2, s76, v2
v_lshlrev_b32 v195, 11, v187
v_lshlrev_b32 v196, 1, v186
v_sub_u32 v197, v195, v196
v_add_u32 v197, {KVR + 4080}, v197
v_add_u32 v198, v195, v196
v_add_u32 v198, {XT}, v198
s_mul_i32 {sW2W}, {sWAVE}, {WWS}
s_add_u32 {sW2W}, {sW2W}, {WW}
v_bfe_u32 v5, v1, 2, 2
v_and_b32 v6, 3, v1
v_bfe_u32 v7, v1, 4, 1
v_lshrrev_b32 v8, 5, v1
v_lshlrev_b32 v9, 2, v8
v_add_u32 v9, v9, v5
v_lshlrev_b32 v9, 7, v9
v_lshl_add_u32 v9, v7, 5, v9
v_lshl_add_u32 v9, v6, 3, v9
v_lshrrev_b32 v10, 1, v5
v_xor_b32 v10, {sCHL}, v10
v_lshl_add_u32 v3, v10, 6, v9
v_xor_b32 v4, 64, v3
v_lshlrev_b32 v51, 4, v0
v_add_u32 v51, {KC + 32}, v51
v_mov_b32 v52, 0
v_mov_b32 v53, 0
v_mov_b32 v54, 0
v_mov_b32 v55, 0
v_lshrrev_b32 v5, 5, v1
v_mul_u32_u24 v5, {KVS}, v5
v_and_b32 v6, 31, v1
v_lshl_add_u32 v5, v6, 4, v5
v_add_u32 v5, {KV + 4096}, v5
ds_write_b128 v5, v[52:55]
s_mov_b32 s76, 4096
s_mov_b32 s77, 0x05040100
s_mov_b32 s78, 0x07060302
""")
stamp()
A(f"""
s_waitcnt vmcnt(25)
v_readfirstlane_b32 {sTAG}, v200
s_lshl_b32 s79, {sJ}, 2
s_add_u32 s79, s79, {sGL}
""")
stamp()
A(f"""
v_lshlrev_b32 v142, 16, v92
v_lshlrev_b32 v143, 16, v94
s_add_u32 {sTAG}, {sTAG}, 1
s_lshl_b32 {sINFO}, {sTAG}, 4
s_or_b32 {sINFO}, {sINFO}, s74
v_mov_b32 v5, {sINFO}
s_mov_b64 exec, 1
buffer_store_dword v5, off, {R4(WS)}, s79
s_mov_b64 exec, -1
v_and_b32 v144, 0xffff0000, v92
v_and_b32 v145, 0xffff0000, v94
v_lshlrev_b32 v146, 16, v93
v_lshlrev_b32 v147, 16, v95
v_and_b32 v148, 0xffff0000, v93
v_and_b32 v149, 0xffff0000, v95
""")
for r in range(11): A(f"v_lshlrev_b32 v{104+2*r}, 16, v{64+r}\nv_and_b32 v{105+2*r}, 0xffff0000, v{64+r}")
for r in range(8):
    R = 150 + 2 * r
    A(f"v_pk_mul_f32 v[{R}:{R+1}], v[{104+2*(r+3)}:{105+2*(r+3)}], v[142:143]")
for j in range(1, 4):
    for r in range(8):
        R = 150 + 2 * r; K = 104 + 2 * (r + 3 - j)
        A(f"v_pk_fma_f32 v[{R}:{R+1}], v[{K}:{K+1}], v[{142+2*j}:{143+2*j}], v[{R}:{R+1}]")
A("s_waitcnt vmcnt(18)")
for r in range(8): A(f"v_lshlrev_b32 v{126+2*r}, 16, v{75+r}\nv_and_b32 v{127+2*r}, 0xffff0000, v{75+r}")
for r in range(8):
    R = 150 + 2 * r
    A(f"v_pk_mul_f32 v[{R}:{R+1}], v[{R}:{R+1}], v[{126+2*r}:{127+2*r}]")
for i in range(4):
    A(f"v_cvt_pk_bf16_f32 v{166+i}, v{150+2*(7-2*i)}, v{150+2*(6-2*i)}")
    A(f"v_cvt_pk_bf16_f32 v{170+i}, v{151+2*(7-2*i)}, v{151+2*(6-2*i)}")
A(f"buffer_store_dwordx4 v[166:169], v197, {R4(WS)}, 0 offen sc1\nbuffer_store_dwordx4 v[170:173], v197, {R4(WS)}, s76 offen sc1")
A("s_waitcnt vmcnt(12)")
for i in range(4):
    A(f"v_perm_b32 v{174+i}, v{84+2*i}, v{83+2*i}, s77")
    A(f"v_perm_b32 v{178+i}, v{84+2*i}, v{83+2*i}, s78")
A(f"buffer_store_dwordx4 v[174:177], v198, {R4(WS)}, 0 offen sc1\nbuffer_store_dwordx4 v[178:181], v198, {R4(WS)}, s76 offen sc1")
A(f"""
s_waitcnt vmcnt(12)
v_mov_b32 v104, 0
v_mov_b32 v105, 0
v_mov_b32 v106, 0
v_mov_b32 v107, 0
v_mov_b32 v110, 0x3f803f80
""")
for i in range(8): A(f"v_dot2c_f32_bf16 v{104+2*(i&1)}, v{96+i}, v110\nv_dot2c_f32_bf16 v{105+2*(i&1)}, v{96+i}, v{96+i}")
A("v_add_f32 v104, v104, v106\nv_add_f32 v105, v105, v107")
for pat in ["quad_perm:[1,0,3,2]", "quad_perm:[2,3,0,1]", "row_half_mirror", "row_mirror"]:
    A(f"v_add_f32_dpp v104, v104, v104 {pat} row_mask:0xf bank_mask:0xf")
    A(f"v_add_f32_dpp v105, v105, v105 {pat} row_mask:0xf bank_mask:0xf")
A("""
v_mov_b32 v107, v104
v_mov_b32 v108, v105
v_permlane16_swap_b32 v104, v107
v_permlane16_swap_b32 v105, v108
v_add_f32 v104, v104, v107
v_add_f32 v105, v105, v108
""")
rowstats_pack(104, 105, 108)
A(f"""
v_mov_b32 v109, {sTAG}
v_lshlrev_b32 v107, 3, v192
s_mov_b32 s82, {XS}
s_mov_b32 exec_lo, 1
s_mov_b32 exec_hi, 1
buffer_store_dwordx2 v[108:109], v107, {R4(WS)}, s82 offen sc1
s_mov_b64 exec, -1
""")
info_load(201, 202)
L1 = newlab("T1"); LD = newlab("TD")
A(f"""
s_mul_i32 s79, s2, 7168
v_min_u32 v204, 55, v1
v_lshlrev_b32 v204, 7, v204
s_cmp_eq_u32 {sWAVE}, 1
s_cbranch_scc1 {L1}
s_cmp_eq_u32 {sWAVE}, 2
s_cbranch_scc0 {LD}
buffer_load_dword v205, {"v201" if W1LATE else "v204"}, {R4(WS) if W1LATE else R4(SW1)}, {sGL if W1LATE else "s79"} offen sc1
s_branch {LD}
{L1}:
buffer_load_dword v205, v204, {R4(SW2)}, s79 offen sc1
{LD}:
""")
stamp()
def wait_role(n0):
    La = newlab("WR"); Lb = newlab("WR")
    A(f"s_sub_u32 s97, {sWAVE}, 1\ns_cmp_lt_u32 s97, 2\ns_cbranch_scc0 {La}\ns_waitcnt vmcnt({n0+1})\ns_branch {Lb}\n{La}:\ns_waitcnt vmcnt({n0})\n{Lb}:")
wait_role(7)
for c, (D, E, O) in enumerate([(16, 24, 40), (28, 36, 56)]):
    for w in range(4): A(f"v_alignbit_b32 v{O+w}, v{D+w+1}, v{D+w}, 16")
    for w in range(4): A(f"v_alignbit_b32 v{O+4+w}, v{D+w+2}, v{D+w+1}, 16")
    for w in range(4): A(f"v_mov_b32 v{E+w}, v{D+w+1}")
    base = c * CHS
    A(f"ds_write_b128 v51, v[{O}:{O+3}] offset:{base}")
    A(f"ds_write_b128 v51, v[{O+4}:{O+7}] offset:{base + 2*CPS}")
    A(f"ds_write_b128 v51, v[{D+2}:{D+5}] offset:{base + 3*CPS}")
    A(f"ds_write_b128 v51, v[{E}:{E+3}] offset:{base + CPS}")
A(f"""
v_and_b32 v6, 3, v1
v_sub_u32 v7, 3, v6
v_lshlrev_b32 v7, 4, v7
v_lshlrev_b64 v[54:55], v7, v[48:49]
v_bfe_u32 v7, v1, 2, 1
v_mul_u32_u24 v7, {CHS}, v7
v_mul_u32_u24 v6, {CPS}, v6
v_add3_u32 v6, v6, v7, {KC}
v_mov_b32 v8, 0
v_mov_b32 v9, 0
v_mov_b32 v10, 0
v_mov_b32 v11, 0
s_mov_b64 exec, 0xff
ds_write_b128 v6, v[8:11]
ds_write_b128 v6, v[52:55] offset:16
s_mov_b64 exec, -1
v_lshlrev_b32 v15, 16, v50
""")
ACC = 64; AB = 96; BB = 160; GR = 16; MR = 48; RRa = 232; XR = 224
A(f"""
s_mul_i32 s79, {sCHL}, {KVS}
v_and_b32 v11, 15, v1
v_lshrrev_b32 v12, 4, v1
v_lshlrev_b32 v13, 4, v11
v_lshl_add_u32 v13, v12, 2, v13
s_lshl_b32 s80, {sPAR}, 10
v_add_u32 v13, s80, v13          ; s0
v_and_b32 v6, 3, v11
v_mul_u32_u24 v6, {CPS}, v6
v_lshrrev_b32 v7, 2, v11
v_lshl_add_u32 v6, v7, 3, v6
v_lshl_add_u32 v6, v12, 4, v6
s_mul_i32 s83, {sCHL}, {CHS}
s_lshl_b32 s84, {sPAR}, 6
s_add_u32 s83, s83, s84
s_add_u32 s83, s83, {KC}
v_add_u32 v6, s83, v6            ; vAfrag
v_lshlrev_b32 v7, 4, v12
v_lshlrev_b32 v8, 5, v11
v_sub_u32 v7, v7, v8
s_add_u32 s83, s79, s84
s_add_u32 s83, s83, {KV + 480}
v_add_u32 v7, s83, v7            ; vBfrag
v_lshlrev_b32 v14, 1, v13        ; s0*2
s_lshl_b32 s85, {sCH}, 12
s_add_u32 s85, s85, {XT}
s_add_u32 s80, {sGL}, {oFA}
s_lshl_b32 s81, {sJ}, 2
s_add_u32 s81, s81, s80
""")
wait_role(0)
info_eval(202)
A("s_waitcnt lgkmcnt(0)")
stamp()
A("s_barrier")
stamp()
LW0 = newlab("W0"); LJ = newlab("AJ")
A(f"""
s_cmp_eq_u32 {sWAVE}, 0
s_cbranch_scc1 {LW0}
s_branch {LJ}
{LW0}:
""")
flag_store("s81", 8, True)
A(f"v_and_b32 v5, 31, v1\nv_lshlrev_b32 v5, 2, v5\nv_add_u32 v5, s80, v5")
poll(5, 8)
A(f"""
s_lshl_b32 s83, {sCH}, 12
s_add_u32 s83, s83, {KVR}
s_mov_b32 m0, {KV}
v_lshlrev_b32 v5, 4, v1
s_add_u32 s84, s83, 4096
buffer_load_dwordx4 v5, {R4(WS)}, s83 offen sc1 lds
buffer_load_dwordx4 v5, {R4(WS)}, s83 offen offset:1024 sc1 lds
buffer_load_dwordx4 v5, {R4(WS)}, s83 offen offset:2048 sc1 lds
buffer_load_dwordx4 v5, {R4(WS)}, s83 offen offset:3072 sc1 lds
s_mov_b32 m0, {KV + KVS}
s_nop 0
buffer_load_dwordx4 v5, {R4(WS)}, s84 offen sc1 lds
buffer_load_dwordx4 v5, {R4(WS)}, s84 offen offset:1024 sc1 lds
buffer_load_dwordx4 v5, {R4(WS)}, s84 offen offset:2048 sc1 lds
buffer_load_dwordx4 v5, {R4(WS)}, s84 offen offset:3072 sc1 lds
""")
pf_rot(0, 64, 5, 8, 252); pf_rot(64, 64, 5, 8, 252); pf_rot(128, 32, 5, 8, 252)
A(f"""
""")
if TLBW:
    A(f"""
    v_min_u32 v5, 29, v1
    v_lshlrev_b32 v5, 19, v5
    s_lshl_b32 s84, {sJ}, 7
    s_add_u32 s83, s84, {HT}
    buffer_load_dword v253, v5, {R4(WS)}, s83 offen sc1
    v_and_b32 v5, 3, v1
    v_lshlrev_b32 v5, 19, v5
    buffer_load_dword v254, v5, {R4(SOUT)}, s84 offen sc1
    """)
A(f"""
{LJ}:
""")
stamp()
def creadsA(j, buf):
    L = []
    for U in range(8):
        a = AB + buf * 32 + 4 * U
        L.append(f"ds_read_b64 v[{a}:{a+1}], v6 offset:{512*U + 128*j}")
        L.append(f"ds_read_b64 v[{a+2}:{a+3}], v6 offset:{512*U + 128*j + 8}")
    return L
def creadsB(j, buf):
    return [f"ds_read_b128 v[{BB+buf*32+4*U}:{BB+buf*32+4*U+3}], v7 offset:{3584 - 512*U + 128*j}" for U in range(8)]
def xs_loads():
    A(f"v_lshlrev_b32 v5, 3, v13\ns_mov_b32 s87, {XS}\ns_mov_b32 s88, {XS+4096}")
    for t in range(4):
        so = "s87" if t < 2 else "s88"
        A(f"buffer_load_dwordx4 v[{GR+8*t}:{GR+8*t+3}], v5, {R4(WS)}, {so} offen offset:{2048*(t&1)} sc1")
        A(f"buffer_load_dwordx4 v[{GR+8*t+4}:{GR+8*t+7}], v5, {R4(WS)}, {so} offen offset:{2048*(t&1)+16} sc1")
def gather(first):
    return (f"s_mov_b32 m0, s86\n" if first else "") + f"buffer_load_dword v14, {R4(SQ)}, s85 offen lds\ns_add_u32 s85, s85, 65536\ns_add_u32 m0, m0, 256"
for r in creadsA(0, 0): A(r)
LW = only_wave(0)
A(f"s_waitcnt vmcnt({3 + 2*TLBW})\n{LW}:\ns_barrier")
stamp()
for r in creadsB(0, 0): A(r)
pairs = [(U, W) for U in range(8) for W in range(8) if U + W <= 7]
first = set()
for j in range(4):
    buf = j & 1
    A("s_waitcnt lgkmcnt(0)")
    nxt = []
    if j < 3:
        a_, b_ = creadsA(j + 1, buf ^ 1), creadsB(j + 1, buf ^ 1)
        for U in range(8): nxt += [a_[2*U], a_[2*U+1], b_[U]]
    vm = {}
    fill = []
    if j == 0:
        A(f"""
        s_lshl_b32 s83, {sWAVE}, 12
        s_add_u32 s84, s83, {XS}
        s_add_u32 s83, s83, {XSL}
        s_mov_b32 m0, s83
        v_lshlrev_b32 v5, 4, v1
        """)
        for t in range(4): vm[1 + 2 * t] = f"buffer_load_dwordx2 v[{XR+2*t}:{XR+2*t+1}], v14, {R4(WS)}, s85 offen offset:{512*t} sc1"
        for c in range(4): vm[20 + 3 * c] = f"buffer_load_dwordx4 v5, {R4(WS)}, s84 offen offset:{1024*c} sc1 lds"
        vm[33] = f"v_and_b32 v250, 31, v1\nv_lshlrev_b32 v250, 2, v250\nbuffer_load_dword v251, v250, {R4(WS)}, {sGL} offen sc1"
    if W1LATE and j == env("W1G", "0"):
        vm[35] = f"s_mul_i32 s87, s2, 7168\ns_mul_i32 s88, {sWAVE}, 1792\ns_add_u32 s87, s87, s88\nv_min_u32 v254, 13, v1\nv_lshlrev_b32 v254, 7, v254\n" + pf(SW1, "s87", 254, 253)
    if j in (1, 2):
        for i in range(7): vm[2 + 5 * i] = w2_dma(m0base=sW2W if (j == 1 and i == 0) else None)
    if j == 3:
        for i in range(6): vm[1 + 3 * i] = w2_dma()
        A(f"s_waitcnt vmcnt({14 + W1LATE})\ns_barrier")
        info_eval(251)
        A(f"v_lshlrev_b32 v5, 3, v13\nv_add_u32 v5, {XSL}, v5\ns_add_u32 s83, s79, {KV + 4088 - 1536}\nv_sub_u32 v10, s83, v14")
        for t in range(4):
            nxt.append(f"ds_read_b128 v[{GR+8*t}:{GR+8*t+3}], v5 offset:{2048*t}")
            nxt.append(f"ds_read_b128 v[{GR+8*t+4}:{GR+8*t+7}], v5 offset:{2048*t+16}")
        for t in range(4): nxt.append(f"ds_read_b64 v[{112+2*t}:{113+2*t}], v10 offset:{1536-512*t}")
    for idx, (U, W) in enumerate(pairs):
        acc = ACC + 4 * (U + W)
        a = AB + buf * 32 + 4 * U; b = BB + buf * 32 + 4 * W
        cin = f"v[{acc}:{acc+3}]" if acc in first else "0"
        first.add(acc)
        A(f"v_mfma_f32_16x16x32_bf16 v[{acc}:{acc+3}], v[{a}:{a+3}], v[{b}:{b+3}], {cin}")
        if nxt and idx >= (2 if j < 3 else 0): A(nxt.pop(0))
        if idx in vm: A(vm[idx])
        if j == 3 and idx == 17:
            Lok = newlab("XSOK"); Lre = newlab("XSRE")
            tags = [GR + 2 * i + 1 for i in range(16)]
            A(f"s_waitcnt lgkmcnt(0)\ns_mov_b32 s96, 0\n{Lre}:")
            A(f"v_min3_u32 v8, v{tags[0]}, v{tags[1]}, v{tags[2]}\nv_max3_u32 v9, v{tags[0]}, v{tags[1]}, v{tags[2]}")
            for i in range(3, 15, 2):
                A(f"v_min3_u32 v8, v8, v{tags[i]}, v{tags[i+1]}\nv_max3_u32 v9, v9, v{tags[i]}, v{tags[i+1]}")
            A(f"""
            v_min_u32 v8, v8, v{tags[15]}
            v_max_u32 v9, v9, v{tags[15]}
            v_xor_b32 v8, {sTAG}, v8
            v_xor_b32 v9, {sTAG}, v9
            v_or_b32 v8, v8, v9
            v_cmp_ne_u32 vcc, 0, v8
            s_cbranch_vccz {Lok}
            s_add_u32 s96, s96, 1
            s_cmp_ge_u32 s96, {POLL_LIMIT}
            s_cbranch_scc1 {Lok}
            """)
            xs_loads()
            A(f"s_waitcnt vmcnt(0)\ns_branch {Lre}\n{Lok}:")
            for i in range(16):
                fill.append(f"v_and_b32 v{RRa+i}, 0xffff0000, v{GR+2*i}")
                fill.append(f"v_lshlrev_b32 v{MR+i}, 16, v{GR+2*i}")
                fill.append(f"v_rcp_f32 v{RRa+i}, v{RRa+i}")
        for _ in range(3):
            if fill: A(fill.pop(0))
    assert not nxt and not fill, (j, len(nxt), len(fill))
    if j < 3: stamp()
stamp()
A(f"""
v_lshlrev_b32 v8, 4, v1
s_lshl_b32 s83, {sWAVE}, 12
s_add_u32 s83, s83, {RED}
v_add_u32 v9, s83, v8
s_xor_b32 s84, {sWAVE}, 1
s_lshl_b32 s84, s84, 12
s_add_u32 s84, s84, {RED}
v_add_u32 v8, s84, v8
s_cmp_eq_u32 {sPAR}, 0
s_cbranch_scc1 C_P0
""")
for j in range(4): A(f"ds_write_b128 v9, v[{ACC+4*j}:{ACC+4*j+3}] offset:{1024*j}")
A("s_nop 1")
for j in range(8): A(f"v_mov_b64 v[{ACC+2*j}:{ACC+2*j+1}], v[{ACC+16+2*j}:{ACC+16+2*j+1}]")
A("s_branch C_PJ\nC_P0:\ns_nop 7")
for j in range(4): A(f"ds_write_b128 v9, v[{ACC+16+4*j}:{ACC+16+4*j+3}] offset:{1024*j}")
A("C_PJ:")
PR = 160; T = 120; OUTR = 128; Q = 136; XF = 176
A(f"""
s_and_b32 s83, {sCH}, 2
v_and_b32 v5, 3, v11
v_xor_b32 v5, s83, v5
v_lshlrev_b32 v5, 5, v5
v_lshl_add_u32 v5, v12, 3, v5
v_lshrrev_b32 v9, 2, v11
v_lshl_add_u32 v5, v9, 16, v5
s_lshl_b32 s83, {sCH}, 7
s_lshl_b32 s84, {sPAR}, 20
s_add_u32 s83, s83, s84
s_add_u32 s83, s83, {HT}
v_add_u32 v5, s83, v5
s_mov_b32 s88, 0
s_mov_b32 s89, {4*65536}
s_mov_b32 s90, {8*65536}
s_mov_b32 s91, {12*65536}
s_waitcnt lgkmcnt(0)
s_barrier
""")
for j in range(4): A(f"ds_read_b128 v[{PR+4*j}:{PR+4*j+3}], v8 offset:{1024*j}")
for j in range(4):
    acc = ACC + 4 * j; kv = 112 + 2 * j; x = XR + 2 * j; m = MR + 4 * j; rs = RRa + 4 * j; X = XF + 4 * j; q = Q + 4 * j
    A(f"""
    v_and_b32 v{T}, 0xffff0000, v{kv+1}
    v_lshlrev_b32 v{T+1}, 16, v{kv+1}
    v_and_b32 v{T+2}, 0xffff0000, v{kv}
    v_lshlrev_b32 v{T+3}, 16, v{kv}
    v_lshlrev_b32 v{X}, 16, v{x}
    v_and_b32 v{X+1}, 0xffff0000, v{x}
    v_lshlrev_b32 v{X+2}, 16, v{x+1}
    v_and_b32 v{X+3}, 0xffff0000, v{x+1}
    v_pk_fma_f32 v[{acc}:{acc+1}], v[{T}:{T+1}], v[14:15], v[{acc}:{acc+1}] op_sel:[0,1,0] op_sel_hi:[1,1,1]
    v_pk_fma_f32 v[{acc+2}:{acc+3}], v[{T+2}:{T+3}], v[14:15], v[{acc+2}:{acc+3}] op_sel:[0,1,0] op_sel_hi:[1,1,1]
    v_pk_add_f32 v[{q}:{q+1}], v[{X}:{X+1}], v[{m}:{m+1}] neg_lo:[0,1] neg_hi:[0,1]
    v_pk_add_f32 v[{q+2}:{q+3}], v[{X+2}:{X+3}], v[{m+2}:{m+3}] neg_lo:[0,1] neg_hi:[0,1]
    v_pk_mul_f32 v[{q}:{q+1}], v[{q}:{q+1}], v[{rs}:{rs+1}]
    v_pk_mul_f32 v[{q+2}:{q+3}], v[{q+2}:{q+3}], v[{rs+2}:{rs+3}]
    """)
stamp()
for j in range(4):
    acc = ACC + 4 * j; P = PR + 4 * j; X = XF + 4 * j; q = Q + 4 * j
    A(f"""
    s_waitcnt lgkmcnt({3-j})
    v_pk_add_f32 v[{acc}:{acc+1}], v[{acc}:{acc+1}], v[{P}:{P+1}]
    v_pk_add_f32 v[{acc+2}:{acc+3}], v[{acc+2}:{acc+3}], v[{P+2}:{P+3}]
    v_pk_fma_f32 v[{q}:{q+1}], v[{q}:{q+1}], v[{acc}:{acc+1}], v[{X}:{X+1}]
    v_pk_fma_f32 v[{q+2}:{q+3}], v[{q+2}:{q+3}], v[{acc+2}:{acc+3}], v[{X+2}:{X+3}]
    v_cvt_pk_bf16_f32 v{OUTR+2*j}, v{q}, v{q+1}
    v_cvt_pk_bf16_f32 v{OUTR+2*j+1}, v{q+2}, v{q+3}
    buffer_store_dwordx2 v[{OUTR+2*j}:{OUTR+2*j+1}], v5, {R4(WS)}, s{88+j} offen sc1
    """)
stamp()
A(f"v_add_u32 v12, {sW2W}, v3\nv_add_u32 v13, {sW2W}, v4\ns_waitcnt vmcnt(4)")
w2_tr(R1, 0, 12, 13)
A(f"""
s_add_u32 s76, {sGL}, {oFB}
s_lshl_b32 s77, {sJ}, 2
s_add_u32 s77, s77, s76
s_lshl_b32 s78, {sWAVE}, 13
s_add_u32 s78, s78, {W3W}
v_add_u32 v12, s78, v3
v_add_u32 v13, s78, v4
v_lshrrev_b32 v5, 2, v1
v_mul_u32_u24 v5, 3584, v5
v_and_b32 v6, 3, v1
v_lshl_add_u32 v5, v6, 4, v5
s_lshl_b32 s79, {sFT}, 6
v_add_u32 v5, s79, v5
s_and_b32 {sROT}, {sFG}, 3
s_lshl_b32 s79, {sROT}, 3
s_lshl_b32 s80, {sWAVE}, 15
v_bfe_u32 v14, v1, 2, 2
v_bfe_u32 v7, v1, 4, 1
v_lshrrev_b32 v8, 5, v1
v_lshlrev_b32 v9, 3, v8
v_add_u32 v9, v9, v14
v_lshlrev_b32 v9, 6, v9
v_lshl_add_u32 v9, v7, 5, v9
v_lshl_add_u32 v9, v6, 3, v9
v_add_u32 v9, s80, v9
v_add_u32 v14, s80, v3
v_add_u32 v15, s80, v4
v_mov_b32 v10, 0
v_mov_b32 v11, 0x3f803f80
v_mov_b32 v20, 0
v_mov_b32 v21, 0
v_mov_b32 v22, 0
s_waitcnt vmcnt(0) lgkmcnt(0)
s_barrier
""")
stamp()
L = only_wave(0)
flag_store("s77", 6, True)
A(f"{L}:\ns_cmp_ge_u32 {sFG}, 14\ns_cbranch_scc1 B_STATS\ns_mov_b32 m0, s80")
WF = 128
for i in range(32):
    A(f"""
    s_mul_i32 s81, s79, 57344
    buffer_load_dwordx4 v5, {R4(SW1)}, s81 offen lds
    s_add_u32 s79, s79, 1
    s_and_b32 s79, s79, 31
    s_add_u32 m0, m0, 1024
    """)
for i in range(8): A(w2_dma(m0base="s78" if i == 0 else None))
def dots(lo, hi):
    for i in range(lo, hi): A(f"v_dot2c_f32_bf16 v{[10,20,21,22][i%4]}, v{WF+i}, v11")
for q in range(4):
    A(f"s_waitcnt vmcnt({32 - 8*q})")
    for i in range(8 * q, 8 * q + 8):
        r = WF + 4 * i
        A(f"ds_read_b64_tr_b16 v[{r}:{r+1}], v9 offset:{1024*i}")
        A(f"ds_read_b64_tr_b16 v[{r+2}:{r+3}], v9 offset:{1024*i+256}")
    if q > 0:
        A("s_waitcnt lgkmcnt(15)")
        dots(32 * (q - 1), 32 * q)
A("s_waitcnt vmcnt(0)")
w2_tr(4, R1, 12, 13)
A("s_waitcnt lgkmcnt(15)")
dots(96, 128)
A(f"""
v_add_f32 v10, v10, v20
v_add_f32 v21, v21, v22
v_add_f32 v10, v10, v21
v_mov_b32 v20, v10
s_nop 1
v_permlane32_swap_b32 v10, v20
v_add_f32 v10, v10, v20
""")
for i in range(64): A(f"v_accvgpr_write_b32 a{160+i}, v{192+i}")
A(f"""
s_branch B_JOIN
B_STATS:
""")
L = only_wave(1)
A(f"""
s_cmp_lg_u32 {sJ}, 31
s_cbranch_scc1 {L}
v_and_b32 v5, 31, v1
v_lshlrev_b32 v5, 2, v5
v_add_u32 v5, s76, v5
""")
poll(5, 6)
A(f"""
v_lshlrev_b32 v5, 7, v1
s_lshl_b32 s79, {sX}, 2
s_add_u32 s79, s79, {FG}
v_mov_b32 v6, {sTAG}
buffer_store_dword v6, v5, {R4(WS)}, s79 offen sc1
{L}:
B_JOIN:
""")
stamp()
L = only_wave(0)
A(f"""
v_and_b32 v5, 7, v1
v_lshlrev_b32 v5, 2, v5
s_and_b32 s79, s2, 63
s_lshl_b32 s79, s79, 7
s_add_u32 s79, s79, {FG}
v_add_u32 v5, s79, v5
""")
poll(5, 6)
A(f"s_cmp_lg_u32 s2, 255\ns_cbranch_scc1 {L}\ns_mov_b32 s79, {EPOCH}")
flag_store("s79", 6, False)
A(f"{L}:\ns_waitcnt lgkmcnt(0)\ns_barrier")
stamp()
A(f"s_cmp_ge_u32 {sFG}, 14\ns_cbranch_scc1 P2_STATS")
def pf_late(va, vd):
    A(f"s_mul_i32 s88, {sWAVE}, 56\ns_add_u32 s88, s88, 224")
    pf_rot("s88", 56, va, vd, vd)
def p3_setup():
    A(f"""
    v_lshlrev_b32 v247, 4, v1
    v_lshrrev_b32 v244, 2, v1
    v_and_b32 v245, 3, v1
    v_bfe_u32 v246, v244, 1, 1
    s_and_b32 s68, {sST}, 1
    v_xor_b32 v246, s68, v246
    v_lshlrev_b32 v246, 6, v246
    v_lshl_add_u32 v246, v245, 4, v246
    v_lshl_add_u32 v246, v244, 7, v246
    s_lshr_b32 s69, {sST}, 1
    s_lshl_b32 s70, s69, 16
    s_lshl_b32 s71, {sDT}, 12
    s_add_u32 s70, s70, s71
    s_lshl_b32 s71, {sPAR}, 11
    s_add_u32 s70, s70, s71
    s_add_u32 s70, s70, {HT}
    s_add_u32 s71, s70, {65536 - 1024}
    s_lshl_b32 {sRES}, {sWAVE}, 11
    s_add_u32 {sRES}, {sRES}, 155648
    s_mov_b32 m0, {sRES}
    s_nop 0
    buffer_load_dwordx4 v246, {R4(WS)}, s70 offen sc1 lds
    buffer_load_dwordx4 v246, {R4(WS)}, s71 offen offset:1024 sc1 lds
    s_mul_i32 s72, {sWAVE}, {28*1024}
    s_add_u32 s72, s72, {H1F}
    s_mul_i32 s73, {sST}, 114688
    s_add_u32 s73, s73, s72
    s_add_u32 s75, s73, 28672
    s_lshl_b32 s88, {sR3}, 12
    s_add_u32 s73, s73, s88
    v_min_u32 v244, 13, v1
    s_mul_i32 s74, {sWAVE}, 56
    v_lshlrev_b32 v244, 2, v244
    s_and_b32 s69, {sSM}, 1
    s_lshl_b32 s69, s69, 9
    s_add_u32 s69, s69, s74
    s_add_u32 s69, s69, {sGL}
    s_add_u32 s69, s69, {oFC}
    v_add_u32 v248, s69, v244
    v_add_u32 v249, 256, v248
    """)
ACC2 = 64; BF = 16; CS = 40; SR = 56; TT = 192; OO = 224
A(f"""
v_lshlrev_b32 v9, 4, v1
s_lshl_b32 s76, {sMT}, 17
s_add_u32 s76, s76, {HT}
s_lshl_b32 s77, {sWAVE}, 12
s_add_u32 s76, s76, s77
s_mov_b32 s80, {sROT}
""")
nph = [0]
def issue2():
    q = nph[0]; nph[0] += 1
    A(f"""
    s_lshl_b32 s79, s80, 14
    s_add_u32 s79, s79, s76
    s_mov_b32 m0, s77
    s_add_u32 s80, s80, 1
    s_and_b32 s80, s80, 3
    s_add_u32 s77, s77, 16384
    """)
    if q == 3: A("s_add_u32 s76, s76, 65536")
    return [f"buffer_load_dwordx4 v9, {R4(WS)}, s79 offen offset:{1024*c} sc1 lds" for c in range(4)]
PRE = env("PRE", "4")
for p in range(PRE):
    for l in issue2(): A(l)
A(f"""
v_bfe_u32 v12, v1, 2, 2           ; r
v_and_b32 v13, 3, v1
v_bfe_u32 v14, v1, 4, 1
v_lshrrev_b32 v15, 5, v1
v_lshlrev_b32 v11, 3, v15
v_add_u32 v11, v11, v12
v_lshlrev_b32 v11, 7, v11
v_lshl_add_u32 v11, v14, 5, v11
v_lshl_add_u32 v11, v13, 3, v11
v_lshrrev_b32 v13, 1, v12
v_lshl_add_u32 v5, v13, 6, v11
v_xor_b32 v6, 64, v5
v_add_u32 v7, 0x10000, v5
v_add_u32 v8, 0x10000, v6
v_and_b32 v12, 31, v1
v_lshlrev_b32 v11, 3, v12
s_and_b32 s81, {sMT}, 1
s_lshl_b32 s82, s81, 9
s_add_u32 s82, s82, {sGL}
s_add_u32 s82, s82, {oFC}
s_lshl_b32 s83, {sFT}, 2
s_add_u32 s82, s82, s83
s_lshl_b32 s81, s81, 10
s_add_u32 s81, s81, {sGL}
s_add_u32 s81, s81, {oHST}
v_lshlrev_b32 v12, 2, v12
v_add_u32 v12, s78, v12
ds_write_b32 v12, v10
v_lshlrev_b32 v0, 4, v15
v_add_u32 v0, s78, v0
s_lshl_b32 s83, {sFT}, 11
s_add_u32 s83, s83, {H1F}
s_mul_i32 s84, {sMT}, {4*114688}
s_add_u32 s83, s83, s84
s_add_u32 s84, s83, 114688
s_add_u32 s85, s83, {2*114688}
s_add_u32 s86, s83, {3*114688}
s_lshl_b32 s87, {sWAVE}, 14
s_waitcnt lgkmcnt(0)
""")
for g in range(4): A(f"ds_read_b128 v[{CS+4*g}:{CS+4*g+3}], v0 offset:{32*g}")
def trreads(t):
    h, ks = divmod(t, 32); L = []; buf = t % 3
    for j in range(2):
        b = BF + 8 * buf + 4 * j; v = 5 + 2 * h + j
        L.append(f"ds_read_b64_tr_b16 v[{b}:{b+1}], v{v} offset:{2048*ks}")
        L.append(f"ds_read_b64_tr_b16 v[{b+2}:{b+3}], v{v} offset:{2048*ks+512}")
    return L
HS = 240
def hs_loads(h):
    for j in range(2): A(f"buffer_load_dwordx2 v[{HS+2*j}:{HS+2*j+1}], v11, {R4(WS)}, s81 offen offset:{512*h+256*j} sc1")
def hs_check(h):
    Lok = newlab("HSOK"); Lre = newlab("HSRE")
    A(f"""
    s_mov_b32 s96, 0
    {Lre}:
    v_xor_b32 v12, {sTAG}, v{HS+1}
    v_xor_b32 v13, {sTAG}, v{HS+3}
    v_or_b32 v12, v12, v13
    v_cmp_ne_u32 vcc, 0, v12
    s_cbranch_vccz {Lok}
    s_add_u32 s96, s96, 1
    s_cmp_ge_u32 s96, {POLL_LIMIT}
    s_cbranch_scc1 {Lok}
    """)
    hs_loads(h)
    A(f"s_waitcnt vmcnt(0)\ns_branch {Lre}\n{Lok}:")
    for j in range(2):
        S = SR + 4 * j
        A(f"""
        v_and_b32 v{S+2}, 0xffff0000, v{HS+2*j}
        v_lshlrev_b32 v{S}, 16, v{HS+2*j}
        v_rcp_f32 v{S+1}, v{S+2}
        v_xor_b32 v{S}, 0x80000000, v{S}
        v_mul_f32 v{S+1}, 0xbfb8aa3b, v{S+1}
        """)
def epi_list(h, packed):
    L = []
    for j in range(2):
        S = SR + 4 * j; O = OO + 8 * j
        for hh in range(2):
            Tt = TT + 8 * ((2 * j + hh) % 4)
            a0 = ACC2 + 32 * h + 16 * j + 8 * hh
            if packed:
                for p in range(4): L.append(f"v_pk_fma_f32 v[{a0+2*p}:{a0+2*p+1}], v[{CS+8*hh+2*p}:{CS+8*hh+2*p+1}], v[{S}:{S+1}], v[{a0+2*p}:{a0+2*p+1}] op_sel_hi:[1,0,1]")
                for p in range(4): L.append(f"v_pk_mul_f32 v[{Tt+2*p}:{Tt+2*p+1}], v[{a0+2*p}:{a0+2*p+1}], v[{S}:{S+1}] op_sel:[0,1] op_sel_hi:[1,1]")
            else:
                for p in range(8): L.append(f"v_fmac_f32 v{a0+p}, v{CS+8*hh+p}, v{S}")
                for p in range(8): L.append(f"v_mul_f32 v{Tt+p}, v{a0+p}, v{S+1}")
            for p in range(8): L.append(f"v_exp_f32 v{Tt+p}, v{Tt+p}")
            if packed:
                for p in range(4): L.append(f"v_pk_fma_f32 v[{Tt+2*p}:{Tt+2*p+1}], v[{Tt+2*p}:{Tt+2*p+1}], v[{S+2}:{S+3}], v[{S+2}:{S+3}] op_sel_hi:[1,0,0]")
            else:
                for p in range(8): L.append(f"v_fma_f32 v{Tt+p}, v{Tt+p}, v{S+2}, v{S+2}")
            for p in range(8): L.append(f"v_rcp_f32 v{Tt+p}, v{Tt+p}")
            if packed:
                for p in range(4): L.append(f"v_pk_mul_f32 v[{Tt+2*p}:{Tt+2*p+1}], v[{Tt+2*p}:{Tt+2*p+1}], v[{a0+2*p}:{a0+2*p+1}]")
            else:
                for p in range(8): L.append(f"v_mul_f32 v{Tt+p}, v{Tt+p}, v{a0+p}")
            for p in range(4): L.append(f"v_cvt_pk_bf16_f32 v{O+4*hh+p}, v{Tt+2*p}, v{Tt+2*p+1}")
            L.append(f"buffer_store_dwordx4 v[{O+4*hh}:{O+4*hh+3}], v9, {R4(WS)}, s{83+2*h+j} offen offset:{1024*hh} sc1")
    return L
A(f"s_waitcnt vmcnt({4*(PRE-1)}) lgkmcnt(0)\ns_barrier")
stamp()
for r in trreads(0) + trreads(1): A(r)
vq = []
for p in range(1, PRE): vq += [("ph", p)] * 4
def V_(txt, tag):
    A(txt); vq.append(tag)
def vwait(tag):
    global vq
    idx = [i for i, t in enumerate(vq) if t == tag]
    if not idx: return
    n = len(vq) - 1 - max(idx)
    A(f"s_waitcnt vmcnt({n})"); vq = vq[max(idx) + 1:]
epi = []
EP_PER = env("EPPER", "4")
for t in range(64):
    h, ks = divmod(t, 32); q, c = divmod(t, 8)
    A(f"s_waitcnt lgkmcnt({4 if t < 63 else 0})")
    fill = []
    if c == 0 and nph[0] < 8:
        qq = nph[0]; fill += [(l, ("ph", qq)) for l in issue2()]
    if c == 6 and q < 7:
        vwait(("ph", q + 1)); A("s_barrier")
    if t == 26:
        hs_loads(0); vq += [("hs", 0)] * 2
    if t == 24: pf_late(12, 13); vq.append(("pf", 0))
    if t == 32: stamp()
    if t == 34:
        vwait(("hs", 0)); hs_check(0); epi = epi_list(0, env("EPK", "0"))
    if t == 39:
        pass
    if 40 <= t < 52: fill.append((w2_dma(m0base="s87" if t == 40 else None), ("w2", 0)))
    if t == 58: hs_loads(1); vq += [("hs", 1)] * 2
    nxt = trreads(t + 2) if t < 62 else []
    w = f"v[{WF+4*ks}:{WF+4*ks+3}]" if ks < 16 else f"a[{160+4*(ks-16)}:{163+4*(ks-16)}]"
    for j in range(2):
        b = BF + 8 * (t % 3) + 4 * j; acc = ACC2 + 32 * h + 16 * j
        cin = "0" if ks == 0 else f"v[{acc}:{acc+15}]"
        A(f"v_mfma_f32_32x32x16_bf16 v[{acc}:{acc+15}], {w}, v[{b}:{b+3}], {cin}")
        for _ in range(2):
            if nxt: A(nxt.pop(0))
        if fill:
            x_, tg = fill.pop(0); V_(x_, tg)
        for _ in range(EP_PER):
            if epi:
                e = epi.pop(0)
                if e.startswith("buffer_store"): V_(e, ("st", 0))
                else: A(e)
    while fill and c == 1:
        x_, tg = fill.pop(0); V_(x_, tg)
    if c == 0 and fill:
        carry = fill
        for x_, tg in carry: V_(x_, tg)
for e in epi:
    if e.startswith("buffer_store"): V_(e, ("st", 0))
    else: A(e)
stamp()
vwait(("st", 0))
flag_store("s82", 12, True); vq.append(("fl", 0))
vwait(("hs", 1)); hs_check(1)
A(f"v_add_u32 v12, s87, v3\nv_add_u32 v13, s87, v4\ns_barrier")
w2_tr(6, 14, 12, 13)
stamp()
A(f"s_add_u32 s87, s87, 65536")
p3_setup()
el = epi_list(1, 1)
nd = 0
for i, e in enumerate(el):
    A(e)
    if i % 8 == 3 and nd < 16:
        A(w2_dma(m0base="s87" if nd == 0 else None)); nd += 1
    if i == 108: A(f"buffer_load_dword v250, v248, {R4(WS)}, 0 offen sc1"); nd_at = nd; st_after = sum(1 for x in el[i+1:] if x.startswith("buffer_store"))
assert nd == 16
stamp()
Lok = newlab("FCA")
A(f"""
s_add_u32 s82, s82, 256
v_add_u32 v15, s87, v3
v_add_u32 v16, s87, v4
s_mov_b32 s95, 1
s_waitcnt vmcnt({16 - nd_at + st_after})
v_cmp_ne_u32 vcc, {sTAG}, v250
s_cbranch_vccz P3_START
""")
poll(248, 250)
A("s_branch P3_START")
A("P2_STATS:")
nstamp[0] = 17
A(f"""
s_sub_u32 s76, {sFG}, 14
v_and_b32 v5, 7, v0
v_lshrrev_b32 v6, 3, v0
v_bfe_u32 v7, v6, 1, 1
v_lshlrev_b32 v7, 2, v7
v_xor_b32 v7, v7, v5
v_lshlrev_b32 v7, 4, v7
v_lshl_add_u32 v7, v6, 7, v7
s_lshl_b32 s79, {sMT}, 1
s_add_u32 s79, s79, s76
s_lshl_b32 s79, s79, 16
s_add_u32 s79, s79, {HT}
""")
for it in range(16):
    A(f"buffer_load_dwordx4 v[{64+4*it}:{67+4*it}], v7, {R4(WS)}, s79 offen sc1\ns_add_u32 s79, s79, 4096")
for i in range(16): A(f"v_mov_b32 v{32+i}, 0")
for it in range(16):
    A(f"s_waitcnt vmcnt({15-it})")
    for d in range(4):
        r = 64 + 4 * it + d; t = 20 + 2 * (d & 1)
        A(f"""
        v_lshlrev_b32 v{t}, 16, v{r}
        v_and_b32 v{t+1}, 0xffff0000, v{r}
        v_pk_add_f32 v[{32+2*d}:{33+2*d}], v[{32+2*d}:{33+2*d}], v[{t}:{t+1}]
        v_pk_fma_f32 v[{40+2*d}:{41+2*d}], v[{t}:{t+1}], v[{t}:{t+1}], v[{40+2*d}:{41+2*d}]
        """)
stamp()
for i in range(16): A(f"v_add_f32_dpp v{32+i}, v{32+i}, v{32+i} row_ror:8 row_mask:0xf bank_mask:0xf")
for i in range(16): A(f"v_mov_b32 v{48+i}, v{32+i}")
for i in range(16): A(f"v_permlane16_swap_b32 v{32+i}, v{48+i}")
for i in range(16): A(f"v_add_f32 v{32+i}, v{32+i}, v{48+i}")
for i in range(16): A(f"v_mov_b32 v{48+i}, v{32+i}")
for i in range(16): A(f"v_permlane32_swap_b32 v{32+i}, v{48+i}")
for i in range(16): A(f"v_add_f32 v{32+i}, v{32+i}, v{48+i}")
SRED = 131072
A(f"""
v_lshlrev_b32 v8, 6, v5
s_lshl_b32 s79, {sWAVE}, 9
s_add_u32 s79, s79, {SRED}
v_add_u32 v8, s79, v8
s_mov_b64 exec, 0xff
ds_write_b128 v8, v[32:35]
ds_write_b128 v8, v[36:39] offset:16
ds_write_b128 v8, v[40:43] offset:32
ds_write_b128 v8, v[44:47] offset:48
s_mov_b64 exec, -1
s_waitcnt lgkmcnt(0)
s_barrier
""")
L = only_wave(0)
A(f"""
v_lshrrev_b32 v8, 3, v1
v_lshlrev_b32 v8, 6, v8
v_and_b32 v9, 7, v1
v_lshl_add_u32 v8, v9, 2, v8
v_add_u32 v8, {SRED}, v8
""")
for w in range(4): A(f"ds_read_b32 v{20+w}, v8 offset:{512*w}\nds_read_b32 v{24+w}, v8 offset:{512*w+32}")
A("""
s_waitcnt lgkmcnt(0)
v_add_f32 v20, v20, v21
v_add_f32 v22, v22, v23
v_add_f32 v24, v24, v25
v_add_f32 v26, v26, v27
v_add_f32 v20, v20, v22
v_add_f32 v24, v24, v26
""")
rowstats_pack(20, 24, 28)
A(f"""
v_mov_b32 v29, {sTAG}
v_lshlrev_b32 v8, 3, v1
s_and_b32 s79, {sMT}, 1
s_lshl_b32 s79, s79, 10
s_lshl_b32 s80, s76, 9
s_add_u32 s79, s79, s80
s_add_u32 s79, s79, {sGL}
s_add_u32 s79, s79, {oHST}
buffer_store_dwordx2 v[28:29], v8, {R4(WS)}, s79 offen sc1
{L}:
s_barrier
""")
stamp()
pf_late(20, 21)
A(f"s_lshl_b32 s87, {sWAVE}, 15\nv_add_u32 v12, s87, v3\nv_add_u32 v13, s87, v4")
for i in range(32): A(w2_dma(m0base="s87" if i == 0 else None))
A("s_waitcnt vmcnt(0)")
w2_tr(16, R1, 12, 13)
A("s_waitcnt lgkmcnt(0)")
for i in range(4): A(w2_dma(m0base="s87" if i == 0 else None))
A("s_waitcnt vmcnt(0)")
w2_tr(2, R1 + 16, 12, 13)
A("s_mov_b32 s95, 0")
p3_setup()
poll(248, 250)
A("P3_START:\ns_waitcnt lgkmcnt(0)")
nstamp[0] = 21
stamp()
ACC3 = 64; HB = 128; NS3 = 24; AH3 = env("AH3", "14")
RD3 = 131072
stamp()
cnt3 = [0]
def load3():
    t = cnt3[0]; cnt3[0] += 1
    ks = t % 28
    sl = HB + (t % NS3) * 4
    A(f"buffer_load_dwordx4 v[{sl}:{sl+3}], v247, {R4(WS)}, s73 offen offset:{1024*(ks%4)} sc1")
    if ks % 4 == 3: A("s_add_u32 s73, s73, 4096\ns_cmp_eq_u32 s73, s75\ns_cselect_b32 s88, 28672, 0\ns_sub_u32 s73, s73, s88")
    if t == 27: A(f"s_add_u32 s73, s73, {2*114688}\ns_add_u32 s75, s75, {2*114688}")
for ks in range(AH3): load3()
A(f"""
v_bfe_u32 v5, v1, 2, 2
v_and_b32 v6, 3, v1
v_bfe_u32 v7, v1, 4, 1
v_lshrrev_b32 v8, 5, v1
v_lshlrev_b32 v9, 2, v8
v_add_u32 v9, v9, v5
v_lshlrev_b32 v9, 6, v9
v_lshl_add_u32 v9, v7, 5, v9
v_lshl_add_u32 v9, v6, 3, v9
v_add_u32 v9, {sRES}, v9
v_and_b32 v5, 31, v1
v_lshlrev_b32 v5, 10, v5
v_lshl_add_u32 v5, v8, 4, v5
s_lshl_b32 s77, {sST}, 15
s_lshl_b32 s78, {sDT}, 6
s_add_u32 s77, s77, s78
s_lshl_b32 s78, {sPAR}, 5
s_add_u32 s77, s77, s78
s_add_u32 s78, s77, 65536
s_mul_i32 s76, {sWAVE}, 6144
s_add_u32 s76, s76, {RD3}
v_add_u32 v10, s76, v247
""")
for j in range(1, 4):
    A(f"s_xor_b32 s76, {sWAVE}, {j}\ns_mul_i32 s76, s76, 6144\ns_add_u32 s76, s76, {RD3 + (j-1)*2048}\nv_add_u32 v{10+j}, s76, v247")
A("s_barrier")
def red_write(ps):
    base = ACC3 + 32 * ps
    L0 = newlab("RP"); L1 = newlab("RP")
    A(f"s_cmp_eq_u32 {sPAR}, 0\ns_cbranch_scc0 {L0}")
    for par in range(2):
        for j in (3, 2, 1):
            a, e = j >> 1, j & 1
            r = base + 16 * a + 8 * (par ^ e)
            A(f"ds_write_b128 v{10+j}, v[{r}:{r+3}] offset:{24576*0}\nds_write_b128 v{10+j}, v[{r+4}:{r+7}] offset:1024")
        r = base + 8 * par
        for p in range(4): A(f"v_mov_b64 v[{48+2*p}:{49+2*p}], v[{r+2*p}:{r+2*p+1}]")
        if par == 0: A(f"s_branch {L1}\n{L0}:\ns_nop 7\ns_nop 3")
    A(f"{L1}:")
def red_final(ps):
    L = []
    for j in range(3):
        for g in range(2): L.append(f"ds_read_b128 v[{24+8*j+4*g}:{27+8*j+4*g}], v10 offset:{2048*j+1024*g}")
    for g in range(2): L.append(f"ds_read_b64_tr_b16 v[{20+2*g}:{21+2*g}], v9 offset:{1024*ps+512*g}")
    L.append("s_waitcnt lgkmcnt(0)")
    for g in range(2):
        L += [f"v_lshlrev_b32 v{56+4*g}, 16, v{20+2*g}", f"v_and_b32 v{57+4*g}, 0xffff0000, v{20+2*g}", f"v_lshlrev_b32 v{58+4*g}, 16, v{21+2*g}", f"v_and_b32 v{59+4*g}, 0xffff0000, v{21+2*g}"]
    for p in range(8): L.append(f"v_add_f32 v{48+p}, v{48+p}, v{56+p}")
    for p in range(8): L.append(f"v_add_f32 v{24+p}, v{24+p}, v{32+p}")
    for p in range(8): L.append(f"v_add_f32 v{48+p}, v{48+p}, v{40+p}")
    for p in range(8): L.append(f"v_add_f32 v{48+p}, v{48+p}, v{24+p}")
    for p in range(4): L.append(f"v_cvt_pk_bf16_f32 v{56+p}, v{48+2*p}, v{49+2*p}")
    L += ["v_permlane32_swap_b32 v56, v58", "v_permlane32_swap_b32 v57, v59",
          f"buffer_store_dwordx4 v[56:59], v5, {R4(SOUT)}, {'s77' if ps == 0 else 's78'} offen"]
    return L
fin = []
q3 = [("ld", i) for i in range(AH3)]
def w3(tag):
    global q3
    idx = [i for i, x in enumerate(q3) if x == tag]
    if not idx: return
    A(f"s_waitcnt vmcnt({len(q3) - 1 - idx[-1]})"); q3 = q3[idx[-1] + 1:]
for t in range(56):
    ps, ks = divmod(t, 28)
    w3(("ld", t))
    if t == 0:
        stamp()
        LL = newlab("LT")
        A(f"s_cmp_eq_u32 s95, 0\ns_cbranch_scc1 {LL}")
        flag_store("s82", 14, True)
        w2_tr(8, 20, 15, 16)
        A(f"{LL}:")
    if t == 16: A("s_waitcnt lgkmcnt(0)")
    if t == 28:
        red_write(0)
    if t == 32:
        A("s_waitcnt lgkmcnt(0)\ns_barrier"); fin = red_final(0)
    sl = HB + (t % NS3) * 4
    order = (0, 1) if ks < 27 else (1, 0)
    for n_, a in enumerate(order):
        acc = ACC3 + 32 * ps + 16 * a
        cin = "0" if ks == 0 else f"v[{acc}:{acc+15}]"
        A(f"v_mfma_f32_32x32x16_bf16 v[{acc}:{acc+15}], a[{8*ks+4*a}:{8*ks+4*a+3}], v[{sl}:{sl+3}], {cin}")
        if n_ == 0 and cnt3[0] < 56:
            if cnt3[0] == 24:
                A(f"buffer_load_dword v6, v249, {R4(WS)}, 0 offen sc1"); q3.append(("fl", 0))
            if cnt3[0] == 28:
                Lok = newlab("FCOK")
                w3(("fl", 0))
                A(f"v_cmp_ne_u32 vcc, {sTAG}, v6\ns_cbranch_vccz {Lok}")
                poll(249, 6)
                A(f"{Lok}:")
            q3.append(("ld", cnt3[0])); load3()
        for _ in range(4):
            if fin:
                e = fin.pop(0); A(e)
                if e.startswith("buffer_store"): q3.append(("st", 0))
stamp()
A("s_barrier")
red_write(1)
A("s_waitcnt lgkmcnt(0)\ns_barrier")
for e in red_final(1): A(e)
if DIAG:
    stamp()
    A("s_waitcnt vmcnt(0)")
    stamp()
    A(f"v_accvgpr_write_b32 a{224+nstamp[0]}, {sFAST}"); nstamp[0] += 1
    A(f"s_lshl_b32 s76, s2, 2\ns_add_u32 s76, s76, {sWAVE}\ns_lshl_b32 s76, s76, 7\ns_add_u32 s76, s76, {DIAGBASE}")
    for i in range(nstamp[0]):
        A(f"v_accvgpr_read_b32 v2, a{224+i}\nbuffer_store_dword v2, off, {R4(WS)}, s76 offset:{4*i}")
A("K_END:\ns_endpgm")

kn = NAME + "_kernel"
body = A.finalize()
out = [f"; {NAME}: persistent single launch (generated by gen/gen7.py)",
       "; phases: kv^T + LN(x) stats -> Toeplitz-MFMA long conv + gate + residual -> LN(h)@W1 + SiLU -> @W2 + residual; tagged flag hand-offs in d_ws",
       f"; @launch grid=(256,1,1) block=(256,1,1) lds={LDS_TOTAL}",
       '.amdgcn_target "amdgcn-amd-amdhsa--gfx950"', ".text",
       f".globl {kn}\n.p2align 8\n.type {kn},@function\n{kn}:",
       body,
       ".fill 256, 4, 0xbf800000",
       '.section .rodata,"a"\n.p2align 6',
       f".amdhsa_kernel {kn}\n  .amdhsa_next_free_vgpr 512\n  .amdhsa_next_free_sgpr 102\n  .amdhsa_accum_offset 256\n"
       "  .amdhsa_group_segment_fixed_size 0\n  .amdhsa_kernarg_size 96\n  .amdhsa_user_sgpr_count 2\n"
       "  .amdhsa_user_sgpr_kernarg_segment_ptr 1\n  .amdhsa_system_sgpr_workgroup_id_x 1\n.end_amdhsa_kernel\n"]
path = sys.argv[1] if len(sys.argv) > 1 else f"p7.s"
open(path, "w").write("\n".join(out))
print("wrote", path, "stamps", nstamp[0])
```
